```python
import torch

def _softmax(x, axis=-1):
    return torch.softmax(x, dim=axis)

def _gelu(x):
    return torch.nn.functional.gelu(x, approximate='tanh')

def _silu(x):
    return torch.nn.functional.silu(x)

def _sigmoid(x):
    return torch.sigmoid(x)

def _layernorm(x, axis=-1, eps=1e-05):
    m = x.mean(dim=axis, keepdim=True)
    v = x.var(dim=axis, keepdim=True, unbiased=False)
    return (x - m) / torch.sqrt(v + eps)

def _scatter_add(tgt, idx, src, axis=0):
    return tgt.clone().index_add_(axis, idx, src)

def _segment_sum(src, seg, n):
    out = torch.zeros((n,) + src.shape[1:], dtype=src.dtype)
    return out.index_add_(0, seg, src)

def _pad(x, pw):
    flat = tuple((v for pair in reversed(pw) for v in pair))
    return torch.nn.functional.pad(x, flat)
kernel_name = 'adaLN_cond__compressed_kv_cla__mixer_gmlp__prompt'

def setup_inputs():

    _w = lambda a: (lambda t: t.to(torch.bfloat16) if t.is_floating_point() else t)(torch.as_tensor(a))

    def _A_setup():
        B, H, Sq, Sk, D, M = (1, 32, 2048, 2048, 128, 512)
        Dc = 4 * D
        return {'x': _w((lambda *s: torch.randn(*s, dtype=torch.bfloat16) * 0.05)(B, Sq, M)), 'c_kv': _w((lambda *s: torch.randn(*s, dtype=torch.bfloat16) * 1.6)(B, Sk, Dc)), 'w_q': _w((lambda *s: torch.randn(*s, dtype=torch.bfloat16) * 0.8)(M, H, D) * M ** (-0.5)), 'w_uk': _w((lambda *s: torch.randn(*s, dtype=torch.bfloat16) * 0.8)(Dc, H, D) * Dc ** (-0.5)), 'w_uv': _w((lambda *s: torch.randn(*s, dtype=torch.bfloat16) * 1.6)(Dc, H, D) * Dc ** (-0.5)), 'w_o': _w((lambda *s: torch.randn(*s, dtype=torch.bfloat16) * 1.6)(H, D, M) * (H * D) ** (-0.5))}
    _A_in = _A_setup()

    def _B_setup():
        B, S, D, F = (1, 2048, 512, 1376)
        Fh = F // 2
        return {'x': _w((lambda *s: torch.randn(*s, dtype=torch.bfloat16) * 0.05)(B, S, D)), 'w_in': _w((lambda *s: torch.randn(*s, dtype=torch.bfloat16) * 0.4)(D, 2 * Fh)), 'w_sp': _w(0.01 * (lambda *s: torch.randn(*s, dtype=torch.bfloat16) * 0.4)(S, S)), 'b_sp': _w(1.0 + 0.01 * (lambda *s: torch.randn(*s, dtype=torch.bfloat16) * 0.05)(S)), 'w_out': _w((lambda *s: torch.randn(*s, dtype=torch.bfloat16) * 0.05)(Fh, D))}
    _B_in = _B_setup()
    return {'A_x': _A_in['x'], 'A_c_kv': _A_in['c_kv'], 'A_w_q': _A_in['w_q'], 'A_w_uk': _A_in['w_uk'], 'A_w_uv': _A_in['w_uv'], 'A_w_o': _A_in['w_o'], 'B_x': _B_in['x'], 'B_w_in': _B_in['w_in'], 'B_w_sp': _B_in['w_sp'], 'B_b_sp': _B_in['b_sp'], 'B_w_out': _B_in['w_out'], 'c': _w((lambda *s: torch.randn(*s, dtype=torch.bfloat16) * 0.1)(1, 512) * 8.0), 'w_mod': _w((lambda *s: torch.randn(*s, dtype=torch.bfloat16) * 0.1)(512, 6 * 512) * 512 ** (-0.5) * 8.0)}

def reference(A_x, A_c_kv, A_w_q, A_w_uk, A_w_uv, A_w_o, B_x, B_w_in, B_w_sp, B_b_sp, B_w_out, c, w_mod):

    def _A_ref(x, c_kv, w_q, w_uk, w_uv, w_o):
        B, Sq, M = (x.shape[0], x.shape[1], x.shape[2])
        Sk = c_kv.shape[1]
        H, D = (w_q.shape[1], w_q.shape[2])
        q = torch.einsum('bqm,mhd->bhqd', x, w_q)
        k = torch.einsum('bkc,chd->bhkd', c_kv, w_uk)
        v = torch.einsum('bkc,chd->bhkd', c_kv, w_uv)
        scores = torch.einsum('bhqd,bhkd->bhqk', q, k) * D ** (-0.5)
        off = Sk - Sq
        qi = torch.arange(Sq)[:, None]
        kj = torch.arange(Sk)[None, :]
        cmask = kj <= qi + off
        scores = torch.where(cmask[None, None], scores, -1000000000.0)
        p = _softmax(scores, axis=-1)
        ctx = torch.einsum('bhqk,bhkd->bhqd', p, v)
        return torch.einsum('bhqd,hdm->bqm', ctx, w_o)

    def _B_ref(x, w_in, w_sp, b_sp, w_out):
        B, S, D = x.shape
        F = w_in.shape[-1]
        Fh = F // 2
        z = _gelu(torch.einsum('bsd,df->bsf', x, w_in))
        z1 = z[..., :Fh].clone()
        z2 = _layernorm(z[..., Fh:], axis=-1)
        g = torch.einsum('ts,bsf->btf', w_sp, z2) + b_sp[None, :, None]
        return torch.einsum('bsf,fd->bsd', z1 * g, w_out)
    x = A_x
    mod = (_silu(c) @ w_mod).reshape(c.shape[0], 6, 1, -1)
    sa, ca, ga, sb, cb, gb = (mod[:, 0].clone(), mod[:, 1].clone(), mod[:, 2].clone(), mod[:, 3].clone(), mod[:, 4].clone(), mod[:, 5].clone())
    h = _layernorm(x, axis=-1) * (1 + ca) + sa
    x = x + ga * _A_ref(h, A_c_kv, A_w_q, A_w_uk, A_w_uv, A_w_o)
    h = _layernorm(x, axis=-1) * (1 + cb) + sb
    x = x + gb * _B_ref(h, B_w_in, B_w_sp, B_b_sp, B_w_out)
    return x
```

```python
from v2_common import *

class LG:
    def __init__(self): self.n = 0
    def issue(self, k=1):
        self.n += k; return self.n
    def wait(self, ticket):
        left = self.n - ticket
        e(f"s_waitcnt lgkmcnt({min(left, 15)})")
    def waitall(self):
        e("s_waitcnt lgkmcnt(0)")

def lnproj_prologue(L, X, QA, WF, MT0, AW, xs_srd, xrow_v, lg, mod_lds, wchunk_dma, after_chunk, nchunks=4):
    T = 20
    e("v_mov_b32 v28, 0"); e("v_mov_b32 v29, 0")
    e("s_mov_b32 s44, 0x3f803f80")
    for i in range(128):
        e(f"v_dot2_f32_bf16 v28, v{X+i}, s44, v28")
        e(f"v_dot2_f32_bf16 v29, v{X+i}, v{X+i}, v29")
    e("v_mov_b32 v30, v28"); e("v_mov_b32 v31, v29")
    e("s_nop 1")
    e("v_permlane32_swap_b32 v28, v30")
    e("v_permlane32_swap_b32 v29, v31")
    e("s_nop 1")
    e("v_add_f32 v28, v28, v30")
    e("v_add_f32 v29, v29, v31")
    e(f"v_mul_f32 v28, 0x{f2u(1/512):08x}, v28")
    e(f"v_mul_f32 v29, 0x{f2u(1/512):08x}, v29")
    e("v_fma_f32 v29, -v28, v28, v29")
    e("v_max_f32 v29, 0, v29")
    e(f"v_add_f32 v29, 0x{f2u(1e-5):08x}, v29")
    e("v_rsq_f32 v29, v29")
    e("s_nop 0")
    e("v_mul_f32 v28, v28, v29")
    e("v_sub_f32 v28, 0, v28")
    e("v_lshlrev_b32 v30, 5, v3")
    e(f"v_add_u32 v30, {mod_lds}, v30")
    mod_lds = 0
    def modreads(s):
        e(f"ds_read_b128 {vr(MT0,4)}, v30 offset:{mod_lds + s*64}")
        e(f"ds_read_b128 {vr(MT0+4,4)}, v30 offset:{mod_lds + s*64 + 16}")
        e(f"ds_read_b128 {vr(MT0+8,4)}, v30 offset:{mod_lds + 2048 + s*64}")
        e(f"ds_read_b128 {vr(MT0+12,4)}, v30 offset:{mod_lds + 2048 + s*64 + 16}")
        return lg.issue(4)
    def hpart(s, half):
        for j in range(2):
            r = X + 4*s + 2*half + j
            a = T + 4*half + 2*j
            m = 4*half + 2*j
            e(f"v_lshlrev_b32 v{a}, 16, v{r}")
            e(f"v_and_b32 v{a+1}, 0xffff0000, v{r}")
            e(f"v_fma_f32 v{a}, v{a}, v29, v28")
            e(f"v_fma_f32 v{a+1}, v{a+1}, v29, v28")
            e(f"v_fma_f32 v{a}, v{a}, v{MT0+m}, v{MT0+8+m}")
            e(f"v_fma_f32 v{a+1}, v{a+1}, v{MT0+m+1}, v{MT0+8+m+1}")
            e(f"v_cvt_pk_bf16_f32 v{r}, v{a}, v{a+1}")
    def wreads(s, dbs):
        base = ((s // 8) % 2) * 32768 + (s % 8) * 4096
        for db in dbs:
            e(f"ds_read_b64_tr_b16 {vr(WF+db*4,2)}, v{AW+db} offset:{base}")
            e(f"ds_read_b64_tr_b16 {vr(WF+db*4+2,2)}, v{AW+db} offset:{base + 1024}")
        return lg.issue(2*len(dbs))
    def mf(s, db):
        c = "0" if s == 0 else vr(QA+db*16,16)
        e(f"v_mfma_f32_32x32x16_bf16 {vr(QA+db*16,16)}, {vr(WF+db*4,4)}, {vr(X+4*s,4)}, {c}")
    after_chunk(-1)
    tm = modreads(0)
    tw01 = wreads(0, [0, 1]); tw23 = wreads(0, [2, 3])
    lg.wait(tm)
    hpart(0, 0); hpart(0, 1)
    tm = modreads(1)
    NS = nchunks * 8
    for s in range(NS):
        lastc = (s % 8 == 7)
        lg.wait(tw01)
        mf(s, 0); mf(s, 1)
        if not lastc: tw01n = wreads(s+1, [0, 1])
        if s + 1 < NS:
            lg.wait(tm)
            hpart(s+1, 0)
        lg.wait(tw23)
        mf(s, 2); mf(s, 3)
        if not lastc: tw23n = wreads(s+1, [2, 3])
        if s + 1 < NS:
            hpart(s+1, 1)
            if s + 2 < NS: tm = modreads(s+2)
        if lastc:
            lg.waitall()
            after_chunk(s // 8)
            if s + 1 < NS:
                tw01n = wreads(s+1, [0, 1]); tw23n = wreads(s+1, [2, 3])
        if s + 1 < NS:
            tw01, tw23 = tw01n, tw23n

def gen_attn():
    name = "attn_kernel"
    L = "L_attn"
    lg = LG()
    begin(name)
    e("s_cmp_ge_u32 s2, 512")
    e(f"s_cbranch_scc1 {L}_end")
    load_kargs()
    e("s_and_b32 s4, s2, 7")
    e("s_lshr_b32 s5, s2, 3")
    e("s_and_b32 s6, s5, 1")
    e("s_lshr_b32 s7, s5, 5")
    e("s_bfe_u32 s16, s5, 0x40001")
    e("s_lshl_b32 s17, s7, 4")
    e("s_or_b32 s16, s16, s17")
    e("s_xor_b32 s6, s6, s7")
    e("s_and_b32 s17, s16, 7")
    e("s_sub_u32 s18, 15, s17")
    e("s_cmp_eq_u32 s6, 0")
    e("s_cselect_b32 s17, s18, s17")
    e("s_lshr_b32 s16, s16, 3")
    e("s_lshl_b32 s16, s16, 3")
    e("s_add_u32 s16, s16, s4")
    e("v_mov_b32 v9, v0")
    e("v_lshrrev_b32 v1, 6, v0")
    e("v_and_b32 v0, 63, v0")
    e("s_nop 0")
    e("v_readfirstlane_b32 s20, v1")
    e("s_waitcnt lgkmcnt(0)")
    wsl, wsh = kaptr('ws')
    srd_off(8, wsl, wsh, WS['k'], 32*MB)
    srd_off(12, wsl, wsh, WS['ctx'], 16*MB)
    xl, xh = kaptr('x'); srd(32, xl, xh, 2048*512*2)
    ql, qh = kaptr('wq'); srd(36, ql, qh, 512*4096*2)
    srd_off(56, wsl, wsh, WS['mod'], 3072*4)
    VK, VV, VW, VM, VL, VREL = 10, 11, 12, 13, 14, 15
    AV, AK, VMC, T = 16, 20, 28, 29
    Q, P, KF, O, S0, S1, MT0 = 32, 64, 80, 112, 176, 208, 240
    X, QA, WF = 112, 32, 96
    MODL = 65536
    e("v_and_b32 v2, 31, v0")
    e("v_lshrrev_b32 v3, 5, v0")
    e("s_lshl_b32 s22, s17, 7")
    e("s_lshl_b32 s23, s20, 5")
    e("s_add_u32 s22, s22, s23")
    e("v_add_u32 v4, s22, v2")
    e("v_lshlrev_b32 v5, 10, v4")
    e("v_lshl_add_u32 v5, v3, 4, v5")
    for s in range(32):
        e(f"buffer_load_dwordx4 {vr(X+4*s,4)}, v5, s[32:35], 0 offen offset:{s*32}")
    e("v_lshlrev_b32 v6, 3, v9")
    e("s_mov_b32 s4, 2048")
    e(f"buffer_load_dwordx2 v[{MT0}:{MT0+1}], v6, s[56:59], s4 offen")
    e(f"buffer_load_dwordx2 v[{MT0+2}:{MT0+3}], v6, s[56:59], 0 offen")
    e("v_lshrrev_b32 v6, 4, v0")
    e("s_lshl_b32 s23, s20, 2")
    e("v_add_u32 v7, s23, v6")
    e("v_and_b32 v8, 15, v0")
    e("v_xor_b32 v7, v7, v8")
    e("v_lshlrev_b32 v1, 8, v6")
    e(f"v_lshl_add_u32 v{VK}, v7, 4, v1")
    e("v_bfe_u32 v7, v0, 2, 2")
    e("v_xor_b32 v7, v7, v6")
    e("v_and_b32 v8, 3, v0")
    e("v_lshlrev_b32 v7, 6, v7")
    e("v_lshl_add_u32 v7, v8, 4, v7")
    e(f"v_add_u32 v{VV}, v7, v1")
    e("v_lshlrev_b32 v1, 13, v6")
    e(f"v_add_u32 v{VW}, v7, v1")
    e("s_lshl_b32 s25, s20, 10")
    e("s_lshl_b32 s45, s16, 8")
    e("s_lshl_b32 s4, s20, 15")
    e("s_add_u32 s45, s45, s4")
    def wdma(c):
        for i in range(8):
            e(f"s_add_u32 m0, s25, {(c%2)*32768 + i*4096}")
            e(f"s_add_u32 s4, s45, {(c*128 + i*16)*8192}")
            e(f"buffer_load_dwordx4 v{VW}, s[36:39], s4 offen lds")
    wdma(0); wdma(1)
    e("v_bfe_u32 v6, v0, 2, 2")
    e("v_bfe_u32 v8, v0, 4, 1")
    e("v_lshlrev_b32 v8, 5, v8")
    e("v_and_b32 v7, 1, v0")
    e("v_lshl_add_u32 v8, v7, 4, v8")
    e("v_bfe_u32 v7, v0, 1, 1")
    e("v_lshl_add_u32 v8, v7, 3, v8")
    e("v_lshl_add_u32 v7, v3, 3, v6")
    e("v_lshl_add_u32 v7, v7, 8, v8")
    for db in range(4):
        e(f"v_xor_b32 v1, {db}, v6")
        e(f"v_lshl_add_u32 v{AV+db}, v1, 6, v7")
    e("s_lshl_b32 s21, s16, 19")
    e("s_lshl_b32 s23, s20, 10")
    e("s_add_u32 s24, s21, s23")
    e(f"s_add_u32 s26, s24, 0x{16*MB:x}")
    e("s_lshl_b32 s27, s17, 1")
    e("s_add_u32 s27, s27, 2")
    e("s_mov_b32 s46, 0")
    e("s_mov_b32 s47, 0")
    def kdma(buf):
        e("s_cmp_lt_u32 s46, s27")
        e("s_cselect_b32 s5, s24, 0x7f000000")
        for i in range(4):
            e(f"s_add_u32 m0, s25, {buf*16384 + i*4096}")
            e(f"s_add_u32 s4, s5, {i*4096}")
            e(f"buffer_load_dwordx4 v{VK}, s[8:11], s4 offen lds")
        e("s_add_u32 s24, s24, 16384")
        e("s_add_u32 s46, s46, 1")
    def vdma(buf):
        e("s_cmp_lt_u32 s47, s27")
        e("s_cselect_b32 s5, s26, 0x7f000000")
        for i in range(4):
            e(f"s_add_u32 m0, s25, {32768 + buf*16384 + i*4096}")
            e(f"s_add_u32 s4, s5, {i*4096}")
            e(f"buffer_load_dwordx4 v{VV}, s[8:11], s4 offen lds")
        e("s_add_u32 s26, s26, 16384")
        e("s_add_u32 s47, s47, 1")
    e("s_waitcnt vmcnt(16)")
    e(f"v_add_f32 v{MT0}, 1.0, v{MT0}")
    e(f"v_add_f32 v{MT0+1}, 1.0, v{MT0+1}")
    e(f"v_cvt_pk_bf16_f32 v{MT0}, v{MT0}, v{MT0+1}")
    e(f"v_and_b32 v{MT0+1}, 0xffff0000, v{MT0}")
    e(f"v_lshlrev_b32 v{MT0}, 16, v{MT0}")
    e("v_lshlrev_b32 v6, 3, v9")
    e(f"v_add_u32 v6, {MODL}, v6")
    e(f"ds_write_b64 v6, v[{MT0}:{MT0+1}]")
    e(f"ds_write_b64 v6, v[{MT0+2}:{MT0+3}] offset:2048")
    def after_chunk(c):
        if c == -1:
            e("s_waitcnt vmcnt(8) lgkmcnt(0)"); e("s_barrier")
        elif c == 0:
            e("s_waitcnt vmcnt(0)"); e("s_barrier"); wdma(2)
        elif c == 1:
            e("s_waitcnt vmcnt(0)"); e("s_barrier"); wdma(3)
        elif c == 2:
            e("s_waitcnt vmcnt(0)"); e("s_barrier"); kdma(0); kdma(1)
        elif c == 3:
            e("s_barrier"); vdma(0)
    lnproj_prologue(L, X, QA, WF, MT0, AV, None, None, lg, MODL, None, after_chunk)
    e("s_nop 15")
    for i in range(32):
        e(f"v_cvt_pk_bf16_f32 v{Q+i}, v{QA+2*i}, v{QA+2*i+1}")
    e("v_lshlrev_b32 v6, 2, v3")
    e(f"v_sub_u32 v{VREL}, v4, v6")
    e("v_and_b32 v6, 15, v0")
    e("v_xor_b32 v6, v6, v3")
    e("v_lshlrev_b32 v7, 8, v2")
    for ds in range(8):
        e(f"v_xor_b32 v1, {2*ds}, v6")
        e(f"v_lshl_add_u32 v{AK+ds}, v1, 4, v7")
    e("v_bfe_u32 v6, v0, 2, 2")
    e("v_lshl_add_u32 v7, v3, 2, v6")
    e("v_lshl_add_u32 v7, v7, 8, v8")
    e("v_add_u32 v7, 32768, v7")
    for db in range(4):
        e(f"v_xor_b32 v1, {db}, v6")
        e(f"v_lshl_add_u32 v{AV+db}, v1, 6, v7")
    for i in range(64):
        e(f"v_mov_b32 v{O+i}, 0")
    e(f"v_mov_b32 v{VM}, 0xf149f2ca")
    e(f"v_mov_b32 v{VL}, 0")
    e(f"v_mov_b32 v{VMC}, 0")
    csc = (128 ** -0.5) * 1.4426950408889634
    e(f"s_mov_b32 s28, 0x{f2u(csc):08x}")
    e(f"s_mov_b32 s31, 0x{f2u(8.0/csc):08x}")
    e("s_mov_b32 s29, 0")
    e("s_sub_u32 s30, s27, 2")
    e("s_mov_b32 s43, 0")
    SB = [S0, S1]
    def kread(buf, g):
        f = KF + (g & 1) * 16
        for j in range(4):
            ds = (g % 2) * 4 + j
            e(f"ds_read_b128 {vr(f+j*4,4)}, v{AK+ds} offset:{buf*16384 + (g//2)*8192}")
        return lg.issue(4)
    def vread(buf, t):
        f = KF + (t & 1) * 16
        for db in range(4):
            e(f"ds_read_b64_tr_b16 {vr(f+db*4,2)}, v{AV+db} offset:{buf*16384 + t*4096}")
            e(f"ds_read_b64_tr_b16 {vr(f+db*4+2,2)}, v{AV+db} offset:{buf*16384 + t*4096 + 2048}")
        return lg.issue(8)
    def qk_mfma(S, g, j):
        ds = (g % 2) * 4 + j; kb = g // 2
        c = "0" if ds == 0 else vr(S+kb*16,16)
        return f"v_mfma_f32_32x32x16_bf16 {vr(S+kb*16,16)}, {vr(KF+(g&1)*16+j*4,4)}, {vr(Q+4*ds,4)}, {c}"
    def pv_mfma(t, db):
        return f"v_mfma_f32_32x32x16_bf16 {vr(O+db*16,16)}, {vr(KF+(t&1)*16+db*4,4)}, {vr(P+4*t,4)}, {vr(O+db*16,16)}"
    uid = [0]
    def mask_max(S):
        uid[0] += 1
        lb = f"{L}_nm{uid[0]}"
        o = []
        o.append(("blk", [
            "s_cmp_lt_u32 s43, s30",
            f"s_cbranch_scc1 {lb}",
            f"v_subrev_u32 v{T}, s29, v{VREL}",
            f"v_mov_b32 v{T+1}, 0xf149f2ca"] +
            sum([[f"v_cmp_gt_i32 vcc, {kb*32 + (i//4)*8 + i%4}, v{T}", "s_nop 1",
                  f"v_cndmask_b32 v{S+kb*16+i}, v{S+kb*16+i}, v{T+1}, vcc"] for kb in range(2) for i in range(16)], []) +
            [f"{lb}:", "s_add_u32 s29, s29, 64", "s_add_u32 s43, s43, 1"]))
        o.append(f"v_max3_f32 v{T}, v{S}, v{S+1}, v{S+2}")
        o.append(f"v_max3_f32 v{T+1}, v{S+3}, v{S+4}, v{S+5}")
        for i in range(6, 30, 4):
            o.append(f"v_max3_f32 v{T}, v{T}, v{S+i}, v{S+i+1}")
            o.append(f"v_max3_f32 v{T+1}, v{T+1}, v{S+i+2}, v{S+i+3}")
        o.append(f"v_max3_f32 v{T}, v{T}, v{S+30}, v{S+31}")
        o.append(f"v_max_f32 v{T}, v{T}, v{T+1}")
        o.append(("blk", [f"v_mov_b32 v{T+1}, v{T}", "s_nop 1", f"v_permlane32_swap_b32 v{T}, v{T+1}", "s_nop 1",
                          f"v_max_f32 v{T}, v{T}, v{T+1}",
                          f"v_add_f32 v{T+1}, s31, v{VM}",
                          f"v_cmp_gt_f32 s[40:41], v{T}, v{T+1}"]))
        return o
    def slowpath():
        uid[0] += 1
        lb = f"{L}_sp{uid[0]}"
        e("s_cmp_eq_u64 s[40:41], 0")
        e(f"s_cbranch_scc1 {lb}")
        e("s_nop 15")
        e(f"v_max_f32 v{T}, v{T}, v{VM}")
        e(f"v_sub_f32 v{T+1}, v{VM}, v{T}")
        e(f"v_mul_f32 v{T+1}, s28, v{T+1}")
        e(f"v_exp_f32 v{T+1}, v{T+1}")
        e(f"v_mov_b32 v{VM}, v{T}")
        e(f"v_mul_f32 v{VMC}, s28, v{T}")
        e(f"v_mul_f32 v{VL}, v{VL}, v{T+1}")
        for i in range(64):
            e(f"v_mul_f32 v{O+i}, v{O+i}, v{T+1}")
        lab(lb)
    def exps(S, t):
        b = S + t*8
        o = []
        for i in range(8): o.append(f"v_fma_f32 v{b+i}, v{b+i}, s28, -v{VMC}")
        for i in range(8): o.append(f"v_exp_f32 v{b+i}, v{b+i}")
        for j in range(4):
            o.append(f"v_add_f32 v{VL}, v{VL}, v{b+2*j}")
            o.append(f"v_cvt_pk_bf16_f32 v{P+t*4+j}, v{b+2*j}, v{b+2*j+1}")
            o.append(f"v_add_f32 v{VL}, v{VL}, v{b+2*j+1}")
        return o
    def emit(x):
        if isinstance(x, tuple):
            for s in x[1]:
                if s.endswith(":"): lab(s[:-1])
                else: e(s)
        else: e(x)
    e("s_waitcnt vmcnt(8)")
    e("s_barrier")
    tk = kread(0, 0)
    for g in range(4):
        if g < 3: tkn = kread(0, g+1)
        lg.wait(tk)
        for j in range(4): e(qk_mfma(S0, g, j))
        if g < 3: tk = tkn
    e("s_barrier")
    kdma(0)
    e("s_nop 7")
    for x in mask_max(S0): emit(x)
    e("s_waitcnt vmcnt(8)")
    e("s_barrier")
    vdma(1)
    tk = kread(1, 0)
    e("s_lshr_b32 s42, s27, 1")
    lab(f"{L}_loop")
    for u in range(2):
        cur, nxt = SB[u], SB[u ^ 1]
        kb_, vb_ = u ^ 1, u
        fill = exps(cur, 0) + exps(cur, 1) + exps(cur, 2) + exps(cur, 3)
        mm = mask_max(nxt)
        slowpath()
        quota = [4, 5, 4, 5]
        slot = 0
        def fillers(n):
            for _ in range(n):
                if fill: emit(fill.pop(0))
        for g in range(4):
            lg.wait(tk)
            e(qk_mfma(nxt, g, 0))
            if g < 3:
                tkn = kread(kb_, g+1)
            else:
                e("s_waitcnt vmcnt(8)")
                e("s_barrier")
                kdma(kb_)
                tkn = vread(vb_, 0)
            fillers(3)
            for j in range(1, 4):
                e(qk_mfma(nxt, g, j))
                fillers(quota[(slot + j) % 4])
            tk = tkn
        for t in range(4):
            need = 28 * (3 - t)
            while len(fill) > need: emit(fill.pop(0))
            lg.wait(tk)
            e("s_nop 0")
            e(pv_mfma(t, 0))
            if t < 3:
                tkn = vread(vb_, t+1)
            else:
                e("s_waitcnt vmcnt(8)")
                e("s_barrier")
                vdma(vb_)
                tkn = kread(u, 0)
            if t >= 1 and not fill:
                src = mm
            else:
                src = fill
            for db in range(1, 4):
                for _ in range(4 if db > 1 else 3):
                    if fill: emit(fill.pop(0))
                    elif t >= 1 and mm: emit(mm.pop(0))
                e(pv_mfma(t, db))
            for _ in range(2):
                if fill: emit(fill.pop(0))
                elif t >= 1 and mm: emit(mm.pop(0))
            tk = tkn
        while mm: emit(mm.pop(0))
    e("s_sub_u32 s42, s42, 1")
    e("s_cmp_lg_u32 s42, 0")
    e(f"s_cbranch_scc1 {L}_loop")
    e("s_nop 15")
    e(f"v_mov_b32 v{T}, v{VL}")
    e("s_nop 1")
    e(f"v_permlane32_swap_b32 v{T}, v{VL}")
    e("s_nop 1")
    e(f"v_add_f32 v{T}, v{T}, v{VL}")
    e(f"v_rcp_f32 v{T}, v{T}")
    e("v_lshlrev_b32 v5, 13, v4")
    e("v_lshl_add_u32 v5, v3, 4, v5")
    e("s_lshl_b32 s23, s16, 8")
    for db in range(4):
        for h in range(2):
            a = O + db*16 + h*8
            for j in range(8):
                e(f"v_mul_f32 v{a+j}, v{a+j}, v{T}")
            for j in range(4):
                e(f"v_cvt_pk_bf16_f32 v{a+j}, v{a+2*j}, v{a+2*j+1}")
            e(f"buffer_store_dwordx4 {vr(a,4)}, v5, s[12:15], s23 offen offset:{(db*32+h*16)*2}")
    e("s_waitcnt vmcnt(0)")
    lab(f"{L}_end")
    e("s_endpgm")
    end(name, (512,1,1), (256,1,1), 65536 + 4096, 256)
```

```python
import sys, struct
KA = dict(x=0, ckv=8, wq=16, wuk=24, wuv=32, wo=40, bx=48, win=56, wsp=64, bsp=72, wout=80, c=88, wmod=96, out=104, dbg=112, ws=120)
MB = 1 << 20
WS = dict(mod=0, k=20*MB, v=36*MB, ctx=52*MB, x1=68*MB, z=74*MB, z2n=80*MB, u=84*MB)
out = []
def e(s): out.append("    " + s)
def lab(s): out.append(s + ":")
def raw(s): out.append(s)
kernels = []
def begin(name):
    raw(f".globl {name}"); raw(".p2align 8"); raw(f".type {name},@function"); lab(name)
def end(name, grid, block, lds, nv, ns=100):
    kernels.append((name, grid, block, lds, nv, ns))
def srd(d, lo, hi, nbytes):
    e(f"s_mov_b32 s{d}, s{lo}"); e(f"s_mov_b32 s{d+1}, s{hi}")
    e(f"s_mov_b32 s{d+2}, 0x{nbytes:x}"); e(f"s_mov_b32 s{d+3}, 0x00020000")
def srd_off(d, lo, hi, off, nbytes):
    e(f"s_add_u32 s{d}, s{lo}, 0x{off:x}"); e(f"s_addc_u32 s{d+1}, s{hi}, 0")
    e(f"s_mov_b32 s{d+2}, 0x{nbytes:x}"); e(f"s_mov_b32 s{d+3}, 0x00020000")
def vr(a, n): return f"v[{a}:{a+n-1}]"
def f2u(x): return struct.unpack("<I", struct.pack("<f", x))[0]
def kaptr(n):
    o = KA[n] // 4
    return 64 + o, 65 + o
def load_kargs():
    e("s_load_dwordx16 s[64:79], s[0:1], 0")
    e("s_load_dwordx16 s[80:95], s[0:1], 64")
def log2(x):
    assert x & (x - 1) == 0 and x > 0
    return x.bit_length() - 1
def sdiv(dst, src, d, tmp):
    if d & (d - 1) == 0:
        e(f"s_lshr_b32 s{dst}, s{src}, {log2(d)}")
    else:
        e(f"s_mov_b32 s{tmp}, 0x{(1 << 32) // d + 1:x}")
        e(f"s_mul_hi_u32 s{dst}, s{src}, s{tmp}")

def gelu8(a, t):
    for j in range(8):
        e(f"v_mul_f32 v{t+j}, v{a+j}, v{a+j}")
        e(f"v_fma_f32 v{t+j}, v{t+j}, s21, v1") if False else None
    for j in range(8):
        e(f"v_mul_f32 v{t+j}, s21, v{t+j}")
        e(f"v_add_f32 v{t+j}, s20, v{t+j}")
        e(f"v_mul_f32 v{t+j}, v{t+j}, v{a+j}")
        e(f"v_exp_f32 v{t+j}, v{t+j}")
    for j in range(8):
        e(f"v_add_f32 v{t+j}, 1.0, v{t+j}")
        e(f"v_rcp_f32 v{t+j}, v{t+j}")
    e("s_nop 0")
    for j in range(8):
        e(f"v_mul_f32 v{a+j}, v{t+j}, v{a+j}")

def gen_gemm(name, M, N, K, BM, BN, BK, GM, GN, S, A, B, epi, order='mn', withmod=False):
    NW = GM * GN
    nk = (K + BK - 1) // BK
    ks = BK // 16
    nbm, nbn = M // BM, (N + BN - 1) // BN
    ntile = nbm * nbn
    assert ntile % 8 == 0
    WM, WN = BM // GM, BN // GN
    MT, NT = WM // 32, WN // 32
    SW = min(BN, 128)
    RB = SW * 2
    CPS = SW // 32
    AROW = BK * 2
    ABYTES = BM * AROW
    BBYTES = BK * BN * 2
    BUF = ABYTES + BBYTES
    rowsA = 1024 // AROW
    rowsB = 1024 // RB
    nA, nB = BM // rowsA, BBYTES // 1024
    assert nA % NW == 0 and nB % NW == 0, (nA, nB, NW)
    nAi, nBi = nA // NW, nB // NW
    nper = nAi + nBi
    nj = BK // rowsB
    (Aptr, As, Abytes) = A
    (Bptrs, Bs, Bbytes, segN) = B
    L = f"L_{name}"
    begin(name)
    e(f"s_cmp_ge_u32 s2, {ntile}")
    e(f"s_cbranch_scc1 {L}_end")
    load_kargs()
    e("s_and_b32 s4, s2, 7")
    e("s_lshr_b32 s5, s2, 3")
    e(f"s_mul_i32 s4, s4, {ntile//8}")
    e("s_add_u32 s4, s4, s5")
    if order == 'mn':
        sdiv(28, 4, nbn, 5)
        e(f"s_mul_i32 s5, s28, {nbn}")
        e("s_sub_u32 s29, s4, s5")
    else:
        sdiv(29, 4, nbm, 5)
        e(f"s_mul_i32 s5, s29, {nbm}")
        e("s_sub_u32 s28, s4, s5")
    e(f"s_mul_i32 s28, s28, {BM}")
    e(f"s_mul_i32 s29, s29, {BN}")
    e("s_waitcnt lgkmcnt(0)")
    def ptr(spec):
        if spec[0] == 'ka':
            lo, hi = kaptr(spec[1]); return (lo, hi, 0)
        lo, hi = kaptr('ws'); return (lo, hi, WS[spec[1]])
    lo, hi, ex = ptr(Aptr)
    srd_off(8, lo, hi, ex, Abytes)
    if len(Bptrs) > 1:
        e(f"s_lshr_b32 s3, s29, {log2(segN)}")
        e(f"s_and_b32 s29, s29, {segN-1}")
    for si, sp in enumerate(Bptrs):
        lo, hi, ex = ptr(sp)
        if si == 0:
            e(f"s_add_u32 s12, s{lo}, 0x{ex:x}"); e(f"s_addc_u32 s13, s{hi}, 0")
        else:
            e(f"s_add_u32 s4, s{lo}, 0x{ex:x}"); e(f"s_addc_u32 s5, s{hi}, 0")
            e(f"s_cmp_eq_u32 s3, {si}")
            e("s_cselect_b32 s12, s4, s12"); e("s_cselect_b32 s13, s5, s13")
    e(f"s_mov_b32 s14, 0x{Bbytes:x}"); e("s_mov_b32 s15, 0x00020000")
    e("v_mov_b32 v9, v0")
    e("v_lshrrev_b32 v1, 6, v0")
    e("v_and_b32 v0, 63, v0")
    e("s_nop 0")
    e("v_readfirstlane_b32 s30, v1")
    if BK == 32:
        e("v_lshrrev_b32 v2, 2, v0"); e("v_and_b32 v3, 3, v0"); e("v_lshrrev_b32 v4, 4, v0"); e("v_xor_b32 v3, v3, v4")
    else:
        e("v_lshrrev_b32 v2, 3, v0"); e("v_and_b32 v3, 7, v0"); e("v_lshrrev_b32 v4, 4, v0")
        e("s_and_b32 s4, s30, 1"); e("s_lshl_b32 s4, s4, 2"); e("v_or_b32 v4, s4, v4"); e("v_xor_b32 v3, v3, v4")
    e(f"s_mov_b32 s4, {As}")
    e("v_mul_lo_u32 v2, v2, s4")
    e("v_lshl_add_u32 v2, v3, 4, v2")
    if RB == 256:
        e("v_lshrrev_b32 v3, 4, v0"); e("v_bfe_u32 v4, v0, 2, 2"); e("v_xor_b32 v4, v4, v3"); e("v_and_b32 v5, 3, v0")
    else:
        e("v_lshrrev_b32 v3, 3, v0"); e("v_bfe_u32 v4, v0, 2, 1"); e("v_bfe_u32 v5, v0, 4, 1"); e("v_xor_b32 v4, v4, v5"); e("v_and_b32 v5, 3, v0")
    e(f"s_mov_b32 s4, {Bs}")
    e("v_mul_lo_u32 v3, v3, s4")
    e("v_lshl_add_u32 v3, v4, 6, v3")
    e("v_lshl_add_u32 v3, v5, 4, v3")
    SA, SB = 32, 40
    e(f"s_mul_i32 s4, s30, {rowsA}")
    e("s_add_u32 s4, s4, s28")
    e(f"s_mul_i32 s4, s4, {As}")
    for t in range(nAi):
        e(f"s_add_u32 s{SA+t}, s4, {t*NW*rowsA*As}")
    for t in range(nBi):
        e(f"s_add_u32 s4, s30, {NW*t}")
        e(f"s_and_b32 s5, s4, {nj-1}")
        e(f"s_lshr_b32 s4, s4, {log2(nj)}")
        e(f"s_mul_i32 s5, s5, {rowsB*Bs}")
        e(f"s_mul_i32 s4, s4, {SW*2}")
        e("s_add_u32 s4, s4, s5")
        e("s_lshl_b32 s5, s29, 1")
        e(f"s_add_u32 s{SB+t}, s4, s5")
    e("s_lshl_b32 s48, s30, 10")
    sdiv(49, 30, GN, 4)
    e(f"s_mul_i32 s4, s49, {GN}")
    e("s_sub_u32 s50, s30, s4")
    e("v_and_b32 v4, 31, v0")
    e("v_lshrrev_b32 v5, 5, v0")
    if BK == 32: e("v_bfe_u32 v6, v0, 2, 2")
    else: e("v_bfe_u32 v6, v0, 1, 3")
    e("v_xor_b32 v6, v6, v5")
    e(f"s_mul_i32 s4, s49, {WM*AROW}")
    e(f"v_lshlrev_b32 v7, {log2(AROW)}, v4")
    e("v_add_u32 v7, s4, v7")
    for s in range(ks):
        e(f"v_xor_b32 v8, {2*s}, v6")
        e(f"v_lshl_add_u32 v{10+s}, v8, 4, v7")
    e("v_bfe_u32 v4, v0, 2, 2")
    e("v_lshl_add_u32 v8, v5, 3, v4")
    e(f"v_lshlrev_b32 v8, {log2(RB)}, v8")
    e("v_bfe_u32 v6, v0, 4, 1")
    e("v_lshl_add_u32 v8, v6, 5, v8")
    e("v_and_b32 v6, 1, v0")
    e("v_lshl_add_u32 v8, v6, 4, v8")
    e("v_bfe_u32 v6, v0, 1, 1")
    e("v_lshl_add_u32 v8, v6, 3, v8")
    e(f"v_add_u32 v8, {ABYTES}, v8")
    if RB == 256: e("v_mov_b32 v6, v4")
    else: e("v_lshrrev_b32 v6, 1, v4")
    for nt in range(NT):
        e(f"s_mul_i32 s4, s50, {NT}")
        e(f"s_add_u32 s4, s4, {nt}")
        e(f"s_and_b32 s5, s4, {CPS-1}")
        e(f"s_lshr_b32 s4, s4, {log2(CPS)}")
        e(f"s_mul_i32 s4, s4, {BK*RB}")
        e("v_xor_b32 v7, s5, v6")
        e(f"v_lshl_add_u32 v{14+nt}, v7, 6, v8")
        e(f"v_add_u32 v{14+nt}, s4, v{14+nt}")
    NBANK = (S*BUF + 65535) // 65536
    for b in range(1, NBANK):
        for i in range(8):
            if (i < 4 and i < ks) or (i >= 4 and i - 4 < NT):
                e(f"v_add_u32 v{10+8*b+i}, {65536*b}, v{10+i}")
    def ad(reg, off):
        return f"v{reg + 8*(off >> 16)} offset:{off & 65535}"
    FSZ = (MT + NT) * 4
    FB = 10 + 8*NBANK
    ACC = FB + 2 * FSZ
    def acc(mt, nt): return ACC + (mt*NT + nt) * 16
    def fa(st, mt): return FB + st*FSZ + mt*4
    def fb(st, nt): return FB + st*FSZ + MT*4 + nt*4
    def dma(buf):
        for t in range(nAi):
            e(f"s_add_u32 m0, s48, {buf*BUF + t*NW*1024}")
            e(f"s_add_u32 s{SA+t}, s{SA+t}, {BK*2}")
            e(f"buffer_load_dwordx4 v2, s[8:11], s{SA+t} offen offset:0 lds") if False else None
            e(f"buffer_load_dwordx4 v2, s[8:11], s{SA+t} offen lds")
        for t in range(nBi):
            e(f"s_add_u32 m0, s48, {buf*BUF + ABYTES + t*NW*1024}")
            e(f"s_add_u32 s{SB+t}, s{SB+t}, {BK*Bs}")
            e(f"buffer_load_dwordx4 v3, s[12:15], s{SB+t} offen lds")
    def reads(buf, s, st):
        for mt in range(MT):
            e(f"ds_read_b128 {vr(fa(st,mt),4)}, {ad(10+s, buf*BUF + mt*32*AROW)}")
        for nt in range(NT):
            e(f"ds_read_b64_tr_b16 {vr(fb(st,nt),2)}, {ad(14+nt, buf*BUF + s*16*RB)}")
            e(f"ds_read_b64_tr_b16 {vr(fb(st,nt)+2,2)}, {ad(14+nt, buf*BUF + s*16*RB + 4*RB)}")
    nrd = MT + 2*NT
    def mf(st, mt, nt):
        e(f"v_mfma_f32_32x32x16_bf16 {vr(acc(mt,nt),16)}, {vr(fb(st,nt),4)}, {vr(fa(st,mt),4)}, {vr(acc(mt,nt),16)}")
    for t in range(nAi): e(f"s_sub_u32 s{SA+t}, s{SA+t}, {BK*2}")
    for t in range(nBi): e(f"s_sub_u32 s{SB+t}, s{SB+t}, {BK*Bs}")
    SS = min(S, nk)
    if withmod:
        cl, ch = kaptr('c'); wl, wh = kaptr('wmod'); sl, sh = kaptr('ws')
        srd(16, cl, ch, 1024)
        srd(20, wl, wh, 512*3072*2)
        srd_off(24, sl, sh, WS['mod'], 3072*4)
        T = ACC
        e(f"v_lshlrev_b32 v{T}, 1, v9")
        e(f"buffer_load_ushort v{T+1}, v{T}, s[16:19], 0 offen")
        e("s_mov_b32 s4, 6144")
        e(f"v_mul_lo_u32 v{T}, v9, s4")
        e("s_mul_i32 s4, s2, 24")
        e(f"buffer_load_dwordx4 {vr(T+2,4)}, v{T}, s[20:23], s4 offen")
        e(f"buffer_load_dwordx2 {vr(T+6,2)}, v{T}, s[20:23], s4 offen offset:16")
    for t in range(SS):
        dma(t)
    if withmod:
        T = ACC
        e(f"s_waitcnt vmcnt({SS*nper})")
        e(f"v_lshlrev_b32 v{T+1}, 16, v{T+1}")
        e(f"v_mul_f32 v{T}, 0xbfb8aa3b, v{T+1}")
        e(f"v_exp_f32 v{T}, v{T}")
        e("s_nop 0")
        e(f"v_add_f32 v{T}, 1.0, v{T}")
        e(f"v_rcp_f32 v{T}, v{T}")
        e("s_nop 0")
        e(f"v_mul_f32 v{T+1}, v{T+1}, v{T}")
        e(f"v_cvt_pk_bf16_f32 v{T+1}, v{T+1}, v{T+1}")
        e(f"v_lshlrev_b32 v{T+1}, 16, v{T+1}")
        P = T + 8
        for j in range(6):
            e(f"v_lshlrev_b32 v{P+2*j}, 16, v{T+2+j}")
            e(f"v_and_b32 v{P+2*j+1}, 0xffff0000, v{T+2+j}")
        for j in range(12):
            e(f"v_mul_f32 v{P+j}, v{P+j}, v{T+1}")
        for dpp in ("row_shr:1", "row_shr:2", "row_shr:4", "row_shr:8", "row_bcast:15 row_mask:0xa", "row_bcast:31 row_mask:0xc"):
            for j in range(12):
                e(f"v_add_f32_dpp v{P+j}, v{P+j}, v{P+j} {dpp}" + (" bound_ctrl:0" if "shr" in dpp else ""))
        e(f"v_mov_b32 v{T}, s48")
        e(f"v_lshrrev_b32 v{T}, 4, v{T}")
        e(f"v_add_u32 v{T}, {S*BUF}, v{T}")
        e("v_cmp_eq_u32 vcc, 63, v0")
        e("s_and_saveexec_b64 s[6:7], vcc")
        for j in range(3):
            e(f"ds_write_b128 v{T}, {vr(P+4*j,4)} offset:{16*j}")
        e("s_mov_b64 exec, s[6:7]")
        e("s_waitcnt lgkmcnt(0)")
    e(f"s_waitcnt vmcnt({(SS-1)*nper})")
    e("s_barrier")
    if withmod:
        T = ACC
        e("v_cmp_gt_u32 vcc, 12, v9")
        e("s_and_saveexec_b64 s[6:7], vcc")
        e(f"s_cbranch_execz {L}_nomod")
        e(f"v_lshlrev_b32 v{T}, 2, v9")
        e(f"v_add_u32 v{T+9}, {S*BUF}, v{T}")
        for w in range(8):
            e(f"ds_read_b32 v{T+1+w}, v{T+9} offset:{w*64}")
        e("s_waitcnt lgkmcnt(0)")
        for w in range(1, 8):
            e(f"v_add_f32 v{T+1}, v{T+1}, v{T+1+w}")
        e(f"v_cvt_pk_bf16_f32 v{T+1}, v{T+1}, v{T+1}")
        e(f"v_lshlrev_b32 v{T+1}, 16, v{T+1}")
        e("s_mul_i32 s4, s2, 48")
        e(f"buffer_store_dword v{T+1}, v{T}, s[24:27], s4 offen")
        lab(f"{L}_nomod")
        e("s_mov_b64 exec, s[6:7]")
    reads(0, 0, 0)
    for i in range(MT*NT*16):
        e(f"v_mov_b32 v{ACC+i}, 0")
    def stage(u, dodma, last, vm):
        buf = u % S
        for s in range(ks):
            st = s & 1
            ops = [(mt, nt) for mt in range(MT) for nt in range(NT)]
            if s < ks - 1:
                reads(buf, s+1, st ^ 1)
                e(f"s_waitcnt lgkmcnt({nrd})")
                for (mt, nt) in ops: mf(st, mt, nt)
            else:
                e("s_waitcnt lgkmcnt(0)")
                if last:
                    for (mt, nt) in ops: mf(st, mt, nt)
                else:
                    mf(st, *ops[0])
                    e(f"s_waitcnt vmcnt({vm})")
                    e("s_barrier")
                    if dodma: dma(buf)
                    reads((u+1) % S, 0, st ^ 1)
                    for (mt, nt) in ops[1:]: mf(st, mt, nt)
    nmain = max(nk - S, 0)
    r = nmain % S
    for u in range(r):
        stage(u, True, False, (S-2)*nper)
    if nmain - r > 0:
        e(f"s_mov_b32 s31, {(nmain - r)//S}")
        lab(f"{L}_loop")
        for u in range(r, r + S):
            stage(u, True, False, (S-2)*nper)
        e("s_sub_u32 s31, s31, 1")
        e("s_cmp_lg_u32 s31, 0")
        e(f"s_cbranch_scc1 {L}_loop")
    for u in range(nmain, nk):
        stage(u, False, u == nk-1, max(nk-2-u, 0)*nper)
    e("s_nop 15")
    e("v_and_b32 v4, 31, v0")
    e(f"s_mul_i32 s4, s49, {WM}")
    e("s_add_u32 s4, s4, s28")
    e("v_add_u32 v4, s4, v4")
    e(f"s_mul_i32 s5, s50, {WN}")
    e("v_lshrrev_b32 v5, 5, v0")
    e("s_add_u32 s6, s5, s29")
    wsl, wsh = kaptr('ws')
    def colvalid_begin(nt, h, lbl):
        if N % BN == 0: return
        e(f"s_add_u32 s7, s6, {nt*32+h*16+16}")
        e(f"s_cmp_gt_u32 s7, {N}")
        e(f"s_cbranch_scc1 {lbl}")
    def pack8(dst, a):
        for j in range(4):
            e(f"v_cvt_pk_bf16_f32 v{dst+j}, v{a+2*j}, v{a+2*j+1}")
    def unpack8(dst, src):
        for j in range(4):
            e(f"v_lshlrev_b32 v{dst+2*j}, 16, v{src+j}")
            e(f"v_and_b32 v{dst+2*j+1}, 0xffff0000, v{src+j}")
    if epi == 'kv':
        srd_off(16, wsl, wsh, WS['k'], 32*MB)
        e("s_lshl_b32 s7, s3, 24")
        e("s_lshr_b32 s4, s6, 7")
        e("s_lshl_b32 s4, s4, 19")
        e("s_add_u32 s7, s7, s4")
        e("s_and_b32 s4, s6, 127")
        e("s_lshl_b32 s4, s4, 1")
        e("s_add_u32 s7, s7, s4")
        e("v_lshlrev_b32 v6, 8, v4")
        e("v_lshl_add_u32 v6, v5, 4, v6")
        e("v_add_u32 v6, s7, v6")
        assert WN <= 128
        k = 0
        for mt in range(MT):
            e(f"s_mov_b32 s7, {mt*32*256}")
            for nt in range(NT):
                for h in range(2):
                    t = 8 + (k % 2) * 4; k += 1
                    pack8(t, acc(mt, nt) + h*8)
                    e(f"buffer_store_dwordx4 {vr(t,4)}, v6, s[16:19], s7 offen offset:{(nt*32+h*16)*2}")
    elif epi in ('oproj', 'final'):
        gi = 2 if epi == 'oproj' else 5
        srd_off(20, wsl, wsh, WS['mod'], 3072*4)
        if epi == 'oproj':
            xl, xh = kaptr('x'); srd(24, xl, xh, 2048*512*2)
            srd_off(16, wsl, wsh, WS['x1'], 2048*512*2)
        else:
            srd_off(24, wsl, wsh, WS['x1'], 2048*512*2)
            ol, oh = kaptr('out'); srd(16, ol, oh, 2048*512*2)
        e("v_lshlrev_b32 v5, 3, v5")
        e("v_add_u32 v5, s6, v5")
        e("v_lshlrev_b32 v7, 2, v5")
        e("v_lshlrev_b32 v6, 9, v4")
        e("v_add_u32 v6, v6, v5")
        e("v_lshlrev_b32 v6, 1, v6")
        e(f"s_mov_b32 s7, {gi*2048}")
        G0 = ACC + MT*NT*16
        X0 = G0 + NT*16
        for nt in range(NT):
            for h in range(2):
                e(f"buffer_load_dwordx4 {vr(G0+(nt*2+h)*8,4)}, v7, s[20:23], s7 offen offset:{(nt*32+h*16)*4}")
                e(f"buffer_load_dwordx4 {vr(G0+(nt*2+h)*8+4,4)}, v7, s[20:23], s7 offen offset:{(nt*32+h*16)*4+16}")
        for mt in range(MT):
            e(f"s_mov_b32 s4, {mt*32*1024}")
            for nt in range(NT):
                for h in range(2):
                    e(f"buffer_load_dwordx4 {vr(X0+((mt*NT+nt)*2+h)*4,4)}, v6, s[24:27], s4 offen offset:{(nt*32+h*16)*2}")
        e("s_waitcnt vmcnt(0)")
        for mt in range(MT):
            e(f"s_mov_b32 s4, {mt*32*1024}")
            for nt in range(NT):
                for h in range(2):
                    a = acc(mt, nt) + h*8
                    xr = X0 + ((mt*NT+nt)*2+h)*4
                    g = G0 + (nt*2+h)*8
                    unpack8(8, xr)
                    for j in range(8):
                        e(f"v_fmac_f32 v{8+j}, v{g+j}, v{a+j}")
                    pack8(xr, 8)
                    e(f"buffer_store_dwordx4 {vr(xr,4)}, v6, s[16:19], s4 offen offset:{(nt*32+h*16)*2}")
        nvx = X0 + MT*NT*8
    elif epi == 'sp':
        bl, bh = kaptr('bsp')
        srd(20, bl, bh, 2048*2)
        srd_off(24, wsl, wsh, WS['z'], 2048*1376*2)
        srd_off(16, wsl, wsh, WS['u'], 2048*704*2)
        e("v_lshlrev_b32 v5, 3, v5")
        e("v_add_u32 v5, s6, v5")
        e("s_mov_b32 s4, 2752")
        e("v_mul_lo_u32 v6, v4, s4")
        e("v_lshl_add_u32 v6, v5, 1, v6")
        e("s_mov_b32 s4, 1408")
        e("v_mul_lo_u32 v7, v4, s4")
        e("v_lshl_add_u32 v7, v5, 1, v7")
        e("v_lshlrev_b32 v8, 1, v4")
        for mt in range(MT):
            e(f"buffer_load_ushort v{16+mt}, v8, s[20:23], 0 offen offset:{mt*64}")
        X0 = ACC + MT*NT*16
        for mt in range(MT):
            e(f"s_mov_b32 s7, {mt*32*2752}")
            for nt in range(NT):
                for h in range(2):
                    e(f"buffer_load_dwordx4 {vr(X0+((mt*NT+nt)*2+h)*4,4)}, v6, s[24:27], s7 offen offset:{(nt*32+h*16)*2}")
        e("s_waitcnt vmcnt(0)")
        for mt in range(MT):
            e(f"v_lshlrev_b32 v{16+mt}, 16, v{16+mt}")
        for nt in range(NT):
            for h in range(2):
                lbl = f"{L}_sk{nt}{h}"
                colvalid_begin(nt, h, lbl)
                for mt in range(MT):
                    a = acc(mt, nt) + h*8
                    xr = X0 + ((mt*NT+nt)*2+h)*4
                    unpack8(8, xr)
                    for j in range(8):
                        e(f"v_add_f32 v{a+j}, v{a+j}, v{16+mt}")
                        e(f"v_mul_f32 v{8+j}, v{8+j}, v{a+j}")
                    pack8(xr, 8)
                    e(f"s_mov_b32 s7, {mt*32*1408}")
                    e(f"buffer_store_dwordx4 {vr(xr,4)}, v7, s[16:19], s7 offen offset:{(nt*32+h*16)*2}")
                if N % BN:
                    e(f"s_branch {lbl}_d")
                    lab(lbl)
                    for j in range(4): e(f"v_mov_b32 v{8+j}, 0")
                    for mt in range(MT):
                        e(f"s_mov_b32 s7, {mt*32*1408}")
                        e(f"buffer_store_dwordx4 v[8:11], v7, s[16:19], s7 offen offset:{(nt*32+h*16)*2}")
                    lab(f"{lbl}_d")
        nvx = X0 + MT*NT*8
    lab(f"{L}_end")
    e("s_endpgm")
    nv = ACC + MT*NT*16
    if epi in ('oproj', 'final', 'sp'): nv = max(nv, nvx)
    lds = S * BUF + (512 if withmod else 0)
    end(name, (ntile,1,1), (64*NW,1,1), lds, nv)
```

```python
import sys, os
sys.path.insert(0, os.path.dirname(os.path.abspath(__file__)))
from v2_common import *
from v2_attn import *
import v2_common

def gen_win():
    name = "win_kernel"
    L = "L_win"
    lg = LG()
    begin(name)
    e("s_cmp_ge_u32 s2, 176")
    e(f"s_cbranch_scc1 {L}_end")
    load_kargs()
    e("s_and_b32 s4, s2, 7")
    e("s_lshr_b32 s5, s2, 3")
    e("s_mul_i32 s4, s4, 22")
    e("s_add_u32 s4, s4, s5")
    sdiv(17, 4, 11, 5)
    e("s_mul_i32 s5, s17, 11")
    e("s_sub_u32 s16, s4, s5")
    e("v_mov_b32 v9, v0")
    e("v_lshrrev_b32 v1, 6, v0")
    e("v_and_b32 v0, 63, v0")
    e("s_nop 0")
    e("v_readfirstlane_b32 s20, v1")
    e("s_waitcnt lgkmcnt(0)")
    wsl, wsh = kaptr('ws')
    srd_off(12, wsl, wsh, WS['z'], 2048*1376*2)
    srd_off(32, wsl, wsh, WS['x1'], 2048*512*2)
    ql, qh = kaptr('win'); srd(36, ql, qh, 512*1376*2)
    srd_off(56, wsl, wsh, WS['mod'], 3072*4)
    VW, AV, MT0 = 12, 16, 240
    X, QA, WF = 112, 32, 96
    MODL = 65536
    e("v_and_b32 v2, 31, v0")
    e("v_lshrrev_b32 v3, 5, v0")
    e("s_lshl_b32 s22, s17, 7")
    e("s_lshl_b32 s23, s20, 5")
    e("s_add_u32 s22, s22, s23")
    e("v_add_u32 v4, s22, v2")
    e("v_lshlrev_b32 v5, 10, v4")
    e("v_lshl_add_u32 v5, v3, 4, v5")
    for s in range(32):
        e(f"buffer_load_dwordx4 {vr(X+4*s,4)}, v5, s[32:35], 0 offen offset:{s*32}")
    e("v_lshlrev_b32 v6, 3, v9")
    e(f"s_mov_b32 s4, {4*2048}")
    e(f"s_mov_b32 s5, {3*2048}")
    e(f"buffer_load_dwordx2 v[{MT0}:{MT0+1}], v6, s[56:59], s4 offen")
    e(f"buffer_load_dwordx2 v[{MT0+2}:{MT0+3}], v6, s[56:59], s5 offen")
    e("v_lshrrev_b32 v6, 4, v0")
    e("v_bfe_u32 v7, v0, 2, 2")
    e("v_xor_b32 v7, v7, v6")
    e("v_and_b32 v8, 3, v0")
    e("v_lshlrev_b32 v7, 6, v7")
    e("v_lshl_add_u32 v7, v8, 4, v7")
    e("s_mov_b32 s4, 2752")
    e("v_mul_lo_u32 v1, v6, s4")
    e(f"v_add_u32 v{VW}, v7, v1")
    e("s_lshl_b32 s25, s20, 10")
    e("s_lshl_b32 s45, s16, 8")
    e(f"s_mul_i32 s4, s20, {4*2752}")
    e("s_add_u32 s45, s45, s4")
    def wdma(c):
        for i in range(8):
            e(f"s_add_u32 m0, s25, {(c%2)*32768 + i*4096}")
            e(f"s_add_u32 s4, s45, {(c*128 + i*16)*2752}")
            e(f"buffer_load_dwordx4 v{VW}, s[36:39], s4 offen lds")
    wdma(0); wdma(1)
    e("v_bfe_u32 v6, v0, 2, 2")
    e("v_bfe_u32 v8, v0, 4, 1")
    e("v_lshlrev_b32 v8, 5, v8")
    e("v_and_b32 v7, 1, v0")
    e("v_lshl_add_u32 v8, v7, 4, v8")
    e("v_bfe_u32 v7, v0, 1, 1")
    e("v_lshl_add_u32 v8, v7, 3, v8")
    e("v_lshl_add_u32 v7, v3, 3, v6")
    e("v_lshl_add_u32 v7, v7, 8, v8")
    for db in range(4):
        e(f"v_xor_b32 v1, {db}, v6")
        e(f"v_lshl_add_u32 v{AV+db}, v1, 6, v7")
    e("s_waitcnt vmcnt(16)")
    e(f"v_add_f32 v{MT0}, 1.0, v{MT0}")
    e(f"v_add_f32 v{MT0+1}, 1.0, v{MT0+1}")
    e(f"v_cvt_pk_bf16_f32 v{MT0}, v{MT0}, v{MT0+1}")
    e(f"v_and_b32 v{MT0+1}, 0xffff0000, v{MT0}")
    e(f"v_lshlrev_b32 v{MT0}, 16, v{MT0}")
    e("v_lshlrev_b32 v6, 3, v9")
    e(f"v_add_u32 v6, {MODL}, v6")
    e(f"ds_write_b64 v6, v[{MT0}:{MT0+1}]")
    e(f"ds_write_b64 v6, v[{MT0+2}:{MT0+3}] offset:2048")
    def after_chunk(c):
        if c == -1:
            e("s_waitcnt vmcnt(8) lgkmcnt(0)"); e("s_barrier")
        elif c == 0:
            e("s_waitcnt vmcnt(0)"); e("s_barrier"); wdma(2)
        elif c == 1:
            e("s_waitcnt vmcnt(0)"); e("s_barrier"); wdma(3)
        elif c == 2:
            e("s_waitcnt vmcnt(0)"); e("s_barrier")
    lnproj_prologue(L, X, QA, WF, MT0, AV, None, None, lg, MODL, None, after_chunk)
    e("s_nop 15")
    c1 = -2.0 * 0.7978845608028654 * 1.4426950408889634
    e(f"s_mov_b32 s20, 0x{f2u(c1):08x}")
    e(f"s_mov_b32 s21, 0x{f2u(c1*0.044715):08x}")
    e("s_mov_b32 s4, 2752")
    e("v_mul_lo_u32 v5, v4, s4")
    e("v_lshl_add_u32 v5, v3, 4, v5")
    e("s_lshl_b32 s23, s16, 8")
    for db in range(4):
        if db == 3:
            e("s_cmp_eq_u32 s16, 10")
            e(f"s_cbranch_scc1 {L}_end")
        for h in range(2):
            a = QA + db*16 + h*8
            gelu8(a, 112)
            for j in range(4):
                e(f"v_cvt_pk_bf16_f32 v{a+j}, v{a+2*j}, v{a+2*j+1}")
            e(f"buffer_store_dwordx4 {vr(a,4)}, v5, s[12:15], s23 offen offset:{(db*32+h*16)*2}")
    lab(f"{L}_end")
    e("s_endpgm")
    end(name, (176,1,1), (256,1,1), 65536 + 4096, 256)

def gen_lnz():
    name = "lnz_kernel"
    begin(name)
    L = "L_lnz_end"
    e("s_cmp_ge_u32 s2, 512")
    e(f"s_cbranch_scc1 {L}")
    e(f"s_load_dwordx2 s[6:7], s[0:1], {KA['ws']}")
    e("s_waitcnt lgkmcnt(0)")
    srd_off(8, 6, 7, WS['z'] + 688*2, 2048*1376*2 - 688*2); srd_off(12, 6, 7, WS['z2n'], 2048*704*2)
    e("v_lshrrev_b32 v1, 6, v0")
    e("v_and_b32 v2, 63, v0")
    e("s_lshl_b32 s3, s2, 2")
    e("v_add_u32 v1, s3, v1")
    e("s_mov_b32 s20, 2752")
    e("v_mul_lo_u32 v3, v1, s20")
    e("v_lshl_add_u32 v3, v2, 4, v3")
    e("s_mov_b32 s20, 1408")
    e("v_mul_lo_u32 v4, v1, s20")
    e("v_lshl_add_u32 v4, v2, 4, v4")
    e("buffer_load_dwordx4 v[8:11], v3, s[8:11], 0 offen")
    for i in range(4): e(f"v_mov_b32 v{12+i}, 0")
    e("v_cmp_gt_u32 vcc, 22, v2")
    e("s_and_saveexec_b64 s[22:23], vcc")
    e("buffer_load_dwordx4 v[12:15], v3, s[8:11], 0 offen offset:1024")
    e("s_mov_b64 exec, s[22:23]")
    e("s_waitcnt vmcnt(0)")
    for ch in range(2):
        for i in range(4):
            e(f"v_lshlrev_b32 v{16+8*ch+2*i}, 16, v{8+4*ch+i}")
            e(f"v_and_b32 v{17+8*ch+2*i}, 0xffff0000, v{8+4*ch+i}")
    def wsum(r, t):
        for dpp in ("row_shr:1", "row_shr:2", "row_shr:4", "row_shr:8", "row_bcast:15 row_mask:0xa", "row_bcast:31 row_mask:0xc"):
            e("s_nop 1")
            e(f"v_add_f32_dpp v{r}, v{r}, v{r} {dpp}" + (" bound_ctrl:0" if "shr" in dpp else ""))
        e("s_nop 1")
        e(f"v_readlane_b32 s24, v{r}, 63")
        e("s_nop 1")
        e(f"v_mov_b32 v{r}, s24")
    e("v_mov_b32 v6, v16")
    for i in range(1, 16): e(f"v_add_f32 v6, v6, v{16+i}")
    wsum(6, 7)
    e(f"s_mov_b32 s20, 0x{f2u(1.0/688):08x}")
    e("v_mul_f32 v6, s20, v6")
    e("v_cmp_gt_u32 vcc, 22, v2")
    for i in range(16):
        e(f"v_sub_f32 v{16+i}, v{16+i}, v6")
        if i >= 8: e(f"v_cndmask_b32 v{16+i}, 0, v{16+i}, vcc")
    e("v_mul_f32 v6, v16, v16")
    for i in range(1, 16): e(f"v_fmac_f32 v6, v{16+i}, v{16+i}")
    wsum(6, 7)
    e("v_mul_f32 v6, s20, v6")
    e(f"v_add_f32 v6, 0x{f2u(1e-5):08x}, v6")
    e("v_rsq_f32 v6, v6")
    e("s_nop 0")
    for i in range(16): e(f"v_mul_f32 v{16+i}, v{16+i}, v6")
    for ch in range(2):
        for i in range(4):
            e(f"v_cvt_pk_bf16_f32 v{8+4*ch+i}, v{16+8*ch+2*i}, v{17+8*ch+2*i}")
    e("buffer_store_dwordx4 v[8:11], v4, s[12:15], 0 offen")
    e("v_cmp_gt_u32 vcc, 24, v2")
    e("s_and_saveexec_b64 s[22:23], vcc")
    e("buffer_store_dwordx4 v[12:15], v4, s[12:15], 0 offen offset:1024")
    lab(L)
    e("s_endpgm")
    end(name, (512,1,1), (256,1,1), 0, 48)

def main():
    cfg = dict(kv=(256,256,32,2,4,4), op=(64,64,64,2,2,4), sp=(128,64,64,2,2,4), wo=(64,64,64,2,2,4))
    for a in sys.argv[2:]:
        k, v = a.split("=")
        cfg[k] = tuple(int(x) for x in v.split(","))
    raw('.amdgcn_target "amdgcn-amd-amdhsa--gfx950"')
    raw(".text")
    W = 512*4096*2
    BM, BN, BK, GM, GN, S = cfg['kv']
    gen_gemm("kv_kernel", 2048, 8192, 512, BM, BN, BK, GM, GN, S,
             (('ka','ckv'), 1024, 2048*512*2), ([('ka','wuk'), ('ka','wuv')], 8192, W, 4096), 'kv', order=os.environ.get('KVORD','nm'), withmod=True)
    gen_attn()
    BM, BN, BK, GM, GN, S = cfg['op']
    gen_gemm("oproj_kernel", 2048, 512, 4096, BM, BN, BK, GM, GN, S,
             (('ws','ctx'), 8192, 2048*4096*2), ([('ka','wo')], 1024, 4096*512*2, 512), 'oproj', order='mn')
    gen_win()
    gen_lnz()
    BM, BN, BK, GM, GN, S = cfg['sp']
    gen_gemm("wsp_kernel", 2048, 688, 2048, BM, BN, BK, GM, GN, S,
             (('ka','wsp'), 4096, 2048*2048*2), ([('ws','z2n')], 1408, 2048*704*2, 1024), 'sp', order='mn')
    BM, BN, BK, GM, GN, S = cfg['wo']
    gen_gemm("wout_kernel", 2048, 512, 704, BM, BN, BK, GM, GN, S,
             (('ws','u'), 1408, 2048*704*2), ([('ka','wout')], 1024, 688*512*2, 512), 'final', order='mn')
    hdr = open("adaLN_cond__compressed_kv_cla__mixer_gmlp__prompt.s.ref").read().split("\n")
    hdr = [h for h in hdr if h.startswith(";") and "@launch" not in h and "Override" not in h and "grid=ceil" not in h]
    txt = "\n".join(hdr) + "\n"
    for (n, g, b, lds, nv, ns) in kernels:
        txt += f"; @launch kernel={n} grid=({g[0]},{g[1]},{g[2]}) block=({b[0]},{b[1]},{b[2]}) lds={lds}\n"
    txt += "\n".join(out) + "\n"
    txt += '.section .rodata,"a"\n'
    for (n, g, b, lds, nv, ns) in kernels:
        nv8 = (nv + 7) // 8 * 8
        txt += f""".p2align 6
.amdhsa_kernel {n}
  .amdhsa_next_free_vgpr {nv8}
  .amdhsa_next_free_sgpr {ns}
  .amdhsa_accum_offset {min(nv8,256)}
  .amdhsa_group_segment_fixed_size 0
  .amdhsa_kernarg_size 128
  .amdhsa_user_sgpr_count 2
  .amdhsa_user_sgpr_kernarg_segment_ptr 1
  .amdhsa_system_sgpr_workgroup_id_x 1
.end_amdhsa_kernel
"""
    open(sys.argv[1], "w").write(txt)
    for k in kernels: print(k)

main()
```

```python
import sys, struct
KA = dict(x=0, ckv=8, wq=16, wuk=24, wuv=32, wo=40, bx=48, win=56, wsp=64, bsp=72, wout=80, c=88, wmod=96, out=104, dbg=112, ws=120)
MB = 1 << 20
WS = dict(mod=0, k=20*MB, v=36*MB, ctx=52*MB, x1=68*MB, z=74*MB, z2n=80*MB, u=84*MB)
out = []
def e(s): out.append("    " + s)
def lab(s): out.append(s + ":")
def raw(s): out.append(s)
kernels = []
def begin(name):
    raw(f".globl {name}"); raw(".p2align 8"); raw(f".type {name},@function"); lab(name)
def end(name, grid, block, lds, nv, ns=100):
    kernels.append((name, grid, block, lds, nv, ns))
def srd(d, lo, hi, nbytes):
    e(f"s_mov_b32 s{d}, s{lo}"); e(f"s_mov_b32 s{d+1}, s{hi}")
    e(f"s_mov_b32 s{d+2}, 0x{nbytes:x}"); e(f"s_mov_b32 s{d+3}, 0x00020000")
def srd_off(d, lo, hi, off, nbytes):
    e(f"s_add_u32 s{d}, s{lo}, 0x{off:x}"); e(f"s_addc_u32 s{d+1}, s{hi}, 0")
    e(f"s_mov_b32 s{d+2}, 0x{nbytes:x}"); e(f"s_mov_b32 s{d+3}, 0x00020000")
def vr(a, n): return f"v[{a}:{a+n-1}]"
def f2u(x): return struct.unpack("<I", struct.pack("<f", x))[0]
def kaptr(n):
    o = KA[n] // 4
    return 64 + o, 65 + o
def load_kargs():
    e("s_load_dwordx16 s[64:79], s[0:1], 0")
    e("s_load_dwordx16 s[80:95], s[0:1], 64")
def log2(x):
    assert x & (x - 1) == 0 and x > 0
    return x.bit_length() - 1
def sdiv(dst, src, d, tmp):
    if d & (d - 1) == 0:
        e(f"s_lshr_b32 s{dst}, s{src}, {log2(d)}")
    else:
        e(f"s_mov_b32 s{tmp}, 0x{(1 << 32) // d + 1:x}")
        e(f"s_mul_hi_u32 s{dst}, s{src}, s{tmp}")

def gelu8(a, t):
    for j in range(8):
        e(f"v_mul_f32 v{t+j}, v{a+j}, v{a+j}")
        e(f"v_fma_f32 v{t+j}, v{t+j}, s21, v1") if False else None
    for j in range(8):
        e(f"v_mul_f32 v{t+j}, s21, v{t+j}")
        e(f"v_add_f32 v{t+j}, s20, v{t+j}")
        e(f"v_mul_f32 v{t+j}, v{t+j}, v{a+j}")
        e(f"v_exp_f32 v{t+j}, v{t+j}")
    for j in range(8):
        e(f"v_add_f32 v{t+j}, 1.0, v{t+j}")
        e(f"v_rcp_f32 v{t+j}, v{t+j}")
    e("s_nop 0")
    for j in range(8):
        e(f"v_mul_f32 v{a+j}, v{t+j}, v{a+j}")

def gen_gemm(name, M, N, K, BM, BN, BK, GM, GN, S, A, B, epi, order='mn', withmod=False):
    NW = GM * GN
    nk = (K + BK - 1) // BK
    ks = BK // 16
    nbm, nbn = M // BM, (N + BN - 1) // BN
    ntile = nbm * nbn
    assert ntile % 8 == 0
    WM, WN = BM // GM, BN // GN
    MT, NT = WM // 32, WN // 32
    SW = min(BN, 128)
    RB = SW * 2
    CPS = SW // 32
    AROW = BK * 2
    ABYTES = BM * AROW
    BBYTES = BK * BN * 2
    BUF = ABYTES + BBYTES
    rowsA = 1024 // AROW
    rowsB = 1024 // RB
    nA, nB = BM // rowsA, BBYTES // 1024
    assert nA % NW == 0 and nB % NW == 0, (nA, nB, NW)
    nAi, nBi = nA // NW, nB // NW
    nper = nAi + nBi
    nj = BK // rowsB
    (Aptr, As, Abytes) = A
    (Bptrs, Bs, Bbytes, segN) = B
    L = f"L_{name}"
    begin(name)
    e(f"s_cmp_ge_u32 s2, {ntile}")
    e(f"s_cbranch_scc1 {L}_end")
    load_kargs()
    e("s_and_b32 s4, s2, 7")
    e("s_lshr_b32 s5, s2, 3")
    e(f"s_mul_i32 s4, s4, {ntile//8}")
    e("s_add_u32 s4, s4, s5")
    if order == 'mn':
        sdiv(28, 4, nbn, 5)
        e(f"s_mul_i32 s5, s28, {nbn}")
        e("s_sub_u32 s29, s4, s5")
    else:
        sdiv(29, 4, nbm, 5)
        e(f"s_mul_i32 s5, s29, {nbm}")
        e("s_sub_u32 s28, s4, s5")
    e(f"s_mul_i32 s28, s28, {BM}")
    e(f"s_mul_i32 s29, s29, {BN}")
    e("s_waitcnt lgkmcnt(0)")
    def ptr(spec):
        if spec[0] == 'ka':
            lo, hi = kaptr(spec[1]); return (lo, hi, 0)
        lo, hi = kaptr('ws'); return (lo, hi, WS[spec[1]])
    lo, hi, ex = ptr(Aptr)
    srd_off(8, lo, hi, ex, Abytes)
    if len(Bptrs) > 1:
        e(f"s_lshr_b32 s3, s29, {log2(segN)}")
        e(f"s_and_b32 s29, s29, {segN-1}")
    for si, sp in enumerate(Bptrs):
        lo, hi, ex = ptr(sp)
        if si == 0:
            e(f"s_add_u32 s12, s{lo}, 0x{ex:x}"); e(f"s_addc_u32 s13, s{hi}, 0")
        else:
            e(f"s_add_u32 s4, s{lo}, 0x{ex:x}"); e(f"s_addc_u32 s5, s{hi}, 0")
            e(f"s_cmp_eq_u32 s3, {si}")
            e("s_cselect_b32 s12, s4, s12"); e("s_cselect_b32 s13, s5, s13")
    e(f"s_mov_b32 s14, 0x{Bbytes:x}"); e("s_mov_b32 s15, 0x00020000")
    e("v_mov_b32 v9, v0")
    e("v_lshrrev_b32 v1, 6, v0")
    e("v_and_b32 v0, 63, v0")
    e("s_nop 0")
    e("v_readfirstlane_b32 s30, v1")
    if BK == 32:
        e("v_lshrrev_b32 v2, 2, v0"); e("v_and_b32 v3, 3, v0"); e("v_lshrrev_b32 v4, 4, v0"); e("v_xor_b32 v3, v3, v4")
    else:
        e("v_lshrrev_b32 v2, 3, v0"); e("v_and_b32 v3, 7, v0"); e("v_lshrrev_b32 v4, 4, v0")
        e("s_and_b32 s4, s30, 1"); e("s_lshl_b32 s4, s4, 2"); e("v_or_b32 v4, s4, v4"); e("v_xor_b32 v3, v3, v4")
    e(f"s_mov_b32 s4, {As}")
    e("v_mul_lo_u32 v2, v2, s4")
    e("v_lshl_add_u32 v2, v3, 4, v2")
    if RB == 256:
        e("v_lshrrev_b32 v3, 4, v0"); e("v_bfe_u32 v4, v0, 2, 2"); e("v_xor_b32 v4, v4, v3"); e("v_and_b32 v5, 3, v0")
    else:
        e("v_lshrrev_b32 v3, 3, v0"); e("v_bfe_u32 v4, v0, 2, 1"); e("v_bfe_u32 v5, v0, 4, 1"); e("v_xor_b32 v4, v4, v5"); e("v_and_b32 v5, 3, v0")
    e(f"s_mov_b32 s4, {Bs}")
    e("v_mul_lo_u32 v3, v3, s4")
    e("v_lshl_add_u32 v3, v4, 6, v3")
    e("v_lshl_add_u32 v3, v5, 4, v3")
    SA, SB = 32, 40
    e(f"s_mul_i32 s4, s30, {rowsA}")
    e("s_add_u32 s4, s4, s28")
    e(f"s_mul_i32 s4, s4, {As}")
    for t in range(nAi):
        e(f"s_add_u32 s{SA+t}, s4, {t*NW*rowsA*As}")
    for t in range(nBi):
        e(f"s_add_u32 s4, s30, {NW*t}")
        e(f"s_and_b32 s5, s4, {nj-1}")
        e(f"s_lshr_b32 s4, s4, {log2(nj)}")
        e(f"s_mul_i32 s5, s5, {rowsB*Bs}")
        e(f"s_mul_i32 s4, s4, {SW*2}")
        e("s_add_u32 s4, s4, s5")
        e("s_lshl_b32 s5, s29, 1")
        e(f"s_add_u32 s{SB+t}, s4, s5")
    e("s_lshl_b32 s48, s30, 10")
    sdiv(49, 30, GN, 4)
    e(f"s_mul_i32 s4, s49, {GN}")
    e("s_sub_u32 s50, s30, s4")
    e("v_and_b32 v4, 31, v0")
    e("v_lshrrev_b32 v5, 5, v0")
    if BK == 32: e("v_bfe_u32 v6, v0, 2, 2")
    else: e("v_bfe_u32 v6, v0, 1, 3")
    e("v_xor_b32 v6, v6, v5")
    e(f"s_mul_i32 s4, s49, {WM*AROW}")
    e(f"v_lshlrev_b32 v7, {log2(AROW)}, v4")
    e("v_add_u32 v7, s4, v7")
    for s in range(ks):
        e(f"v_xor_b32 v8, {2*s}, v6")
        e(f"v_lshl_add_u32 v{10+s}, v8, 4, v7")
    e("v_bfe_u32 v4, v0, 2, 2")
    e("v_lshl_add_u32 v8, v5, 3, v4")
    e(f"v_lshlrev_b32 v8, {log2(RB)}, v8")
    e("v_bfe_u32 v6, v0, 4, 1")
    e("v_lshl_add_u32 v8, v6, 5, v8")
    e("v_and_b32 v6, 1, v0")
    e("v_lshl_add_u32 v8, v6, 4, v8")
    e("v_bfe_u32 v6, v0, 1, 1")
    e("v_lshl_add_u32 v8, v6, 3, v8")
    e(f"v_add_u32 v8, {ABYTES}, v8")
    if RB == 256: e("v_mov_b32 v6, v4")
    else: e("v_lshrrev_b32 v6, 1, v4")
    for nt in range(NT):
        e(f"s_mul_i32 s4, s50, {NT}")
        e(f"s_add_u32 s4, s4, {nt}")
        e(f"s_and_b32 s5, s4, {CPS-1}")
        e(f"s_lshr_b32 s4, s4, {log2(CPS)}")
        e(f"s_mul_i32 s4, s4, {BK*RB}")
        e("v_xor_b32 v7, s5, v6")
        e(f"v_lshl_add_u32 v{14+nt}, v7, 6, v8")
        e(f"v_add_u32 v{14+nt}, s4, v{14+nt}")
    NBANK = (S*BUF + 65535) // 65536
    for b in range(1, NBANK):
        for i in range(8):
            if (i < 4 and i < ks) or (i >= 4 and i - 4 < NT):
                e(f"v_add_u32 v{10+8*b+i}, {65536*b}, v{10+i}")
    def ad(reg, off):
        return f"v{reg + 8*(off >> 16)} offset:{off & 65535}"
    FSZ = (MT + NT) * 4
    FB = 10 + 8*NBANK
    ACC = FB + 2 * FSZ
    def acc(mt, nt): return ACC + (mt*NT + nt) * 16
    def fa(st, mt): return FB + st*FSZ + mt*4
    def fb(st, nt): return FB + st*FSZ + MT*4 + nt*4
    def dma_pieces(buf):
        ps = []
        for t in range(nAi):
            ps.append([f"s_add_u32 m0, s48, {buf*BUF + t*NW*1024}",
                       f"s_add_u32 s{SA+t}, s{SA+t}, {BK*2}",
                       f"buffer_load_dwordx4 v2, s[8:11], s{SA+t} offen lds"])
        for t in range(nBi):
            ps.append([f"s_add_u32 m0, s48, {buf*BUF + ABYTES + t*NW*1024}",
                       f"s_add_u32 s{SB+t}, s{SB+t}, {BK*Bs}",
                       f"buffer_load_dwordx4 v3, s[12:15], s{SB+t} offen lds"])
        return ps
    def dma(buf):
        for pc in dma_pieces(buf):
            for x in pc: e(x)
    pend = []
    cnt = [0]
    NMF = ks * MT * NT
    def tick():
        cnt[0] += 1
        while pend and cnt[0] >= 1 + (nper - len(pend)) * (NMF - 1) // nper:
            for x in pend.pop(0): e(x)
    def reads(buf, s, st):
        for mt in range(MT):
            e(f"ds_read_b128 {vr(fa(st,mt),4)}, {ad(10+s, buf*BUF + mt*32*AROW)}")
        for nt in range(NT):
            e(f"ds_read_b64_tr_b16 {vr(fb(st,nt),2)}, {ad(14+nt, buf*BUF + s*16*RB)}")
            e(f"ds_read_b64_tr_b16 {vr(fb(st,nt)+2,2)}, {ad(14+nt, buf*BUF + s*16*RB + 4*RB)}")
    nrd = MT + 2*NT
    import os
    def mf(st, mt, nt):
        if os.environ.get('NOMFMA') == name:
            tick(); return
        e(f"v_mfma_f32_32x32x16_bf16 {vr(acc(mt,nt),16)}, {vr(fb(st,nt),4)}, {vr(fa(st,mt),4)}, {vr(acc(mt,nt),16)}")
        tick()
    for t in range(nAi): e(f"s_sub_u32 s{SA+t}, s{SA+t}, {BK*2}")
    for t in range(nBi): e(f"s_sub_u32 s{SB+t}, s{SB+t}, {BK*Bs}")
    SS = min(S, nk)
    if withmod:
        cl, ch = kaptr('c'); wl, wh = kaptr('wmod'); sl, sh = kaptr('ws')
        srd(16, cl, ch, 1024)
        srd(20, wl, wh, 512*3072*2)
        srd_off(24, sl, sh, WS['mod'], 3072*4)
        T = ACC
        e(f"v_lshlrev_b32 v{T}, 1, v9")
        e(f"buffer_load_ushort v{T+1}, v{T}, s[16:19], 0 offen")
        e("s_mov_b32 s4, 6144")
        e(f"v_mul_lo_u32 v{T}, v9, s4")
        e("s_mul_i32 s4, s2, 24")
        e(f"buffer_load_dwordx4 {vr(T+2,4)}, v{T}, s[20:23], s4 offen")
        e(f"buffer_load_dwordx2 {vr(T+6,2)}, v{T}, s[20:23], s4 offen offset:16")
    for t in range(SS):
        dma(t)
    if withmod:
        T = ACC
        e(f"s_waitcnt vmcnt({SS*nper})")
        e(f"v_lshlrev_b32 v{T+1}, 16, v{T+1}")
        e(f"v_mul_f32 v{T}, 0xbfb8aa3b, v{T+1}")
        e(f"v_exp_f32 v{T}, v{T}")
        e("s_nop 0")
        e(f"v_add_f32 v{T}, 1.0, v{T}")
        e(f"v_rcp_f32 v{T}, v{T}")
        e("s_nop 0")
        e(f"v_mul_f32 v{T+1}, v{T+1}, v{T}")
        e(f"v_cvt_pk_bf16_f32 v{T+1}, v{T+1}, v{T+1}")
        e(f"v_lshlrev_b32 v{T+1}, 16, v{T+1}")
        P = T + 8
        for j in range(6):
            e(f"v_lshlrev_b32 v{P+2*j}, 16, v{T+2+j}")
            e(f"v_and_b32 v{P+2*j+1}, 0xffff0000, v{T+2+j}")
        for j in range(12):
            e(f"v_mul_f32 v{P+j}, v{P+j}, v{T+1}")
        for dpp in ("row_shr:1", "row_shr:2", "row_shr:4", "row_shr:8", "row_bcast:15 row_mask:0xa", "row_bcast:31 row_mask:0xc"):
            for j in range(12):
                e(f"v_add_f32_dpp v{P+j}, v{P+j}, v{P+j} {dpp}" + (" bound_ctrl:0" if "shr" in dpp else ""))
        e(f"v_mov_b32 v{T}, s48")
        e(f"v_lshrrev_b32 v{T}, 4, v{T}")
        e(f"v_add_u32 v{T}, {S*BUF}, v{T}")
        e("v_cmp_eq_u32 vcc, 63, v0")
        e("s_and_saveexec_b64 s[6:7], vcc")
        for j in range(3):
            e(f"ds_write_b128 v{T}, {vr(P+4*j,4)} offset:{16*j}")
        e("s_mov_b64 exec, s[6:7]")
        e("s_waitcnt lgkmcnt(0)")
    e(f"s_waitcnt vmcnt({(SS-1)*nper})")
    e("s_barrier")
    if withmod:
        T = ACC
        e("v_cmp_gt_u32 vcc, 12, v9")
        e("s_and_saveexec_b64 s[6:7], vcc")
        e(f"s_cbranch_execz {L}_nomod")
        e(f"v_lshlrev_b32 v{T}, 2, v9")
        e(f"v_add_u32 v{T+9}, {S*BUF}, v{T}")
        for w in range(8):
            e(f"ds_read_b32 v{T+1+w}, v{T+9} offset:{w*64}")
        e("s_waitcnt lgkmcnt(0)")
        for w in range(1, 8):
            e(f"v_add_f32 v{T+1}, v{T+1}, v{T+1+w}")
        e(f"v_cvt_pk_bf16_f32 v{T+1}, v{T+1}, v{T+1}")
        e(f"v_lshlrev_b32 v{T+1}, 16, v{T+1}")
        e("s_mul_i32 s4, s2, 48")
        e(f"buffer_store_dword v{T+1}, v{T}, s[24:27], s4 offen")
        lab(f"{L}_nomod")
        e("s_mov_b64 exec, s[6:7]")
    reads(0, 0, 0)
    for i in range(MT*NT*16):
        e(f"v_mov_b32 v{ACC+i}, 0")
    def stage(u, dodma, last, vm):
        buf = u % S
        for s in range(ks):
            st = s & 1
            ops = [(mt, nt) for mt in range(MT) for nt in range(NT)]
            if s < ks - 1:
                reads(buf, s+1, st ^ 1)
                e(f"s_waitcnt lgkmcnt({nrd})")
                for (mt, nt) in ops: mf(st, mt, nt)
            else:
                e("s_waitcnt lgkmcnt(0)")
                if last:
                    for (mt, nt) in ops: mf(st, mt, nt)
                else:
                    mf(st, *ops[0])
                    while pend:
                        for x in pend.pop(0): e(x)
                    e(f"s_waitcnt vmcnt({vm})")
                    e("s_barrier")
                    cnt[0] = 0
                    if dodma: pend.extend(dma_pieces(buf))
                    reads((u+1) % S, 0, st ^ 1)
                    for (mt, nt) in ops[1:]: mf(st, mt, nt)
    nmain = max(nk - S, 0)
    r = nmain % S
    if r == 0 and nmain > 0: r = S
    for u in range(r):
        stage(u, True, False, (S-2)*nper)
    if nmain - r > 0:
        e(f"s_mov_b32 s31, {(nmain - r)//S}")
        lab(f"{L}_loop")
        for u in range(r, r + S):
            stage(u, True, False, (S-2)*nper)
        e("s_sub_u32 s31, s31, 1")
        e("s_cmp_lg_u32 s31, 0")
        e(f"s_cbranch_scc1 {L}_loop")
    for u in range(nmain, nk):
        stage(u, False, u == nk-1, max(nk-2-u, 0)*nper)
    e("s_nop 15")
    e("v_and_b32 v4, 31, v0")
    e(f"s_mul_i32 s4, s49, {WM}")
    e("s_add_u32 s4, s4, s28")
    e("v_add_u32 v4, s4, v4")
    e(f"s_mul_i32 s5, s50, {WN}")
    e("v_lshrrev_b32 v5, 5, v0")
    e("s_add_u32 s6, s5, s29")
    wsl, wsh = kaptr('ws')
    def colvalid_begin(nt, h, lbl):
        if N % BN == 0: return
        e(f"s_add_u32 s7, s6, {nt*32+h*16+16}")
        e(f"s_cmp_gt_u32 s7, {N}")
        e(f"s_cbranch_scc1 {lbl}")
    def pack8(dst, a):
        for j in range(4):
            e(f"v_cvt_pk_bf16_f32 v{dst+j}, v{a+2*j}, v{a+2*j+1}")
    def unpack8(dst, src):
        for j in range(4):
            e(f"v_lshlrev_b32 v{dst+2*j}, 16, v{src+j}")
            e(f"v_and_b32 v{dst+2*j+1}, 0xffff0000, v{src+j}")
    import os
    if os.environ.get('NOEPI') == name:
        e("s_endpgm")
    if epi == 'kv':
        srd_off(16, wsl, wsh, WS['k'], 32*MB)
        e("s_lshl_b32 s7, s3, 24")
        e("s_lshr_b32 s4, s6, 7")
        e("s_lshl_b32 s4, s4, 19")
        e("s_add_u32 s7, s7, s4")
        e("s_and_b32 s4, s6, 127")
        e("s_lshl_b32 s4, s4, 1")
        e("s_add_u32 s7, s7, s4")
        e("v_lshlrev_b32 v6, 8, v4")
        e("v_lshl_add_u32 v6, v5, 4, v6")
        e("v_add_u32 v6, s7, v6")
        assert WN <= 128
        k = 0
        for mt in range(MT):
            e(f"s_mov_b32 s7, {mt*32*256}")
            for nt in range(NT):
                for h in range(2):
                    t = 8 + (k % 2) * 4; k += 1
                    pack8(t, acc(mt, nt) + h*8)
                    e(f"buffer_store_dwordx4 {vr(t,4)}, v6, s[16:19], s7 offen offset:{(nt*32+h*16)*2}")
    elif epi in ('oproj', 'final'):
        gi = 2 if epi == 'oproj' else 5
        srd_off(20, wsl, wsh, WS['mod'], 3072*4)
        if epi == 'oproj':
            xl, xh = kaptr('x'); srd(24, xl, xh, 2048*512*2)
            srd_off(16, wsl, wsh, WS['x1'], 2048*512*2)
        else:
            srd_off(24, wsl, wsh, WS['x1'], 2048*512*2)
            ol, oh = kaptr('out'); srd(16, ol, oh, 2048*512*2)
        e("v_lshlrev_b32 v5, 3, v5")
        e("v_add_u32 v5, s6, v5")
        e("v_lshlrev_b32 v7, 2, v5")
        e("v_lshlrev_b32 v6, 9, v4")
        e("v_add_u32 v6, v6, v5")
        e("v_lshlrev_b32 v6, 1, v6")
        e(f"s_mov_b32 s7, {gi*2048}")
        G0 = ACC + MT*NT*16
        X0 = G0 + NT*16
        for nt in range(NT):
            for h in range(2):
                e(f"buffer_load_dwordx4 {vr(G0+(nt*2+h)*8,4)}, v7, s[20:23], s7 offen offset:{(nt*32+h*16)*4}")
                e(f"buffer_load_dwordx4 {vr(G0+(nt*2+h)*8+4,4)}, v7, s[20:23], s7 offen offset:{(nt*32+h*16)*4+16}")
        for mt in range(MT):
            e(f"s_mov_b32 s4, {mt*32*1024}")
            for nt in range(NT):
                for h in range(2):
                    e(f"buffer_load_dwordx4 {vr(X0+((mt*NT+nt)*2+h)*4,4)}, v6, s[24:27], s4 offen offset:{(nt*32+h*16)*2}")
        e("s_waitcnt vmcnt(0)")
        for mt in range(MT):
            e(f"s_mov_b32 s4, {mt*32*1024}")
            for nt in range(NT):
                for h in range(2):
                    a = acc(mt, nt) + h*8
                    xr = X0 + ((mt*NT+nt)*2+h)*4
                    g = G0 + (nt*2+h)*8
                    unpack8(8, xr)
                    for j in range(8):
                        e(f"v_fmac_f32 v{8+j}, v{g+j}, v{a+j}")
                    pack8(xr, 8)
                    e(f"buffer_store_dwordx4 {vr(xr,4)}, v6, s[16:19], s4 offen offset:{(nt*32+h*16)*2}")
        nvx = X0 + MT*NT*8
    elif epi == 'sp':
        bl, bh = kaptr('bsp')
        srd(20, bl, bh, 2048*2)
        srd_off(24, wsl, wsh, WS['z'], 2048*1376*2)
        srd_off(16, wsl, wsh, WS['u'], 2048*704*2)
        e("v_lshlrev_b32 v5, 3, v5")
        e("v_add_u32 v5, s6, v5")
        e("s_mov_b32 s4, 2752")
        e("v_mul_lo_u32 v6, v4, s4")
        e("v_lshl_add_u32 v6, v5, 1, v6")
        e("s_mov_b32 s4, 1408")
        e("v_mul_lo_u32 v7, v4, s4")
        e("v_lshl_add_u32 v7, v5, 1, v7")
        e("v_lshlrev_b32 v8, 1, v4")
        for mt in range(MT):
            e(f"buffer_load_ushort v{16+mt}, v8, s[20:23], 0 offen offset:{mt*64}")
        X0 = ACC + MT*NT*16
        for mt in range(MT):
            e(f"s_mov_b32 s7, {mt*32*2752}")
            for nt in range(NT):
                for h in range(2):
                    e(f"buffer_load_dwordx4 {vr(X0+((mt*NT+nt)*2+h)*4,4)}, v6, s[24:27], s7 offen offset:{(nt*32+h*16)*2}")
        e("s_waitcnt vmcnt(0)")
        for mt in range(MT):
            e(f"v_lshlrev_b32 v{16+mt}, 16, v{16+mt}")
        for nt in range(NT):
            for h in range(2):
                lbl = f"{L}_sk{nt}{h}"
                colvalid_begin(nt, h, lbl)
                for mt in range(MT):
                    a = acc(mt, nt) + h*8
                    xr = X0 + ((mt*NT+nt)*2+h)*4
                    unpack8(8, xr)
                    for j in range(8):
                        e(f"v_add_f32 v{a+j}, v{a+j}, v{16+mt}")
                        e(f"v_mul_f32 v{8+j}, v{8+j}, v{a+j}")
                    pack8(xr, 8)
                    e(f"s_mov_b32 s7, {mt*32*1408}")
                    e(f"buffer_store_dwordx4 {vr(xr,4)}, v7, s[16:19], s7 offen offset:{(nt*32+h*16)*2}")
                if N % BN:
                    e(f"s_branch {lbl}_d")
                    lab(lbl)
                    for j in range(4): e(f"v_mov_b32 v{8+j}, 0")
                    for mt in range(MT):
                        e(f"s_mov_b32 s7, {mt*32*1408}")
                        e(f"buffer_store_dwordx4 v[8:11], v7, s[16:19], s7 offen offset:{(nt*32+h*16)*2}")
                    lab(f"{lbl}_d")
        nvx = X0 + MT*NT*8
    lab(f"{L}_end")
    e("s_endpgm")
    nv = ACC + MT*NT*16
    if epi in ('oproj', 'final', 'sp'): nv = max(nv, nvx)
    lds = S * BUF + (512 if withmod else 0)
    end(name, (ntile,1,1), (64*NW,1,1), lds, nv)
```

```python
from v2_common import *

class LG:
    def __init__(self): self.n = 0
    def issue(self, k=1):
        self.n += k; return self.n
    def wait(self, ticket):
        left = self.n - ticket
        e(f"s_waitcnt lgkmcnt({min(left, 15)})")
    def waitall(self):
        e("s_waitcnt lgkmcnt(0)")

def lnproj_prologue(L, X, QA, WF, MT0, AW, xs_srd, xrow_v, lg, mod_lds, wchunk_dma, after_chunk, nchunks=4):
    T = 20
    e("v_mov_b32 v28, 0"); e("v_mov_b32 v29, 0")
    e("s_mov_b32 s44, 0x3f803f80")
    for i in range(128):
        e(f"v_dot2_f32_bf16 v28, v{X+i}, s44, v28")
        e(f"v_dot2_f32_bf16 v29, v{X+i}, v{X+i}, v29")
    e("v_mov_b32 v30, v28"); e("v_mov_b32 v31, v29")
    e("s_nop 1")
    e("v_permlane32_swap_b32 v28, v30")
    e("v_permlane32_swap_b32 v29, v31")
    e("s_nop 1")
    e("v_add_f32 v28, v28, v30")
    e("v_add_f32 v29, v29, v31")
    e(f"v_mul_f32 v28, 0x{f2u(1/512):08x}, v28")
    e(f"v_mul_f32 v29, 0x{f2u(1/512):08x}, v29")
    e("v_fma_f32 v29, -v28, v28, v29")
    e("v_max_f32 v29, 0, v29")
    e(f"v_add_f32 v29, 0x{f2u(1e-5):08x}, v29")
    e("v_rsq_f32 v29, v29")
    e("s_nop 0")
    e("v_mul_f32 v28, v28, v29")
    e("v_sub_f32 v28, 0, v28")
    import os
    if os.environ.get('ATT_EXIT') == '2': e("s_endpgm")
    e("v_lshlrev_b32 v30, 5, v3")
    e(f"v_add_u32 v30, {mod_lds}, v30")
    mod_lds = 0
    def modreads(s):
        e(f"ds_read_b128 {vr(MT0,4)}, v30 offset:{mod_lds + s*64}")
        e(f"ds_read_b128 {vr(MT0+4,4)}, v30 offset:{mod_lds + s*64 + 16}")
        e(f"ds_read_b128 {vr(MT0+8,4)}, v30 offset:{mod_lds + 2048 + s*64}")
        e(f"ds_read_b128 {vr(MT0+12,4)}, v30 offset:{mod_lds + 2048 + s*64 + 16}")
        return lg.issue(4)
    def hpart(s, half):
        for j in range(2):
            r = X + 4*s + 2*half + j
            a = T + 4*half + 2*j
            m = 4*half + 2*j
            e(f"v_lshlrev_b32 v{a}, 16, v{r}")
            e(f"v_and_b32 v{a+1}, 0xffff0000, v{r}")
            e(f"v_fma_f32 v{a}, v{a}, v29, v28")
            e(f"v_fma_f32 v{a+1}, v{a+1}, v29, v28")
            e(f"v_fma_f32 v{a}, v{a}, v{MT0+m}, v{MT0+8+m}")
            e(f"v_fma_f32 v{a+1}, v{a+1}, v{MT0+m+1}, v{MT0+8+m+1}")
            e(f"v_cvt_pk_bf16_f32 v{r}, v{a}, v{a+1}")
    def wreads(s, dbs):
        base = ((s // 8) % 2) * 32768 + (s % 8) * 4096
        for db in dbs:
            e(f"ds_read_b64_tr_b16 {vr(WF+db*4,2)}, v{AW+db} offset:{base}")
            e(f"ds_read_b64_tr_b16 {vr(WF+db*4+2,2)}, v{AW+db} offset:{base + 1024}")
        return lg.issue(2*len(dbs))
    def mf(s, db):
        c = "0" if s == 0 else vr(QA+db*16,16)
        e(f"v_mfma_f32_32x32x16_bf16 {vr(QA+db*16,16)}, {vr(WF+db*4,4)}, {vr(X+4*s,4)}, {c}")
    after_chunk(-1)
    tm = modreads(0)
    tw01 = wreads(0, [0, 1]); tw23 = wreads(0, [2, 3])
    lg.wait(tm)
    hpart(0, 0); hpart(0, 1)
    tm = modreads(1)
    NS = nchunks * 8
    for s in range(NS):
        lastc = (s % 8 == 7)
        lg.wait(tw01)
        mf(s, 0); mf(s, 1)
        if not lastc: tw01n = wreads(s+1, [0, 1])
        if s + 1 < NS:
            lg.wait(tm)
            hpart(s+1, 0)
        lg.wait(tw23)
        mf(s, 2); mf(s, 3)
        if not lastc: tw23n = wreads(s+1, [2, 3])
        if s + 1 < NS:
            hpart(s+1, 1)
            if s + 2 < NS: tm = modreads(s+2)
        if lastc:
            lg.waitall()
            after_chunk(s // 8)
            if s + 1 < NS:
                tw01n = wreads(s+1, [0, 1]); tw23n = wreads(s+1, [2, 3])
        if s + 1 < NS:
            tw01, tw23 = tw01n, tw23n

def lnproj2(L, QA, R0, AX, AW, lg, norm, dma_slot, nslots_after):
    XR = [R0, R0+4]; XH = [R0+8, R0+12]; WF = [R0+16, R0+32]; MT = [R0+48, R0+64]
    T = 20
    def xread(s):
        e(f"ds_read_b128 {vr(XR[s%2],4)}, v{AX+(s%2)} offset:{((s//2)%4)*16384}")
        return lg.issue(1)
    def modreads(s):
        m = MT[s%2]
        e(f"ds_read_b128 {vr(m,4)}, v30 offset:{s*64}")
        e(f"ds_read_b128 {vr(m+4,4)}, v30 offset:{s*64 + 16}")
        e(f"ds_read_b128 {vr(m+8,4)}, v30 offset:{2048 + s*64}")
        e(f"ds_read_b128 {vr(m+12,4)}, v30 offset:{2048 + s*64 + 16}")
        return lg.issue(4)
    def wreads(s):
        base = ((s//2)%4)*16384 + 8192 + (s%2)*4096
        for db in range(4):
            e(f"ds_read_b64_tr_b16 {vr(WF[s%2]+db*4,2)}, v{AW+db} offset:{base}")
            e(f"ds_read_b64_tr_b16 {vr(WF[s%2]+db*4+2,2)}, v{AW+db} offset:{base + 1024}")
        return lg.issue(8)
    def trans(s):
        o = []
        for j in range(4):
            r = XR[s%2] + j; a = T + 2*j; m = MT[s%2] + 2*j
            o.append(f"v_lshlrev_b32 v{a}, 16, v{r}")
            o.append(f"v_and_b32 v{a+1}, 0xffff0000, v{r}")
            if norm:
                o.append(f"v_fma_f32 v{a}, v{a}, v29, v28")
                o.append(f"v_fma_f32 v{a+1}, v{a+1}, v29, v28")
            o.append(f"v_fma_f32 v{a}, v{a}, v{m}, v{m+8}")
            o.append(f"v_fma_f32 v{a+1}, v{a+1}, v{m+1}, v{m+9}")
            o.append(f"v_cvt_pk_bf16_f32 v{XH[s%2]+j}, v{a}, v{a+1}")
        return o
    def mf(s, db):
        c = "0" if s == 0 else vr(QA+db*16,16)
        e(f"v_mfma_f32_32x32x16_bf16 {vr(QA+db*16,16)}, {vr(WF[s%2]+db*4,4)}, {vr(XH[s%2],4)}, {c}")
    e("s_waitcnt vmcnt(4) lgkmcnt(0)")
    e("s_barrier")
    dma_slot(3)
    xread(0); t0 = modreads(0)
    xread(1); modreads(1)
    wreads(0)
    lg.wait(t0)
    for x in trans(0): e(x)
    for s in range(32):
        t = s // 2
        if s % 2 == 0 and t >= 1:
            nxt2 = t + 2
            ok = nxt2 <= 15 + nslots_after
            if t + 1 <= 15:
                e(f"s_waitcnt vmcnt({4 if ok else 0})")
            if t + 3 <= 15 + nslots_after:
                e("s_barrier")
                dma_slot(t + 3)
            elif t + 1 <= 15:
                e("s_barrier")
        n = 0
        import os
        if os.environ.get('PRO_NOCOMP'): continue
        if s + 2 < 32:
            xread(s+2); modreads(s+2); n += 5
        if s + 1 < 32:
            wreads(s+1); n += 8
        e(f"s_waitcnt lgkmcnt({n})")
        fl = trans(s+1) if s + 1 < 32 else []
        per = (len(fl) + 3) // 4
        for db in range(4):
            mf(s, db)
            for _ in range(per):
                if fl: e(fl.pop(0))

def gen_attn():
    name = "attn_kernel"
    L = "L_attn"
    lg = LG()
    begin(name)
    e("s_cmp_ge_u32 s2, 512")
    e(f"s_cbranch_scc1 {L}_end")
    import os
    if os.environ.get('ATT_EXIT') == '0': e("s_endpgm")
    load_kargs()
    e("s_and_b32 s4, s2, 7")
    e("s_lshr_b32 s5, s2, 3")
    e("s_and_b32 s6, s5, 1")
    e("s_lshr_b32 s7, s5, 5")
    e("s_bfe_u32 s16, s5, 0x40001")
    e("s_lshl_b32 s17, s7, 4")
    e("s_or_b32 s16, s16, s17")
    e("s_xor_b32 s6, s6, s7")
    e("s_and_b32 s17, s16, 7")
    e("s_sub_u32 s18, 15, s17")
    e("s_cmp_eq_u32 s6, 0")
    e("s_cselect_b32 s17, s18, s17")
    import os
    if os.environ.get('ATT_HMAP') == '1':
        e("s_lshr_b32 s16, s16, 3")
        e("s_lshl_b32 s4, s4, 2")
        e("s_add_u32 s16, s16, s4")
    elif os.environ.get('ATT_HMAP') == '2':
        e("s_lshr_b32 s16, s2, 3")
        e("s_and_b32 s16, s16, 31")
    else:
        e("s_lshr_b32 s16, s16, 3")
        e("s_lshl_b32 s16, s16, 3")
        e("s_add_u32 s16, s16, s4")
    e("v_mov_b32 v9, v0")
    e("v_lshrrev_b32 v1, 6, v0")
    e("v_and_b32 v0, 63, v0")
    e("s_nop 0")
    e("v_readfirstlane_b32 s20, v1")
    e("s_waitcnt lgkmcnt(0)")
    wsl, wsh = kaptr('ws')
    srd_off(8, wsl, wsh, WS['k'], 32*MB)
    srd_off(12, wsl, wsh, WS['ctx'], 16*MB)
    srd_off(32, wsl, wsh, WS['xh'], 2048*512*2)
    ql, qh = kaptr('wq'); srd(36, ql, qh, 512*4096*2)
    srd_off(56, wsl, wsh, WS['mod'], 3072*4)
    VK, VV, VW, VM, VL, VREL = 10, 11, 12, 13, 14, 15
    AV, AK, VMC, T = 16, 20, 28, 29
    Q, P, KF, O, S0, S1, MT0 = 32, 64, 80, 112, 176, 208, 240
    QA, R0, VX, AX = 32, 112, 13, 14
    VK4, NEGM, VFL = 248, 64, 28
    MODL = 65536
    e("v_and_b32 v2, 31, v0")
    e("v_lshrrev_b32 v3, 5, v0")
    e("s_lshl_b32 s22, s17, 7")
    e("s_lshl_b32 s23, s20, 5")
    e("s_add_u32 s22, s22, s23")
    e("v_add_u32 v4, s22, v2")
    e("v_lshlrev_b32 v6, 3, v9")
    e("s_mov_b32 s4, 2048")
    e(f"buffer_load_dwordx2 v[{MT0}:{MT0+1}], v6, s[56:59], s4 offen")
    e(f"buffer_load_dwordx2 v[{MT0+2}:{MT0+3}], v6, s[56:59], 0 offen")
    e("v_lshrrev_b32 v6, 4, v0")
    e("v_and_b32 v8, 15, v0")
    e("v_xor_b32 v7, v6, v8")
    e("v_lshlrev_b32 v1, 8, v6")
    for i in range(4):
        e(f"v_xor_b32 v8, {4*i}, v7")
        e(f"v_lshl_add_u32 v{VK4+i}, v8, 4, v1")
    e("v_bfe_u32 v7, v0, 2, 2")
    e("v_xor_b32 v7, v7, v6")
    e("v_and_b32 v8, 3, v0")
    e("v_lshlrev_b32 v7, 6, v7")
    e("v_lshl_add_u32 v7, v8, 4, v7")
    e(f"v_add_u32 v{VV}, v7, v1")
    e("v_lshlrev_b32 v1, 13, v6")
    e(f"v_add_u32 v{VW}, v7, v1")
    e("v_xor_b32 v7, v8, v6")
    e("v_lshrrev_b32 v1, 2, v0")
    e("v_lshlrev_b32 v1, 10, v1")
    e(f"v_lshl_add_u32 v{VX}, v7, 4, v1")
    e("s_lshl_b32 s25, s20, 10")
    e("s_lshl_b32 s44, s20, 11")
    e("s_lshl_b32 s45, s16, 8")
    e("s_lshl_b32 s4, s20, 15")
    e("s_add_u32 s45, s45, s4")
    e("s_lshl_b32 s48, s22, 10")
    e("s_lshl_b32 s21, s16, 19")
    e("s_lshl_b32 s23, s20, 12")
    e("s_add_u32 s24, s21, s23")
    e(f"s_add_u32 s26, s24, 0x{16*MB:x}")
    e("s_lshl_b32 s49, s20, 12")
    e("s_lshl_b32 s27, s17, 1")
    e("s_add_u32 s27, s27, 2")
    if os.environ.get('ATT_FLAT'): e(f"s_mov_b32 s27, {os.environ.get('ATT_FLAT')}")
    def kdma_l(buf):
        o = [[f"s_add_u32 m0, s49, {buf*16384}", "s_nop 0", f"buffer_load_dwordx4 v{VK4}, s[8:11], s24 offen lds"]]
        for i in range(1, 4):
            o.append([f"buffer_load_dwordx4 v{VK4+i}, s[8:11], s24 offen offset:{i*1024} lds"])
        o[-1].append("s_add_u32 s24, s24, 16384")
        return o
    def vdma_l(buf):
        o = [[f"s_add_u32 m0, s49, {32768 + buf*16384}", "s_nop 0", f"buffer_load_dwordx4 v{VV}, s[8:11], s26 offen lds"]]
        for i in range(1, 4):
            o.append([f"buffer_load_dwordx4 v{VV}, s[8:11], s26 offen offset:{i*1024} lds"])
        o[-1].append("s_add_u32 s26, s26, 16384")
        return o
    def kdma(buf):
        for p in kdma_l(buf):
            for x in p: e(x)
    def vdma(buf):
        for p in vdma_l(buf):
            for x in p: e(x)
    def dma_slot(j):
        if j == 16: kdma(0); return
        if j == 17: kdma(1); return
        if j == 18: vdma(0); return
        b = (j % 4) * 16384
        for i in range(2):
            e(f"s_add_u32 m0, s44, {b + i*1024}")
            e(f"s_add_u32 s4, s48, {i*16384 + j*64}")
            if os.environ.get('PRO_NODMA'): e("s_mov_b32 s4, 0x7f000000")
            if os.environ.get('PRO_NOX'): e("s_mov_b32 s4, 0x7f000000")
            e(f"buffer_load_dwordx4 v{VX}, s[32:35], s4 offen lds")
        for i in range(2):
            e(f"s_add_u32 m0, s25, {b + 8192 + i*4096}")
            e(f"s_add_u32 s4, s45, {(j*32 + i*16)*8192}")
            if os.environ.get('PRO_NODMA'): e("s_mov_b32 s4, 0x7f000000")
            if os.environ.get('PRO_NOW'): e("s_mov_b32 s4, 0x7f000000")
            e(f"buffer_load_dwordx4 v{VW}, s[36:39], s4 offen lds")
    for j in range(3): dma_slot(j)
    e("v_bfe_u32 v6, v0, 2, 2")
    e("v_bfe_u32 v8, v0, 4, 1")
    e("v_lshlrev_b32 v8, 5, v8")
    e("v_and_b32 v7, 1, v0")
    e("v_lshl_add_u32 v8, v7, 4, v8")
    e("v_bfe_u32 v7, v0, 1, 1")
    e("v_lshl_add_u32 v8, v7, 3, v8")
    e("v_lshl_add_u32 v7, v3, 3, v6")
    e("v_lshl_add_u32 v7, v7, 8, v8")
    for db in range(4):
        e(f"v_xor_b32 v1, {db}, v6")
        e(f"v_lshl_add_u32 v{AV+db}, v1, 6, v7")
    e("v_xor_b32 v7, v6, v3")
    e("v_lshlrev_b32 v1, 6, v2")
    e("v_add_u32 v1, s44, v1")
    e(f"v_lshl_add_u32 v{AX}, v7, 4, v1")
    e("v_xor_b32 v7, 2, v7")
    e(f"v_lshl_add_u32 v{AX+1}, v7, 4, v1")
    e("v_lshlrev_b32 v30, 5, v3")
    e(f"v_add_u32 v30, {MODL}, v30")
    e("s_waitcnt vmcnt(12)")
    if os.environ.get('ATT_EXIT') == '1': e("s_endpgm")
    if os.environ.get('ATT_EXIT') == '2': e("s_waitcnt vmcnt(0)"); e("s_endpgm")
    e(f"v_add_f32 v{MT0}, 1.0, v{MT0}")
    e(f"v_add_f32 v{MT0+1}, 1.0, v{MT0+1}")
    e(f"v_cvt_pk_bf16_f32 v{MT0}, v{MT0}, v{MT0+1}")
    e(f"v_and_b32 v{MT0+1}, 0xffff0000, v{MT0}")
    e(f"v_lshlrev_b32 v{MT0}, 16, v{MT0}")
    e("v_lshlrev_b32 v6, 3, v9")
    e(f"v_add_u32 v6, {MODL}, v6")
    e(f"ds_write_b64 v6, v[{MT0}:{MT0+1}]")
    e(f"ds_write_b64 v6, v[{MT0+2}:{MT0+3}] offset:2048")
    lnproj2(L, QA, R0, AX, AV, lg, False, dma_slot, 3)
    e("s_nop 15")
    if os.environ.get('ATT_EXIT') == '3': e("s_endpgm")
    csc = (128 ** -0.5) * 1.4426950408889634
    e(f"s_mov_b32 s28, 0x{f2u(csc):08x}")
    for i in range(32):
        e(f"v_mul_f32 v{QA+2*i}, s28, v{QA+2*i}")
        e(f"v_mul_f32 v{QA+2*i+1}, s28, v{QA+2*i+1}")
        e(f"v_cvt_pk_bf16_f32 v{Q+i}, v{QA+2*i}, v{QA+2*i+1}")
    e("v_lshlrev_b32 v6, 2, v3")
    e(f"v_sub_u32 v{VREL}, v4, v6")
    e("v_and_b32 v6, 15, v0")
    e("v_xor_b32 v6, v6, v3")
    e("v_lshlrev_b32 v7, 8, v2")
    for ds in range(8):
        e(f"v_xor_b32 v1, {2*ds}, v6")
        e(f"v_lshl_add_u32 v{AK+ds}, v1, 4, v7")
    e("v_bfe_u32 v6, v0, 2, 2")
    e("v_lshl_add_u32 v7, v3, 2, v6")
    e("v_lshl_add_u32 v7, v7, 8, v8")
    e("v_add_u32 v7, 32768, v7")
    for db in range(4):
        e(f"v_xor_b32 v1, {db}, v6")
        e(f"v_lshl_add_u32 v{AV+db}, v1, 6, v7")
    for i in range(64):
        e(f"v_mov_b32 v{O+i}, 0")
    for i in range(16):
        e(f"v_mov_b32 v{NEGM+i}, 0")
    e(f"v_mov_b32 v{VL}, 0")
    e(f"v_mov_b32 v{VFL}, 0xf149f2ca")
    e(f"s_mov_b32 s31, 0x{f2u(8.0):08x}")
    e("s_mov_b32 s29, 0")
    e("s_sub_u32 s30, s27, 2")
    e("s_mov_b32 s43, 0")
    SB = [S0, S1]
    def kitem(buf, q):
        g = q // 4; ds = (g % 2) * 4 + q % 4
        e(f"ds_read_b128 {vr(KF+(q%8)*4,4)}, v{AK+ds} offset:{buf*16384 + (g//2)*8192}")
        return lg.issue(1)
    def vitem(buf, p):
        t = p // 4; db = p % 4
        e(f"ds_read_b64_tr_b16 {vr(KF+(p%8)*4,2)}, v{AV+db} offset:{buf*16384 + t*4096}")
        e(f"ds_read_b64_tr_b16 {vr(KF+(p%8)*4+2,2)}, v{AV+db} offset:{buf*16384 + t*4096 + 2048}")
        return lg.issue(2)
    def qk_mfma(S, q):
        g = q // 4; ds = (g % 2) * 4 + q % 4; kb = g // 2
        c = vr(NEGM,16) if ds == 0 else vr(S+kb*16,16)
        return f"v_mfma_f32_32x32x16_bf16 {vr(S+kb*16,16)}, {vr(KF+(q%8)*4,4)}, {vr(Q+4*ds,4)}, {c}"
    def pv_mfma(S, p):
        t = p // 4; db = p % 4
        return f"v_mfma_f32_32x32x16_bf16 {vr(O+db*16,16)}, {vr(KF+(p%8)*4,4)}, {vr(S+8*t,4)}, {vr(O+db*16,16)}"
    uid = [0]
    def mask_max(S):
        uid[0] += 1
        lb = f"{L}_nm{uid[0]}"
        o = []
        o.append(("blk", [
            "s_cmp_lt_u32 s43, s30",
            f"s_cbranch_scc1 {lb}",
            f"v_subrev_u32 v{T}, s29, v{VREL}",
            f"v_mov_b32 v{T+1}, 0xf149f2ca"] +
            sum([[f"v_cmp_gt_i32 vcc, {kb*32 + (i//4)*8 + i%4}, v{T}", "s_nop 1",
                  f"v_cndmask_b32 v{S+kb*16+i}, v{S+kb*16+i}, v{T+1}, vcc"] for kb in range(2) for i in range(16)], []) +
            [f"{lb}:", "s_add_u32 s29, s29, 64", "s_add_u32 s43, s43, 1"]))
        o.append(f"v_max3_f32 v{T}, v{S}, v{S+1}, v{S+2}")
        o.append(f"v_max3_f32 v{T+1}, v{S+3}, v{S+4}, v{S+5}")
        for i in range(6, 30, 4):
            o.append(f"v_max3_f32 v{T}, v{T}, v{S+i}, v{S+i+1}")
            o.append(f"v_max3_f32 v{T+1}, v{T+1}, v{S+i+2}, v{S+i+3}")
        o.append(f"v_max3_f32 v{T}, v{T}, v{S+30}, v{S+31}")
        o.append(f"v_max_f32 v{T}, v{T}, v{T+1}")
        o.append(f"v_mov_b32 v{T+1}, v{T}")
        o.append("PAD")
        o.append("PAD")
        o.append(f"v_permlane32_swap_b32 v{T}, v{T+1}")
        o.append("PAD")
        o.append("PAD")
        o.append(f"v_max_f32 v{T}, v{T}, v{T+1}")
        o.append(f"v_cmp_lt_f32 s[40:41], s31, v{T}")
        return o
    def slowpath(S):
        uid[0] += 1
        lb = f"{L}_sp{uid[0]}"
        e("s_cmp_eq_u64 s[40:41], 0")
        e(f"s_cbranch_scc1 {lb}")
        e("s_nop 15")
        e(f"v_max_f32 v{T}, v{T}, v{VFL}")
        e(f"v_exp_f32 v{T+1}, -v{T}")
        e(f"v_mov_b32 v{VFL}, 0")
        e(f"v_mul_f32 v{VL}, v{VL}, v{T+1}")
        for i in range(64):
            e(f"v_mul_f32 v{O+i}, v{O+i}, v{T+1}")
        for i in range(32):
            e(f"v_sub_f32 v{S+i}, v{S+i}, v{T}")
        for i in range(16):
            e(f"v_sub_f32 v{NEGM+i}, v{NEGM+i}, v{T}")
        e("s_nop 1")
        lab(lb)
    def exps(S):
        o = []
        for t in range(4):
            b = S + t*8
            seq = []
            o.append(f"v_exp_f32 v{b}, v{b}")
            for i in range(1, 8):
                o.append(f"v_exp_f32 v{b+i}, v{b+i}")
                o.append(f"v_add_f32 v{VL}, v{VL}, v{b+i-1}")
                if i % 2 == 0:
                    o.append(f"v_cvt_pk_bf16_f32 v{b+(i-2)//2}, v{b+i-2}, v{b+i-1}")
            o.append("PAD")
            o.append(f"v_add_f32 v{VL}, v{VL}, v{b+7}")
            o.append(f"v_cvt_pk_bf16_f32 v{b+3}, v{b+6}, v{b+7}")
        return o
    def emit(x):
        if isinstance(x, tuple):
            for s_ in x[1]:
                if s_.endswith(":"): lab(s_[:-1])
                else: e(s_)
        elif x == "PAD": e("s_nop 0")
        else: e(x)
    def popf(lst, n):
        k = 0
        first = True
        while lst and k < n:
            x = lst.pop(0)
            if x == "PAD" and first:
                first = False
                continue
            first = False
            emit(x); k += 1
    def need(lst, t, S):
        for x in lst:
            if isinstance(x, str) and x.startswith("v_cvt_pk") and f"v{S+8*t+3}," in x: return True
        return False
    e("s_waitcnt vmcnt(8)")
    e("s_barrier")
    tk = [kitem(0, q) for q in range(8)]
    for q in range(16):
        lg.wait(tk[q])
        e(qk_mfma(S0, q))
        if q < 8: tk.append(kitem(0, q+8))
    e("s_waitcnt vmcnt(0)")
    e("s_barrier")
    kdma(0)
    vdma(1)
    tk = [kitem(1, q) for q in range(8)]
    for x in mask_max(S0): emit(x)
    e("s_mov_b64 s[40:41], -1")
    e("s_lshr_b32 s42, s27, 1")
    if os.environ.get('ATT_NOLOOP'): e(f"s_branch {L}_fin")
    if os.environ.get('ATT_STAMP'):
        e("s_memtime s[60:61]"); e("s_memrealtime s[62:63]"); e("s_waitcnt lgkmcnt(0)")
    lab(f"{L}_loop")
    for u in range(2):
        cur, nxt = SB[u], SB[u ^ 1]
        fill = exps(cur)
        mm = mask_max(nxt)
        slowpath(cur)
        def pop(lst, n):
            k = 0
            while lst and k < n:
                x = lst.pop(0)
                if x == "PAD":
                    continue
                emit(x); k += 1
        for q in range(16):
            lg.wait(tk[q])
            e(qk_mfma(nxt, q))
            if q < 8: tk.append(kitem(u ^ 1, q+8))
            else: tk.append(vitem(u, q-8))
            popf(fill, 3)
        tk = tk[16:]
        dm = []
        for p in range(16):
            if p % 4 == 0:
                while len(fill) > 0 and need(fill, p // 4, cur): emit(fill.pop(0))
                if any("v_cvt_pk" in y for y in out[-2:]): e("s_nop 1")
            lg.wait(tk[p])
            e(pv_mfma(cur, p))
            if p < 8: tk.append(vitem(u, p+8))
            elif p == 9:
                e("s_waitcnt vmcnt(0) lgkmcnt(0)")
                e("s_barrier")
                tk.append(kitem(u, 0)); tk.append(kitem(u, 1))
                dm = kdma_l(u ^ 1) + vdma_l(u)
            elif p > 9:
                tk.append(kitem(u, p-8))
                for _ in range(2 if p < 12 else 1):
                    for x in dm.pop(0): e(x)
            if fill: popf(fill, 3)
            if p >= 2 and (not fill or p >= 8): popf(mm, 3 if p < 9 else 2)
        while fill: emit(fill.pop(0))
        while mm: emit(mm.pop(0))
        tk = tk[16:]
    e("s_sub_u32 s42, s42, 1")
    e("s_cmp_lg_u32 s42, 0")
    e(f"s_cbranch_scc1 {L}_loop")
    lab(f"{L}_fin")
    if os.environ.get('ATT_STAMP'):
        e("s_memtime s[96:97]"); e("s_memrealtime s[98:99]"); e("s_waitcnt lgkmcnt(0)")
        e("s_sub_u32 s60, s96, s60"); e("s_sub_u32 s62, s98, s62")
        dl, dh = kaptr('ws')
        srd_off(96, dl, dh, 200*MB, 1 << 20)
        e("v_mov_b32 v20, s60"); e("v_mov_b32 v21, s62"); e("v_mov_b32 v22, s27"); e("s_getreg_b32 s5, hwreg(HW_REG_HW_ID)"); e("s_getreg_b32 s4, hwreg(HW_REG_XCC_ID)"); e("s_lshl_b32 s4, s4, 28"); e("s_and_b32 s5, s5, 0xfffffff"); e("s_or_b32 s5, s5, s4"); e("v_mov_b32 v23, s5")
        e("s_lshl_b32 s4, s2, 6"); e("s_lshl_b32 s5, s20, 4"); e("s_add_u32 s4, s4, s5")
        e("v_mov_b32 v24, 0")
        e("buffer_store_dwordx4 v[20:23], v24, s[96:99], s4 offen")
    e("s_nop 15")
    e(f"v_mov_b32 v{T}, v{VL}")
    e("s_nop 1")
    e(f"v_permlane32_swap_b32 v{T}, v{VL}")
    e("s_nop 1")
    e(f"v_add_f32 v{T}, v{T}, v{VL}")
    e(f"v_rcp_f32 v{T}, v{T}")
    e("v_lshlrev_b32 v5, 13, v4")
    e("v_lshl_add_u32 v5, v3, 4, v5")
    e("s_lshl_b32 s23, s16, 8")
    for db in range(4):
        for h in range(2):
            a = O + db*16 + h*8
            for j in range(8):
                e(f"v_mul_f32 v{a+j}, v{a+j}, v{T}")
            for j in range(4):
                e(f"v_cvt_pk_bf16_f32 v{a+j}, v{a+2*j}, v{a+2*j+1}")
            e(f"buffer_store_dwordx4 {vr(a,4)}, v5, s[12:15], s23 offen offset:{(db*32+h*16)*2}")
    e("s_waitcnt vmcnt(0)")
    lab(f"{L}_end")
    e("s_endpgm")
    end(name, (512,1,1), (256,1,1), 65536 + 4096, 256)
```

```python
import sys, struct
KA = dict(x=0, ckv=8, wq=16, wuk=24, wuv=32, wo=40, bx=48, win=56, wsp=64, bsp=72, wout=80, c=88, wmod=96, out=104, dbg=112, ws=120)
MB = 1 << 20
WS = dict(mod=0, k=20*MB, v=36*MB, ctx=52*MB, x1=68*MB, z=74*MB, z2n=80*MB, u=84*MB, xh=88*MB, st=92*MB)
out = []
def e(s): out.append("    " + s)
def lab(s): out.append(s + ":")
def raw(s): out.append(s)
kernels = []
def begin(name):
    raw(f".globl {name}"); raw(".p2align 8"); raw(f".type {name},@function"); lab(name)
def end(name, grid, block, lds, nv, ns=100):
    kernels.append((name, grid, block, lds, nv, ns))
def srd(d, lo, hi, nbytes):
    e(f"s_mov_b32 s{d}, s{lo}"); e(f"s_mov_b32 s{d+1}, s{hi}")
    e(f"s_mov_b32 s{d+2}, 0x{nbytes:x}"); e(f"s_mov_b32 s{d+3}, 0x00020000")
def srd_off(d, lo, hi, off, nbytes):
    e(f"s_add_u32 s{d}, s{lo}, 0x{off:x}"); e(f"s_addc_u32 s{d+1}, s{hi}, 0")
    e(f"s_mov_b32 s{d+2}, 0x{nbytes:x}"); e(f"s_mov_b32 s{d+3}, 0x00020000")
def vr(a, n): return f"v[{a}:{a+n-1}]"
def f2u(x): return struct.unpack("<I", struct.pack("<f", x))[0]
def kaptr(n):
    o = KA[n] // 4
    return 64 + o, 65 + o
def load_kargs():
    e("s_load_dwordx16 s[64:79], s[0:1], 0")
    e("s_load_dwordx16 s[80:95], s[0:1], 64")
def log2(x):
    assert x & (x - 1) == 0 and x > 0
    return x.bit_length() - 1
def sdiv(dst, src, d, tmp):
    if d & (d - 1) == 0:
        e(f"s_lshr_b32 s{dst}, s{src}, {log2(d)}")
    else:
        e(f"s_mov_b32 s{tmp}, 0x{(1 << 32) // d + 1:x}")
        e(f"s_mul_hi_u32 s{dst}, s{src}, s{tmp}")

def gelu8(a, t):
    for j in range(8):
        e(f"v_mul_f32 v{t+j}, v{a+j}, v{a+j}")
        e(f"v_fma_f32 v{t+j}, v{t+j}, s21, v1") if False else None
    for j in range(8):
        e(f"v_mul_f32 v{t+j}, s21, v{t+j}")
        e(f"v_add_f32 v{t+j}, s20, v{t+j}")
        e(f"v_mul_f32 v{t+j}, v{t+j}, v{a+j}")
        e(f"v_exp_f32 v{t+j}, v{t+j}")
    for j in range(8):
        e(f"v_add_f32 v{t+j}, 1.0, v{t+j}")
        e(f"v_rcp_f32 v{t+j}, v{t+j}")
    e("s_nop 0")
    for j in range(8):
        e(f"v_mul_f32 v{a+j}, v{t+j}, v{a+j}")

def gen_gemm(name, M, N, K, BM, BN, BK, GM, GN, S, A, B, epi, order='mn', withmod=False):
    NW = GM * GN
    nk = (K + BK - 1) // BK
    ks = BK // 16
    nbm, nbn = M // BM, (N + BN - 1) // BN
    ntile = nbm * nbn
    assert ntile % 8 == 0
    WM, WN = BM // GM, BN // GN
    MT, NT = WM // 32, WN // 32
    SW = min(BN, 128)
    RB = SW * 2
    CPS = SW // 32
    AROW = BK * 2
    ABYTES = BM * AROW
    BBYTES = BK * BN * 2
    BUF = ABYTES + BBYTES
    rowsA = 1024 // AROW
    rowsB = 1024 // RB
    nA, nB = BM // rowsA, BBYTES // 1024
    assert nA % NW == 0 and nB % NW == 0, (nA, nB, NW)
    nAi, nBi = nA // NW, nB // NW
    nper = nAi + nBi
    nj = BK // rowsB
    (Aptr, As, Abytes) = A
    (Bptrs, Bs, Bbytes, segN) = B
    L = f"L_{name}"
    begin(name)
    e(f"s_cmp_ge_u32 s2, {ntile}")
    e(f"s_cbranch_scc1 {L}_end")
    load_kargs()
    e("s_and_b32 s4, s2, 7")
    e("s_lshr_b32 s5, s2, 3")
    e(f"s_mul_i32 s4, s4, {ntile//8}")
    e("s_add_u32 s4, s4, s5")
    if order == 'mn':
        sdiv(28, 4, nbn, 5)
        e(f"s_mul_i32 s5, s28, {nbn}")
        e("s_sub_u32 s29, s4, s5")
    else:
        sdiv(29, 4, nbm, 5)
        e(f"s_mul_i32 s5, s29, {nbm}")
        e("s_sub_u32 s28, s4, s5")
    e(f"s_mul_i32 s28, s28, {BM}")
    e(f"s_mul_i32 s29, s29, {BN}")
    e("s_waitcnt lgkmcnt(0)")
    def ptr(spec):
        if spec[0] == 'ka':
            lo, hi = kaptr(spec[1]); return (lo, hi, 0)
        lo, hi = kaptr('ws'); return (lo, hi, WS[spec[1]])
    lo, hi, ex = ptr(Aptr)
    srd_off(8, lo, hi, ex, Abytes)
    if len(Bptrs) > 1:
        e(f"s_lshr_b32 s3, s29, {log2(segN)}")
        e(f"s_and_b32 s29, s29, {segN-1}")
    for si, sp in enumerate(Bptrs):
        lo, hi, ex = ptr(sp)
        if si == 0:
            e(f"s_add_u32 s12, s{lo}, 0x{ex:x}"); e(f"s_addc_u32 s13, s{hi}, 0")
        else:
            e(f"s_add_u32 s4, s{lo}, 0x{ex:x}"); e(f"s_addc_u32 s5, s{hi}, 0")
            e(f"s_cmp_eq_u32 s3, {si}")
            e("s_cselect_b32 s12, s4, s12"); e("s_cselect_b32 s13, s5, s13")
    e(f"s_mov_b32 s14, 0x{Bbytes:x}"); e("s_mov_b32 s15, 0x00020000")
    e("v_mov_b32 v9, v0")
    e("v_lshrrev_b32 v1, 6, v0")
    e("v_and_b32 v0, 63, v0")
    e("s_nop 0")
    e("v_readfirstlane_b32 s30, v1")
    if BK == 32:
        e("v_lshrrev_b32 v2, 2, v0"); e("v_and_b32 v3, 3, v0"); e("v_lshrrev_b32 v4, 4, v0"); e("v_xor_b32 v3, v3, v4")
    else:
        e("v_lshrrev_b32 v2, 3, v0"); e("v_and_b32 v3, 7, v0"); e("v_lshrrev_b32 v4, 4, v0")
        e("s_and_b32 s4, s30, 1"); e("s_lshl_b32 s4, s4, 2"); e("v_or_b32 v4, s4, v4"); e("v_xor_b32 v3, v3, v4")
    e(f"s_mov_b32 s4, {As}")
    e("v_mul_lo_u32 v2, v2, s4")
    e("v_lshl_add_u32 v2, v3, 4, v2")
    if RB == 256:
        e("v_lshrrev_b32 v3, 4, v0"); e("v_bfe_u32 v4, v0, 2, 2"); e("v_xor_b32 v4, v4, v3"); e("v_and_b32 v5, 3, v0")
    else:
        e("v_lshrrev_b32 v3, 3, v0"); e("v_bfe_u32 v4, v0, 2, 1"); e("v_bfe_u32 v5, v0, 4, 1"); e("v_xor_b32 v4, v4, v5"); e("v_and_b32 v5, 3, v0")
    e(f"s_mov_b32 s4, {Bs}")
    e("v_mul_lo_u32 v3, v3, s4")
    e("v_lshl_add_u32 v3, v4, 6, v3")
    e("v_lshl_add_u32 v3, v5, 4, v3")
    SA, SB = 32, 40
    e(f"s_mul_i32 s4, s30, {rowsA}")
    e("s_add_u32 s4, s4, s28")
    e(f"s_mul_i32 s4, s4, {As}")
    for t in range(nAi):
        e(f"s_add_u32 s{SA+t}, s4, {t*NW*rowsA*As}")
    for t in range(nBi):
        e(f"s_add_u32 s4, s30, {NW*t}")
        e(f"s_and_b32 s5, s4, {nj-1}")
        e(f"s_lshr_b32 s4, s4, {log2(nj)}")
        e(f"s_mul_i32 s5, s5, {rowsB*Bs}")
        e(f"s_mul_i32 s4, s4, {SW*2}")
        e("s_add_u32 s4, s4, s5")
        e("s_lshl_b32 s5, s29, 1")
        e(f"s_add_u32 s{SB+t}, s4, s5")
    e("s_lshl_b32 s48, s30, 10")
    sdiv(49, 30, GN, 4)
    e(f"s_mul_i32 s4, s49, {GN}")
    e("s_sub_u32 s50, s30, s4")
    e("v_and_b32 v4, 31, v0")
    e("v_lshrrev_b32 v5, 5, v0")
    if BK == 32: e("v_bfe_u32 v6, v0, 2, 2")
    else: e("v_bfe_u32 v6, v0, 1, 3")
    e("v_xor_b32 v6, v6, v5")
    e(f"s_mul_i32 s4, s49, {WM*AROW}")
    e(f"v_lshlrev_b32 v7, {log2(AROW)}, v4")
    e("v_add_u32 v7, s4, v7")
    for s in range(ks):
        e(f"v_xor_b32 v8, {2*s}, v6")
        e(f"v_lshl_add_u32 v{10+s}, v8, 4, v7")
    e("v_bfe_u32 v4, v0, 2, 2")
    e("v_lshl_add_u32 v8, v5, 3, v4")
    e(f"v_lshlrev_b32 v8, {log2(RB)}, v8")
    e("v_bfe_u32 v6, v0, 4, 1")
    e("v_lshl_add_u32 v8, v6, 5, v8")
    e("v_and_b32 v6, 1, v0")
    e("v_lshl_add_u32 v8, v6, 4, v8")
    e("v_bfe_u32 v6, v0, 1, 1")
    e("v_lshl_add_u32 v8, v6, 3, v8")
    e(f"v_add_u32 v8, {ABYTES}, v8")
    if RB == 256: e("v_mov_b32 v6, v4")
    else: e("v_lshrrev_b32 v6, 1, v4")
    for nt in range(NT):
        e(f"s_mul_i32 s4, s50, {NT}")
        e(f"s_add_u32 s4, s4, {nt}")
        e(f"s_and_b32 s5, s4, {CPS-1}")
        e(f"s_lshr_b32 s4, s4, {log2(CPS)}")
        e(f"s_mul_i32 s4, s4, {BK*RB}")
        e("v_xor_b32 v7, s5, v6")
        e(f"v_lshl_add_u32 v{14+nt}, v7, 6, v8")
        e(f"v_add_u32 v{14+nt}, s4, v{14+nt}")
    NBANK = (S*BUF + 65535) // 65536
    for b in range(1, NBANK):
        for i in range(8):
            if (i < 4 and i < ks) or (i >= 4 and i - 4 < NT):
                e(f"v_add_u32 v{10+8*b+i}, {65536*b}, v{10+i}")
    def ad(reg, off):
        return f"v{reg + 8*(off >> 16)} offset:{off & 65535}"
    FSZ = (MT + NT) * 4
    FB = 10 + 8*NBANK
    ACC = FB + 2 * FSZ
    def acc(mt, nt): return ACC + (mt*NT + nt) * 16
    def fa(st, mt): return FB + st*FSZ + mt*4
    def fb(st, nt): return FB + st*FSZ + MT*4 + nt*4
    def dma_pieces(buf):
        ps = []
        for t in range(nAi):
            ps.append([f"s_add_u32 m0, s48, {buf*BUF + t*NW*1024}",
                       f"s_add_u32 s{SA+t}, s{SA+t}, {BK*2}",
                       f"buffer_load_dwordx4 v2, s[8:11], s{SA+t} offen lds"])
        for t in range(nBi):
            ps.append([f"s_add_u32 m0, s48, {buf*BUF + ABYTES + t*NW*1024}",
                       f"s_add_u32 s{SB+t}, s{SB+t}, {BK*Bs}",
                       f"buffer_load_dwordx4 v3, s[12:15], s{SB+t} offen lds"])
        return ps
    def dma(buf):
        for pc in dma_pieces(buf):
            for x in pc: e(x)
    pend = []
    cnt = [0]
    NMF = ks * MT * NT
    def tick():
        cnt[0] += 1
        while pend and cnt[0] >= 1 + (nper - len(pend)) * (NMF - 1) // nper:
            for x in pend.pop(0): e(x)
    def reads(buf, s, st):
        for mt in range(MT):
            e(f"ds_read_b128 {vr(fa(st,mt),4)}, {ad(10+s, buf*BUF + mt*32*AROW)}")
        for nt in range(NT):
            e(f"ds_read_b64_tr_b16 {vr(fb(st,nt),2)}, {ad(14+nt, buf*BUF + s*16*RB)}")
            e(f"ds_read_b64_tr_b16 {vr(fb(st,nt)+2,2)}, {ad(14+nt, buf*BUF + s*16*RB + 4*RB)}")
    nrd = MT + 2*NT
    import os
    def mf(st, mt, nt):
        if os.environ.get('NOMFMA') == name:
            tick(); return
        e(f"v_mfma_f32_32x32x16_bf16 {vr(acc(mt,nt),16)}, {vr(fb(st,nt),4)}, {vr(fa(st,mt),4)}, {vr(acc(mt,nt),16)}")
        tick()
    for t in range(nAi): e(f"s_sub_u32 s{SA+t}, s{SA+t}, {BK*2}")
    for t in range(nBi): e(f"s_sub_u32 s{SB+t}, s{SB+t}, {BK*Bs}")
    SS = min(S, nk)
    if withmod:
        cl, ch = kaptr('c'); wl, wh = kaptr('wmod'); sl, sh = kaptr('ws')
        srd(16, cl, ch, 1024)
        srd(20, wl, wh, 512*3072*2)
        srd_off(24, sl, sh, WS['mod'], 3072*4)
        T = ACC
        e(f"v_lshlrev_b32 v{T}, 1, v9")
        e(f"buffer_load_ushort v{T+1}, v{T}, s[16:19], 0 offen")
        e("s_mov_b32 s4, 6144")
        e(f"v_mul_lo_u32 v{T}, v9, s4")
        e("s_mul_i32 s4, s2, 24")
        e(f"buffer_load_dwordx4 {vr(T+2,4)}, v{T}, s[20:23], s4 offen")
        e(f"buffer_load_dwordx2 {vr(T+6,2)}, v{T}, s[20:23], s4 offen offset:16")
        xl, xh_ = kaptr('x'); srd(52, xl, xh_, 2048*512*2)
        srd_off(56, sl, sh, WS['xh'], 2048*512*2)
        e("s_lshl_b32 s51, s2, 3")
        e("s_add_u32 s51, s51, s30")
        e("s_lshl_b32 s51, s51, 10")
        e(f"v_lshlrev_b32 v{T+32}, 4, v0")
        e(f"buffer_load_dwordx4 {vr(T+36,4)}, v{T+32}, s[52:55], s51 offen")
    for t in range(SS):
        dma(t)
    if withmod:
        T = ACC
        e(f"s_waitcnt vmcnt({SS*nper})")
        e(f"v_lshlrev_b32 v{T+1}, 16, v{T+1}")
        e(f"v_mul_f32 v{T}, 0xbfb8aa3b, v{T+1}")
        e(f"v_exp_f32 v{T}, v{T}")
        e("s_nop 0")
        e(f"v_add_f32 v{T}, 1.0, v{T}")
        e(f"v_rcp_f32 v{T}, v{T}")
        e("s_nop 0")
        e(f"v_mul_f32 v{T+1}, v{T+1}, v{T}")
        e(f"v_cvt_pk_bf16_f32 v{T+1}, v{T+1}, v{T+1}")
        e(f"v_lshlrev_b32 v{T+1}, 16, v{T+1}")
        P = T + 8
        for j in range(6):
            e(f"v_lshlrev_b32 v{P+2*j}, 16, v{T+2+j}")
            e(f"v_and_b32 v{P+2*j+1}, 0xffff0000, v{T+2+j}")
        for j in range(12):
            e(f"v_mul_f32 v{P+j}, v{P+j}, v{T+1}")
        for dpp in ("row_shr:1", "row_shr:2", "row_shr:4", "row_shr:8", "row_bcast:15 row_mask:0xa", "row_bcast:31 row_mask:0xc"):
            for j in range(12):
                e(f"v_add_f32_dpp v{P+j}, v{P+j}, v{P+j} {dpp}" + (" bound_ctrl:0" if "shr" in dpp else ""))
        e(f"v_mov_b32 v{T}, s48")
        e(f"v_lshrrev_b32 v{T}, 4, v{T}")
        e(f"v_add_u32 v{T}, {S*BUF}, v{T}")
        e("v_cmp_eq_u32 vcc, 63, v0")
        e("s_and_saveexec_b64 s[6:7], vcc")
        for j in range(3):
            e(f"ds_write_b128 v{T}, {vr(P+4*j,4)} offset:{16*j}")
        e("s_mov_b64 exec, s[6:7]")
        XA = T + 40
        def wsum(r):
            for dpp in ("row_shr:1", "row_shr:2", "row_shr:4", "row_shr:8", "row_bcast:15 row_mask:0xa", "row_bcast:31 row_mask:0xc"):
                e("s_nop 1")
                e(f"v_add_f32_dpp v{r}, v{r}, v{r} {dpp}" + (" bound_ctrl:0" if "shr" in dpp else ""))
            e("s_nop 1")
            e(f"v_readlane_b32 s4, v{r}, 63")
            e("s_nop 1")
            e(f"v_mov_b32 v{r}, s4")
        for i in range(4):
            e(f"v_lshlrev_b32 v{XA+2*i}, 16, v{T+36+i}")
            e(f"v_and_b32 v{XA+2*i+1}, 0xffff0000, v{T+36+i}")
        e(f"v_add_f32 v{T+33}, v{XA}, v{XA+1}")
        for i in range(2, 8): e(f"v_add_f32 v{T+33}, v{T+33}, v{XA+i}")
        wsum(T+33)
        e(f"v_mul_f32 v{T+33}, 0x{f2u(1/512):08x}, v{T+33}")
        for i in range(8): e(f"v_sub_f32 v{XA+i}, v{XA+i}, v{T+33}")
        e(f"v_mul_f32 v{T+33}, v{XA}, v{XA}")
        for i in range(1, 8): e(f"v_fmac_f32 v{T+33}, v{XA+i}, v{XA+i}")
        wsum(T+33)
        e(f"v_mul_f32 v{T+33}, 0x{f2u(1/512):08x}, v{T+33}")
        e(f"v_add_f32 v{T+33}, 0x{f2u(1e-5):08x}, v{T+33}")
        e(f"v_rsq_f32 v{T+33}, v{T+33}")
        e("s_nop 0")
        for i in range(8): e(f"v_mul_f32 v{XA+i}, v{XA+i}, v{T+33}")
        for i in range(4): e(f"v_cvt_pk_bf16_f32 v{T+36+i}, v{XA+2*i}, v{XA+2*i+1}")
        e(f"buffer_store_dwordx4 {vr(T+36,4)}, v{T+32}, s[56:59], s51 offen")
        e("s_waitcnt lgkmcnt(0)")
    e(f"s_waitcnt vmcnt({(SS-1)*nper + (1 if withmod else 0)})")
    e("s_barrier")
    if withmod:
        T = ACC
        e("v_cmp_gt_u32 vcc, 12, v9")
        e("s_and_saveexec_b64 s[6:7], vcc")
        e(f"s_cbranch_execz {L}_nomod")
        e(f"v_lshlrev_b32 v{T}, 2, v9")
        e(f"v_add_u32 v{T+9}, {S*BUF}, v{T}")
        for w in range(8):
            e(f"ds_read_b32 v{T+1+w}, v{T+9} offset:{w*64}")
        e("s_waitcnt lgkmcnt(0)")
        for w in range(1, 8):
            e(f"v_add_f32 v{T+1}, v{T+1}, v{T+1+w}")
        e(f"v_cvt_pk_bf16_f32 v{T+1}, v{T+1}, v{T+1}")
        e(f"v_lshlrev_b32 v{T+1}, 16, v{T+1}")
        e("s_mul_i32 s4, s2, 48")
        e(f"buffer_store_dword v{T+1}, v{T}, s[24:27], s4 offen")
        lab(f"{L}_nomod")
        e("s_mov_b64 exec, s[6:7]")
    reads(0, 0, 0)
    for i in range(MT*NT*16):
        e(f"v_mov_b32 v{ACC+i}, 0")
    def stage(u, dodma, last, vm):
        buf = u % S
        for s in range(ks):
            st = s & 1
            ops = [(mt, nt) for mt in range(MT) for nt in range(NT)]
            if s < ks - 1:
                reads(buf, s+1, st ^ 1)
                e(f"s_waitcnt lgkmcnt({nrd})")
                for (mt, nt) in ops: mf(st, mt, nt)
            else:
                e("s_waitcnt lgkmcnt(0)")
                if last:
                    for (mt, nt) in ops: mf(st, mt, nt)
                else:
                    mf(st, *ops[0])
                    while pend:
                        for x in pend.pop(0): e(x)
                    e(f"s_waitcnt vmcnt({vm})")
                    e("s_barrier")
                    cnt[0] = 0
                    if dodma: pend.extend(dma_pieces(buf))
                    reads((u+1) % S, 0, st ^ 1)
                    for (mt, nt) in ops[1:]: mf(st, mt, nt)
    nmain = max(nk - S, 0)
    r = nmain % S
    if r == 0 and nmain > 0: r = S
    for u in range(r):
        stage(u, True, False, (S-2)*nper)
    if nmain - r > 0:
        e(f"s_mov_b32 s31, {(nmain - r)//S}")
        lab(f"{L}_loop")
        for u in range(r, r + S):
            stage(u, True, False, (S-2)*nper)
        e("s_sub_u32 s31, s31, 1")
        e("s_cmp_lg_u32 s31, 0")
        e(f"s_cbranch_scc1 {L}_loop")
    for u in range(nmain, nk):
        stage(u, False, u == nk-1, max(nk-2-u, 0)*nper)
    e("s_nop 15")
    e("v_and_b32 v4, 31, v0")
    e(f"s_mul_i32 s4, s49, {WM}")
    e("s_add_u32 s4, s4, s28")
    e("v_add_u32 v4, s4, v4")
    e(f"s_mul_i32 s5, s50, {WN}")
    e("v_lshrrev_b32 v5, 5, v0")
    e("s_add_u32 s6, s5, s29")
    wsl, wsh = kaptr('ws')
    def colvalid_begin(nt, h, lbl):
        if N % BN == 0: return
        e(f"s_add_u32 s7, s6, {nt*32+h*16+16}")
        e(f"s_cmp_gt_u32 s7, {N}")
        e(f"s_cbranch_scc1 {lbl}")
    def pack8(dst, a):
        for j in range(4):
            e(f"v_cvt_pk_bf16_f32 v{dst+j}, v{a+2*j}, v{a+2*j+1}")
    def unpack8(dst, src):
        for j in range(4):
            e(f"v_lshlrev_b32 v{dst+2*j}, 16, v{src+j}")
            e(f"v_and_b32 v{dst+2*j+1}, 0xffff0000, v{src+j}")
    import os
    if os.environ.get('NOEPI') == name:
        e("s_endpgm")
    if epi == 'kv':
        srd_off(16, wsl, wsh, WS['k'], 32*MB)
        e("s_lshl_b32 s7, s3, 24")
        e("s_lshr_b32 s4, s6, 7")
        e("s_lshl_b32 s4, s4, 19")
        e("s_add_u32 s7, s7, s4")
        e("s_and_b32 s4, s6, 127")
        e("s_lshl_b32 s4, s4, 1")
        e("s_add_u32 s7, s7, s4")
        e("v_lshlrev_b32 v6, 8, v4")
        e("v_lshl_add_u32 v6, v5, 4, v6")
        e("v_add_u32 v6, s7, v6")
        assert WN <= 128
        k = 0
        for mt in range(MT):
            e(f"s_mov_b32 s7, {mt*32*256}")
            for nt in range(NT):
                for h in range(2):
                    t = 8 + (k % 2) * 4; k += 1
                    pack8(t, acc(mt, nt) + h*8)
                    e(f"buffer_store_dwordx4 {vr(t,4)}, v6, s[16:19], s7 offen offset:{(nt*32+h*16)*2} {os.environ.get('KVST','')}")
    elif epi in ('oproj', 'final'):
        gi = 2 if epi == 'oproj' else 5
        srd_off(20, wsl, wsh, WS['mod'], 3072*4)
        if epi == 'oproj':
            xl, xh = kaptr('x'); srd(24, xl, xh, 2048*512*2)
            srd_off(16, wsl, wsh, WS['x1'], 2048*512*2)
        else:
            srd_off(24, wsl, wsh, WS['x1'], 2048*512*2)
            ol, oh = kaptr('out'); srd(16, ol, oh, 2048*512*2)
        e("v_lshlrev_b32 v5, 3, v5")
        e("v_add_u32 v5, s6, v5")
        e("v_lshlrev_b32 v7, 2, v5")
        e("v_lshlrev_b32 v6, 9, v4")
        e("v_add_u32 v6, v6, v5")
        e("v_lshlrev_b32 v6, 1, v6")
        e(f"s_mov_b32 s7, {gi*2048}")
        G0 = ACC + MT*NT*16
        X0 = G0 + NT*16
        for nt in range(NT):
            for h in range(2):
                e(f"buffer_load_dwordx4 {vr(G0+(nt*2+h)*8,4)}, v7, s[20:23], s7 offen offset:{(nt*32+h*16)*4}")
                e(f"buffer_load_dwordx4 {vr(G0+(nt*2+h)*8+4,4)}, v7, s[20:23], s7 offen offset:{(nt*32+h*16)*4+16}")
        for mt in range(MT):
            e(f"s_mov_b32 s4, {mt*32*1024}")
            for nt in range(NT):
                for h in range(2):
                    e(f"buffer_load_dwordx4 {vr(X0+((mt*NT+nt)*2+h)*4,4)}, v6, s[24:27], s4 offen offset:{(nt*32+h*16)*2}")
        e("s_waitcnt vmcnt(0)")
        for mt in range(MT):
            e(f"s_mov_b32 s4, {mt*32*1024}")
            for nt in range(NT):
                for h in range(2):
                    a = acc(mt, nt) + h*8
                    xr = X0 + ((mt*NT+nt)*2+h)*4
                    g = G0 + (nt*2+h)*8
                    unpack8(8, xr)
                    for j in range(8):
                        e(f"v_fmac_f32 v{8+j}, v{g+j}, v{a+j}")
                    pack8(xr, 8)
                    e(f"buffer_store_dwordx4 {vr(xr,4)}, v6, s[16:19], s4 offen offset:{(nt*32+h*16)*2}")
        nvx = X0 + MT*NT*8
    elif epi == 'sp':
        bl, bh = kaptr('bsp')
        srd(20, bl, bh, 2048*2)
        srd_off(24, wsl, wsh, WS['z'], 2048*1376*2)
        srd_off(16, wsl, wsh, WS['u'], 2048*704*2)
        e("v_lshlrev_b32 v5, 3, v5")
        e("v_add_u32 v5, s6, v5")
        e("s_mov_b32 s4, 2752")
        e("v_mul_lo_u32 v6, v4, s4")
        e("v_lshl_add_u32 v6, v5, 1, v6")
        e("s_mov_b32 s4, 1408")
        e("v_mul_lo_u32 v7, v4, s4")
        e("v_lshl_add_u32 v7, v5, 1, v7")
        e("v_lshlrev_b32 v8, 1, v4")
        for mt in range(MT):
            e(f"buffer_load_ushort v{16+mt}, v8, s[20:23], 0 offen offset:{mt*64}")
        X0 = ACC + MT*NT*16
        for mt in range(MT):
            e(f"s_mov_b32 s7, {mt*32*2752}")
            for nt in range(NT):
                for h in range(2):
                    e(f"buffer_load_dwordx4 {vr(X0+((mt*NT+nt)*2+h)*4,4)}, v6, s[24:27], s7 offen offset:{(nt*32+h*16)*2}")
        e("s_waitcnt vmcnt(0)")
        for mt in range(MT):
            e(f"v_lshlrev_b32 v{16+mt}, 16, v{16+mt}")
        for nt in range(NT):
            for h in range(2):
                lbl = f"{L}_sk{nt}{h}"
                colvalid_begin(nt, h, lbl)
                for mt in range(MT):
                    a = acc(mt, nt) + h*8
                    xr = X0 + ((mt*NT+nt)*2+h)*4
                    unpack8(8, xr)
                    for j in range(8):
                        e(f"v_add_f32 v{a+j}, v{a+j}, v{16+mt}")
                        e(f"v_mul_f32 v{8+j}, v{8+j}, v{a+j}")
                    pack8(xr, 8)
                    e(f"s_mov_b32 s7, {mt*32*1408}")
                    e(f"buffer_store_dwordx4 {vr(xr,4)}, v7, s[16:19], s7 offen offset:{(nt*32+h*16)*2}")
                if N % BN:
                    e(f"s_branch {lbl}_d")
                    lab(lbl)
                    for j in range(4): e(f"v_mov_b32 v{8+j}, 0")
                    for mt in range(MT):
                        e(f"s_mov_b32 s7, {mt*32*1408}")
                        e(f"buffer_store_dwordx4 v[8:11], v7, s[16:19], s7 offen offset:{(nt*32+h*16)*2}")
                    lab(f"{lbl}_d")
        nvx = X0 + MT*NT*8
    lab(f"{L}_end")
    e("s_endpgm")
    nv = ACC + MT*NT*16
    if epi in ('oproj', 'final', 'sp'): nv = max(nv, nvx)
    lds = S * BUF + (512 if withmod else 0)
    end(name, (ntile,1,1), (64*NW,1,1), lds, nv)
```

```python
from v2_common import *

class LG:
    def __init__(self): self.n = 0
    def issue(self, k=1):
        self.n += k; return self.n
    def wait(self, ticket):
        left = self.n - ticket
        e(f"s_waitcnt lgkmcnt({min(left, 15)})")
    def waitall(self):
        e("s_waitcnt lgkmcnt(0)")

def lnproj_prologue(L, X, QA, WF, MT0, AW, xs_srd, xrow_v, lg, mod_lds, wchunk_dma, after_chunk, nchunks=4):
    T = 20
    e("v_mov_b32 v28, 0"); e("v_mov_b32 v29, 0")
    e("s_mov_b32 s44, 0x3f803f80")
    for i in range(128):
        e(f"v_dot2_f32_bf16 v28, v{X+i}, s44, v28")
        e(f"v_dot2_f32_bf16 v29, v{X+i}, v{X+i}, v29")
    e("v_mov_b32 v30, v28"); e("v_mov_b32 v31, v29")
    e("s_nop 1")
    e("v_permlane32_swap_b32 v28, v30")
    e("v_permlane32_swap_b32 v29, v31")
    e("s_nop 1")
    e("v_add_f32 v28, v28, v30")
    e("v_add_f32 v29, v29, v31")
    e(f"v_mul_f32 v28, 0x{f2u(1/512):08x}, v28")
    e(f"v_mul_f32 v29, 0x{f2u(1/512):08x}, v29")
    e("v_fma_f32 v29, -v28, v28, v29")
    e("v_max_f32 v29, 0, v29")
    e(f"v_add_f32 v29, 0x{f2u(1e-5):08x}, v29")
    e("v_rsq_f32 v29, v29")
    e("s_nop 0")
    e("v_mul_f32 v28, v28, v29")
    e("v_sub_f32 v28, 0, v28")
    import os
    if os.environ.get('ATT_EXIT') == '2': e("s_endpgm")
    e("v_lshlrev_b32 v30, 5, v3")
    e(f"v_add_u32 v30, {mod_lds}, v30")
    mod_lds = 0
    def modreads(s):
        e(f"ds_read_b128 {vr(MT0,4)}, v30 offset:{mod_lds + s*64}")
        e(f"ds_read_b128 {vr(MT0+4,4)}, v30 offset:{mod_lds + s*64 + 16}")
        e(f"ds_read_b128 {vr(MT0+8,4)}, v30 offset:{mod_lds + 2048 + s*64}")
        e(f"ds_read_b128 {vr(MT0+12,4)}, v30 offset:{mod_lds + 2048 + s*64 + 16}")
        return lg.issue(4)
    def hpart(s, half):
        for j in range(2):
            r = X + 4*s + 2*half + j
            a = T + 4*half + 2*j
            m = 4*half + 2*j
            e(f"v_lshlrev_b32 v{a}, 16, v{r}")
            e(f"v_and_b32 v{a+1}, 0xffff0000, v{r}")
            e(f"v_fma_f32 v{a}, v{a}, v29, v28")
            e(f"v_fma_f32 v{a+1}, v{a+1}, v29, v28")
            e(f"v_fma_f32 v{a}, v{a}, v{MT0+m}, v{MT0+8+m}")
            e(f"v_fma_f32 v{a+1}, v{a+1}, v{MT0+m+1}, v{MT0+8+m+1}")
            e(f"v_cvt_pk_bf16_f32 v{r}, v{a}, v{a+1}")
    def wreads(s, dbs):
        base = ((s // 8) % 2) * 32768 + (s % 8) * 4096
        for db in dbs:
            e(f"ds_read_b64_tr_b16 {vr(WF+db*4,2)}, v{AW+db} offset:{base}")
            e(f"ds_read_b64_tr_b16 {vr(WF+db*4+2,2)}, v{AW+db} offset:{base + 1024}")
        return lg.issue(2*len(dbs))
    def mf(s, db):
        c = "0" if s == 0 else vr(QA+db*16,16)
        e(f"v_mfma_f32_32x32x16_bf16 {vr(QA+db*16,16)}, {vr(WF+db*4,4)}, {vr(X+4*s,4)}, {c}")
    after_chunk(-1)
    tm = modreads(0)
    tw01 = wreads(0, [0, 1]); tw23 = wreads(0, [2, 3])
    lg.wait(tm)
    hpart(0, 0); hpart(0, 1)
    tm = modreads(1)
    NS = nchunks * 8
    for s in range(NS):
        lastc = (s % 8 == 7)
        lg.wait(tw01)
        mf(s, 0); mf(s, 1)
        if not lastc: tw01n = wreads(s+1, [0, 1])
        if s + 1 < NS:
            lg.wait(tm)
            hpart(s+1, 0)
        lg.wait(tw23)
        mf(s, 2); mf(s, 3)
        if not lastc: tw23n = wreads(s+1, [2, 3])
        if s + 1 < NS:
            hpart(s+1, 1)
            if s + 2 < NS: tm = modreads(s+2)
        if lastc:
            lg.waitall()
            after_chunk(s // 8)
            if s + 1 < NS:
                tw01n = wreads(s+1, [0, 1]); tw23n = wreads(s+1, [2, 3])
        if s + 1 < NS:
            tw01, tw23 = tw01n, tw23n

def lnproj2(L, QA, R0, AX, AW, lg, norm, dma_slot, nslots_after):
    XR = [R0, R0+4]; XH = [R0+8, R0+12]; WF = [R0+16, R0+32]; MT = [R0+48, R0+64]
    T = 20
    def xread(s):
        e(f"ds_read_b128 {vr(XR[s%2],4)}, v{AX+(s%2)} offset:{((s//2)%4)*16384}")
        return lg.issue(1)
    def modreads(s):
        m = MT[s%2]
        e(f"ds_read_b128 {vr(m,4)}, v30 offset:{s*64}")
        e(f"ds_read_b128 {vr(m+4,4)}, v30 offset:{s*64 + 16}")
        e(f"ds_read_b128 {vr(m+8,4)}, v30 offset:{2048 + s*64}")
        e(f"ds_read_b128 {vr(m+12,4)}, v30 offset:{2048 + s*64 + 16}")
        return lg.issue(4)
    def wreads(s):
        base = ((s//2)%4)*16384 + 8192 + (s%2)*4096
        for db in range(4):
            e(f"ds_read_b64_tr_b16 {vr(WF[s%2]+db*4,2)}, v{AW+db} offset:{base}")
            e(f"ds_read_b64_tr_b16 {vr(WF[s%2]+db*4+2,2)}, v{AW+db} offset:{base + 1024}")
        return lg.issue(8)
    def trans(s):
        o = []
        for j in range(4):
            r = XR[s%2] + j; a = T + 2*j; m = MT[s%2] + 2*j
            o.append(f"v_lshlrev_b32 v{a}, 16, v{r}")
            o.append(f"v_and_b32 v{a+1}, 0xffff0000, v{r}")
            if norm:
                o.append(f"v_fma_f32 v{a}, v{a}, v29, v28")
                o.append(f"v_fma_f32 v{a+1}, v{a+1}, v29, v28")
            o.append(f"v_fma_f32 v{a}, v{a}, v{m}, v{m+8}")
            o.append(f"v_fma_f32 v{a+1}, v{a+1}, v{m+1}, v{m+9}")
            o.append(f"v_cvt_pk_bf16_f32 v{XH[s%2]+j}, v{a}, v{a+1}")
        return o
    def mf(s, db):
        c = "0" if s == 0 else vr(QA+db*16,16)
        e(f"v_mfma_f32_32x32x16_bf16 {vr(QA+db*16,16)}, {vr(WF[s%2]+db*4,4)}, {vr(XH[s%2],4)}, {c}")
    e("s_waitcnt vmcnt(4) lgkmcnt(0)")
    e("s_barrier")
    dma_slot(3)
    xread(0); t0 = modreads(0)
    xread(1); modreads(1)
    wreads(0)
    lg.wait(t0)
    for x in trans(0): e(x)
    for s in range(32):
        t = s // 2
        if s % 2 == 0 and t >= 1:
            nxt2 = t + 2
            ok = nxt2 <= 15 + nslots_after
            if t + 1 <= 15:
                e(f"s_waitcnt vmcnt({4 if ok else 0})")
            if t + 3 <= 15 + nslots_after:
                e("s_barrier")
                dma_slot(t + 3)
            elif t + 1 <= 15:
                e("s_barrier")
        n = 0
        import os
        if os.environ.get('PRO_NOCOMP'): continue
        if s + 2 < 32:
            xread(s+2); modreads(s+2); n += 5
        if s + 1 < 32:
            wreads(s+1); n += 8
        e(f"s_waitcnt lgkmcnt({n})")
        fl = trans(s+1) if s + 1 < 32 else []
        per = (len(fl) + 3) // 4
        for db in range(4):
            mf(s, db)
            for _ in range(per):
                if fl: e(fl.pop(0))

def gen_attn():
    name = "attn_kernel"
    L = "L_attn"
    lg = LG()
    begin(name)
    e("s_cmp_ge_u32 s2, 512")
    e(f"s_cbranch_scc1 {L}_end")
    import os
    if os.environ.get('ATT_EXIT') == '0': e("s_endpgm")
    load_kargs()
    e("s_and_b32 s4, s2, 7")
    e("s_lshr_b32 s5, s2, 3")
    e("s_and_b32 s6, s5, 1")
    e("s_lshr_b32 s7, s5, 5")
    e("s_bfe_u32 s16, s5, 0x40001")
    e("s_lshl_b32 s17, s7, 4")
    e("s_or_b32 s16, s16, s17")
    e("s_xor_b32 s6, s6, s7")
    e("s_and_b32 s17, s16, 7")
    e("s_sub_u32 s18, 15, s17")
    e("s_cmp_eq_u32 s6, 0")
    e("s_cselect_b32 s17, s18, s17")
    import os
    if os.environ.get('ATT_HMAP') == '1':
        e("s_lshr_b32 s16, s16, 3")
        e("s_lshl_b32 s4, s4, 2")
        e("s_add_u32 s16, s16, s4")
    elif os.environ.get('ATT_HMAP') == '2':
        e("s_lshr_b32 s16, s2, 3")
        e("s_and_b32 s16, s16, 31")
    else:
        e("s_lshr_b32 s16, s16, 3")
        e("s_lshl_b32 s16, s16, 3")
        e("s_add_u32 s16, s16, s4")
    e("v_mov_b32 v9, v0")
    e("v_lshrrev_b32 v1, 6, v0")
    e("v_and_b32 v0, 63, v0")
    e("s_nop 0")
    e("v_readfirstlane_b32 s20, v1")
    e("s_waitcnt lgkmcnt(0)")
    wsl, wsh = kaptr('ws')
    srd_off(8, wsl, wsh, WS['k'], 32*MB)
    srd_off(12, wsl, wsh, WS['ctx'], 16*MB)
    srd_off(32, wsl, wsh, WS['xh'], 2048*512*2)
    ql, qh = kaptr('wq'); srd(36, ql, qh, 512*4096*2)
    srd_off(56, wsl, wsh, WS['mod'], 3072*4)
    VK, VV, VW, VM, VL, VREL = 10, 11, 12, 13, 14, 15
    AV, AK, VMC, T = 16, 20, 28, 29
    Q, P, KF, O, S0, S1, MT0 = 32, 64, 80, 112, 176, 208, 240
    QA, R0, VX, AX = 32, 112, 13, 14
    VK4, NEGM, VFL = 248, 64, 28
    MODL = 65536
    e("v_and_b32 v2, 31, v0")
    e("v_lshrrev_b32 v3, 5, v0")
    e("s_lshl_b32 s22, s17, 7")
    e("s_lshl_b32 s23, s20, 5")
    e("s_add_u32 s22, s22, s23")
    e("v_add_u32 v4, s22, v2")
    e("v_lshlrev_b32 v6, 3, v9")
    e("s_mov_b32 s4, 2048")
    e(f"buffer_load_dwordx2 v[{MT0}:{MT0+1}], v6, s[56:59], s4 offen")
    e(f"buffer_load_dwordx2 v[{MT0+2}:{MT0+3}], v6, s[56:59], 0 offen")
    e("v_lshrrev_b32 v6, 4, v0")
    e("v_and_b32 v8, 15, v0")
    e("v_xor_b32 v7, v6, v8")
    e("v_lshlrev_b32 v1, 8, v6")
    for i in range(4):
        e(f"v_xor_b32 v8, {4*i}, v7")
        e(f"v_lshl_add_u32 v{VK4+i}, v8, 4, v1")
    e("v_bfe_u32 v7, v0, 2, 2")
    e("v_xor_b32 v7, v7, v6")
    e("v_and_b32 v8, 3, v0")
    e("v_lshlrev_b32 v7, 6, v7")
    e("v_lshl_add_u32 v7, v8, 4, v7")
    e(f"v_add_u32 v{VV}, v7, v1")
    e("v_lshlrev_b32 v1, 13, v6")
    e(f"v_add_u32 v{VW}, v7, v1")
    e("v_xor_b32 v7, v8, v6")
    e("v_lshrrev_b32 v1, 2, v0")
    e("v_lshlrev_b32 v1, 10, v1")
    e(f"v_lshl_add_u32 v{VX}, v7, 4, v1")
    e("s_lshl_b32 s25, s20, 10")
    e("s_lshl_b32 s44, s20, 11")
    e("s_lshl_b32 s45, s16, 8")
    e("s_lshl_b32 s4, s20, 15")
    e("s_add_u32 s45, s45, s4")
    e("s_lshl_b32 s48, s22, 10")
    e("s_lshl_b32 s21, s16, 19")
    e("s_lshl_b32 s23, s20, 12")
    e("s_add_u32 s24, s21, s23")
    e(f"s_add_u32 s26, s24, 0x{16*MB:x}")
    e("s_lshl_b32 s49, s20, 12")
    e("s_lshl_b32 s27, s17, 1")
    e("s_add_u32 s27, s27, 2")
    if os.environ.get('ATT_FLAT'): e(f"s_mov_b32 s27, {os.environ.get('ATT_FLAT')}")
    def kdma_l(buf):
        o = [[f"s_add_u32 m0, s49, {buf*16384}", "s_nop 0", f"buffer_load_dwordx4 v{VK4}, s[8:11], s24 offen lds"]]
        for i in range(1, 4):
            o.append([f"buffer_load_dwordx4 v{VK4+i}, s[8:11], s24 offen offset:{i*1024} lds"])
        o[-1].append("s_add_u32 s24, s24, 16384")
        return o
    def vdma_l(buf):
        o = [[f"s_add_u32 m0, s49, {32768 + buf*16384}", "s_nop 0", f"buffer_load_dwordx4 v{VV}, s[8:11], s26 offen lds"]]
        for i in range(1, 4):
            o.append([f"buffer_load_dwordx4 v{VV}, s[8:11], s26 offen offset:{i*1024} lds"])
        o[-1].append("s_add_u32 s26, s26, 16384")
        return o
    def kdma(buf):
        for p in kdma_l(buf):
            for x in p: e(x)
    def vdma(buf):
        for p in vdma_l(buf):
            for x in p: e(x)
    def dma_slot(j):
        if j == 16: kdma(0); return
        if j == 17: kdma(1); return
        if j == 18: vdma(0); return
        b = (j % 4) * 16384
        for i in range(2):
            e(f"s_add_u32 m0, s44, {b + i*1024}")
            e(f"s_add_u32 s4, s48, {i*16384 + j*64}")
            if os.environ.get('PRO_NODMA'): e("s_mov_b32 s4, 0x7f000000")
            if os.environ.get('PRO_NOX'): e("s_mov_b32 s4, 0x7f000000")
            e(f"buffer_load_dwordx4 v{VX}, s[32:35], s4 offen lds")
        for i in range(2):
            e(f"s_add_u32 m0, s25, {b + 8192 + i*4096}")
            e(f"s_add_u32 s4, s45, {(j*32 + i*16)*8192}")
            if os.environ.get('PRO_NODMA'): e("s_mov_b32 s4, 0x7f000000")
            if os.environ.get('PRO_NOW'): e("s_mov_b32 s4, 0x7f000000")
            e(f"buffer_load_dwordx4 v{VW}, s[36:39], s4 offen lds")
    for j in range(3): dma_slot(j)
    e("v_bfe_u32 v6, v0, 2, 2")
    e("v_bfe_u32 v8, v0, 4, 1")
    e("v_lshlrev_b32 v8, 5, v8")
    e("v_and_b32 v7, 1, v0")
    e("v_lshl_add_u32 v8, v7, 4, v8")
    e("v_bfe_u32 v7, v0, 1, 1")
    e("v_lshl_add_u32 v8, v7, 3, v8")
    e("v_lshl_add_u32 v7, v3, 3, v6")
    e("v_lshl_add_u32 v7, v7, 8, v8")
    for db in range(4):
        e(f"v_xor_b32 v1, {db}, v6")
        e(f"v_lshl_add_u32 v{AV+db}, v1, 6, v7")
    e("v_xor_b32 v7, v6, v3")
    e("v_lshlrev_b32 v1, 6, v2")
    e("v_add_u32 v1, s44, v1")
    e(f"v_lshl_add_u32 v{AX}, v7, 4, v1")
    e("v_xor_b32 v7, 2, v7")
    e(f"v_lshl_add_u32 v{AX+1}, v7, 4, v1")
    e("v_lshlrev_b32 v30, 5, v3")
    e(f"v_add_u32 v30, {MODL}, v30")
    e("s_waitcnt vmcnt(12)")
    if os.environ.get('ATT_EXIT') == '1': e("s_endpgm")
    if os.environ.get('ATT_EXIT') == '2': e("s_waitcnt vmcnt(0)"); e("s_endpgm")
    e(f"v_add_f32 v{MT0}, 1.0, v{MT0}")
    e(f"v_add_f32 v{MT0+1}, 1.0, v{MT0+1}")
    e(f"v_cvt_pk_bf16_f32 v{MT0}, v{MT0}, v{MT0+1}")
    e(f"v_and_b32 v{MT0+1}, 0xffff0000, v{MT0}")
    e(f"v_lshlrev_b32 v{MT0}, 16, v{MT0}")
    e("v_lshlrev_b32 v6, 3, v9")
    e(f"v_add_u32 v6, {MODL}, v6")
    e(f"ds_write_b64 v6, v[{MT0}:{MT0+1}]")
    e(f"ds_write_b64 v6, v[{MT0+2}:{MT0+3}] offset:2048")
    lnproj2(L, QA, R0, AX, AV, lg, False, dma_slot, 3)
    e("s_nop 15")
    if os.environ.get('ATT_EXIT') == '3': e("s_endpgm")
    csc = (128 ** -0.5) * 1.4426950408889634
    e(f"s_mov_b32 s28, 0x{f2u(csc):08x}")
    for i in range(32):
        e(f"v_mul_f32 v{QA+2*i}, s28, v{QA+2*i}")
        e(f"v_mul_f32 v{QA+2*i+1}, s28, v{QA+2*i+1}")
        e(f"v_cvt_pk_bf16_f32 v{Q+i}, v{QA+2*i}, v{QA+2*i+1}")
    e("v_lshlrev_b32 v6, 2, v3")
    e(f"v_sub_u32 v{VREL}, v4, v6")
    e("v_and_b32 v6, 15, v0")
    e("v_xor_b32 v6, v6, v3")
    e("v_lshlrev_b32 v7, 8, v2")
    for ds in range(8):
        e(f"v_xor_b32 v1, {2*ds}, v6")
        e(f"v_lshl_add_u32 v{AK+ds}, v1, 4, v7")
    e("v_bfe_u32 v6, v0, 2, 2")
    e("v_lshl_add_u32 v7, v3, 2, v6")
    e("v_lshl_add_u32 v7, v7, 8, v8")
    e("v_add_u32 v7, 32768, v7")
    for db in range(4):
        e(f"v_xor_b32 v1, {db}, v6")
        e(f"v_lshl_add_u32 v{AV+db}, v1, 6, v7")
    for i in range(64):
        e(f"v_mov_b32 v{O+i}, 0")
    for i in range(16):
        e(f"v_mov_b32 v{NEGM+i}, 0")
    e(f"v_mov_b32 v{VL}, 0")
    e(f"v_mov_b32 v{VFL}, 0xf149f2ca")
    e(f"s_mov_b32 s31, 0x{f2u(8.0):08x}")
    e("s_mov_b32 s29, 0")
    e("s_sub_u32 s30, s27, 2")
    e("s_mov_b32 s43, 0")
    SB = [S0, S1]
    def kitem(buf, q):
        if os.environ.get('ATT_NOLDS'): return lg.issue(0)
        g = q // 4; ds = (g % 2) * 4 + q % 4
        e(f"ds_read_b128 {vr(KF+(q%8)*4,4)}, v{AK+ds} offset:{buf*16384 + (g//2)*8192}")
        return lg.issue(1)
    def vitem(buf, p):
        if os.environ.get('ATT_NOLDS'): return lg.issue(0)
        t = p // 4; db = p % 4
        e(f"ds_read_b64_tr_b16 {vr(KF+(p%8)*4,2)}, v{AV+db} offset:{buf*16384 + t*4096}")
        e(f"ds_read_b64_tr_b16 {vr(KF+(p%8)*4+2,2)}, v{AV+db} offset:{buf*16384 + t*4096 + 2048}")
        return lg.issue(2)
    def qk_mfma(S, q):
        g = q // 4; ds = (g % 2) * 4 + q % 4; kb = g // 2
        c = vr(NEGM,16) if ds == 0 else vr(S+kb*16,16)
        return f"v_mfma_f32_32x32x16_bf16 {vr(S+kb*16,16)}, {vr(KF+(q%8)*4,4)}, {vr(Q+4*ds,4)}, {c}"
    def pv_mfma(S, p):
        t = p // 4; db = p % 4
        return f"v_mfma_f32_32x32x16_bf16 {vr(O+db*16,16)}, {vr(KF+(p%8)*4,4)}, {vr(S+8*t,4)}, {vr(O+db*16,16)}"
    uid = [0]
    def mask_max(S):
        uid[0] += 1
        lb = f"{L}_nm{uid[0]}"
        o = []
        o.append(("blk", [
            "s_cmp_lt_u32 s43, s30",
            f"s_cbranch_scc1 {lb}",
            f"v_subrev_u32 v{T}, s29, v{VREL}",
            f"v_mov_b32 v{T+1}, 0xf149f2ca"] +
            sum([[f"v_cmp_gt_i32 vcc, {kb*32 + (i//4)*8 + i%4}, v{T}", "s_nop 1",
                  f"v_cndmask_b32 v{S+kb*16+i}, v{S+kb*16+i}, v{T+1}, vcc"] for kb in range(2) for i in range(16)], []) +
            [f"{lb}:", "s_add_u32 s29, s29, 64", "s_add_u32 s43, s43, 1"]))
        o.append(f"v_max3_f32 v{T}, v{S}, v{S+1}, v{S+2}")
        o.append(f"v_max3_f32 v{T+1}, v{S+3}, v{S+4}, v{S+5}")
        for i in range(6, 30, 4):
            o.append(f"v_max3_f32 v{T}, v{T}, v{S+i}, v{S+i+1}")
            o.append(f"v_max3_f32 v{T+1}, v{T+1}, v{S+i+2}, v{S+i+3}")
        o.append(f"v_max3_f32 v{T}, v{T}, v{S+30}, v{S+31}")
        o.append(f"v_max_f32 v{T}, v{T}, v{T+1}")
        o.append(f"v_mov_b32 v{T+1}, v{T}")
        o.append("PAD")
        o.append("PAD")
        o.append(f"v_permlane32_swap_b32 v{T}, v{T+1}")
        o.append("PAD")
        o.append("PAD")
        o.append(f"v_max_f32 v{T}, v{T}, v{T+1}")
        o.append(f"v_cmp_lt_f32 s[40:41], s31, v{T}")
        return o
    def slowpath(S):
        uid[0] += 1
        lb = f"{L}_sp{uid[0]}"
        e("s_cmp_eq_u64 s[40:41], 0")
        e(f"s_cbranch_scc1 {lb}")
        e("s_nop 15")
        e(f"v_max_f32 v{T}, v{T}, v{VFL}")
        e(f"v_exp_f32 v{T+1}, -v{T}")
        e(f"v_mov_b32 v{VFL}, 0")
        e(f"v_mul_f32 v{VL}, v{VL}, v{T+1}")
        for i in range(64):
            e(f"v_mul_f32 v{O+i}, v{O+i}, v{T+1}")
        for i in range(32):
            e(f"v_sub_f32 v{S+i}, v{S+i}, v{T}")
        for i in range(16):
            e(f"v_sub_f32 v{NEGM+i}, v{NEGM+i}, v{T}")
        e("s_nop 1")
        lab(lb)
    def exps(S):
        o = []
        for t in range(4):
            b = S + t*8
            seq = []
            o.append(f"v_exp_f32 v{b}, v{b}")
            for i in range(1, 8):
                o.append(f"v_exp_f32 v{b+i}, v{b+i}")
                o.append(f"v_add_f32 v{VL}, v{VL}, v{b+i-1}")
                if i % 2 == 0:
                    o.append(f"v_cvt_pk_bf16_f32 v{b+(i-2)//2}, v{b+i-2}, v{b+i-1}")
            o.append("PAD")
            o.append(f"v_add_f32 v{VL}, v{VL}, v{b+7}")
            o.append(f"v_cvt_pk_bf16_f32 v{b+3}, v{b+6}, v{b+7}")
        return o
    def emit(x):
        if isinstance(x, tuple):
            for s_ in x[1]:
                if s_.endswith(":"): lab(s_[:-1])
                else: e(s_)
        elif x == "PAD": e("s_nop 0")
        else: e(x)
    def popf(lst, n):
        k = 0
        first = True
        while lst and k < n:
            x = lst.pop(0)
            if x == "PAD" and first:
                first = False
                continue
            first = False
            emit(x); k += 1
    def need(lst, t, S):
        for x in lst:
            if isinstance(x, str) and x.startswith("v_cvt_pk") and f"v{S+8*t+3}," in x: return True
        return False
    e("s_waitcnt vmcnt(8)")
    e("s_barrier")
    tk = [kitem(0, q) for q in range(8)]
    for q in range(16):
        lg.wait(tk[q])
        e(qk_mfma(S0, q))
        if q < 8: tk.append(kitem(0, q+8))
    e("s_waitcnt vmcnt(0)")
    e("s_barrier")
    kdma(0)
    vdma(1)
    tk = [kitem(1, q) for q in range(8)]
    for x in mask_max(S0): emit(x)
    e("s_mov_b64 s[40:41], -1")
    e("s_lshr_b32 s42, s27, 1")
    if os.environ.get('ATT_NOLOOP'): e(f"s_branch {L}_fin")
    if os.environ.get('ATT_STAMP'):
        e("s_memtime s[60:61]"); e("s_memrealtime s[62:63]"); e("s_waitcnt lgkmcnt(0)")
    lab(f"{L}_loop")
    for u in range(2):
        cur, nxt = SB[u], SB[u ^ 1]
        fill = exps(cur)
        mm = mask_max(nxt)
        slowpath(cur)
        if os.environ.get('ATT_NOVALU'): fill = []; mm = []
        def pop(lst, n):
            k = 0
            while lst and k < n:
                x = lst.pop(0)
                if x == "PAD":
                    continue
                emit(x); k += 1
        for q in range(16):
            lg.wait(tk[q])
            e(qk_mfma(nxt, q))
            if q < 8: tk.append(kitem(u ^ 1, q+8))
            else: tk.append(vitem(u, q-8))
            popf(fill, 3)
        tk = tk[16:]
        dm = []
        for p in range(16):
            if p % 4 == 0:
                while len(fill) > 0 and need(fill, p // 4, cur): emit(fill.pop(0))
                if any("v_cvt_pk" in y for y in out[-2:]): e("s_nop 1")
            lg.wait(tk[p])
            e(pv_mfma(cur, p))
            if p < 8: tk.append(vitem(u, p+8))
            elif p == 9:
                e("s_waitcnt vmcnt(0) lgkmcnt(0)")
                if not os.environ.get('ATT_NOBAR'): e("s_barrier")
                tk.append(kitem(u, 0)); tk.append(kitem(u, 1))
                dm = kdma_l(u ^ 1) + vdma_l(u)
                if os.environ.get('ATT_NODMA'): dm = [[] for _ in dm]
            elif p > 9:
                tk.append(kitem(u, p-8))
                for _ in range(2 if p < 12 else 1):
                    for x in dm.pop(0): e(x)
            if fill: popf(fill, 3)
            if p >= 2 and (not fill or p >= 8): popf(mm, 3 if p < 9 else 2)
        while fill: emit(fill.pop(0))
        while mm: emit(mm.pop(0))
        tk = tk[16:]
    e("s_sub_u32 s42, s42, 1")
    e("s_cmp_lg_u32 s42, 0")
    e(f"s_cbranch_scc1 {L}_loop")
    lab(f"{L}_fin")
    if os.environ.get('ATT_STAMP'):
        e("s_memtime s[96:97]"); e("s_memrealtime s[98:99]"); e("s_waitcnt lgkmcnt(0)")
        e("s_sub_u32 s60, s96, s60"); e("s_sub_u32 s62, s98, s62")
        dl, dh = kaptr('ws')
        srd_off(96, dl, dh, 200*MB, 1 << 20)
        e("v_mov_b32 v20, s60"); e("v_mov_b32 v21, s62"); e("v_mov_b32 v22, s27"); e("s_getreg_b32 s5, hwreg(HW_REG_HW_ID)"); e("s_getreg_b32 s4, hwreg(HW_REG_XCC_ID)"); e("s_lshl_b32 s4, s4, 28"); e("s_and_b32 s5, s5, 0xfffffff"); e("s_or_b32 s5, s5, s4"); e("v_mov_b32 v23, s5")
        e("s_lshl_b32 s4, s2, 6"); e("s_lshl_b32 s5, s20, 4"); e("s_add_u32 s4, s4, s5")
        e("v_mov_b32 v24, 0")
        e("buffer_store_dwordx4 v[20:23], v24, s[96:99], s4 offen")
    e("s_nop 15")
    e(f"v_mov_b32 v{T}, v{VL}")
    e("s_nop 1")
    e(f"v_permlane32_swap_b32 v{T}, v{VL}")
    e("s_nop 1")
    e(f"v_add_f32 v{T}, v{T}, v{VL}")
    e(f"v_rcp_f32 v{T}, v{T}")
    e("v_lshlrev_b32 v5, 13, v4")
    e("v_lshl_add_u32 v5, v3, 4, v5")
    e("s_lshl_b32 s23, s16, 8")
    for db in range(4):
        for h in range(2):
            a = O + db*16 + h*8
            for j in range(8):
                e(f"v_mul_f32 v{a+j}, v{a+j}, v{T}")
            for j in range(4):
                e(f"v_cvt_pk_bf16_f32 v{a+j}, v{a+2*j}, v{a+2*j+1}")
            e(f"buffer_store_dwordx4 {vr(a,4)}, v5, s[12:15], s23 offen offset:{(db*32+h*16)*2}")
    e("s_waitcnt vmcnt(0)")
    lab(f"{L}_end")
    e("s_endpgm")
    end(name, (512,1,1), (256,1,1), 65536 + 4096, 256)
```

```python
import sys, struct
KA = dict(x=0, ckv=8, wq=16, wuk=24, wuv=32, wo=40, bx=48, win=56, wsp=64, bsp=72, wout=80, c=88, wmod=96, out=104, dbg=112, ws=120)
MB = 1 << 20
WS = dict(mod=0, k=20*MB, v=36*MB, ctx=52*MB, x1=68*MB, z=74*MB, z2n=80*MB, u=84*MB, xh=88*MB, st=92*MB)
out = []
def e(s): out.append("    " + s)
def lab(s): out.append(s + ":")
def raw(s): out.append(s)
kernels = []
def begin(name):
    raw(f".globl {name}"); raw(".p2align 8"); raw(f".type {name},@function"); lab(name)
def end(name, grid, block, lds, nv, ns=100):
    kernels.append((name, grid, block, lds, nv, ns))
def srd(d, lo, hi, nbytes):
    e(f"s_mov_b32 s{d}, s{lo}"); e(f"s_mov_b32 s{d+1}, s{hi}")
    e(f"s_mov_b32 s{d+2}, 0x{nbytes:x}"); e(f"s_mov_b32 s{d+3}, 0x00020000")
def srd_off(d, lo, hi, off, nbytes):
    e(f"s_add_u32 s{d}, s{lo}, 0x{off:x}"); e(f"s_addc_u32 s{d+1}, s{hi}, 0")
    e(f"s_mov_b32 s{d+2}, 0x{nbytes:x}"); e(f"s_mov_b32 s{d+3}, 0x00020000")
def vr(a, n): return f"v[{a}:{a+n-1}]"
def f2u(x): return struct.unpack("<I", struct.pack("<f", x))[0]
def kaptr(n):
    o = KA[n] // 4
    return 64 + o, 65 + o
def load_kargs():
    e("s_load_dwordx16 s[64:79], s[0:1], 0")
    e("s_load_dwordx16 s[80:95], s[0:1], 64")
def log2(x):
    assert x & (x - 1) == 0 and x > 0
    return x.bit_length() - 1
def sdiv(dst, src, d, tmp):
    if d & (d - 1) == 0:
        e(f"s_lshr_b32 s{dst}, s{src}, {log2(d)}")
    else:
        e(f"s_mov_b32 s{tmp}, 0x{(1 << 32) // d + 1:x}")
        e(f"s_mul_hi_u32 s{dst}, s{src}, s{tmp}")

def gelu8(a, t):
    for j in range(8):
        e(f"v_mul_f32 v{t+j}, v{a+j}, v{a+j}")
        e(f"v_fma_f32 v{t+j}, v{t+j}, s21, v1") if False else None
    for j in range(8):
        e(f"v_mul_f32 v{t+j}, s21, v{t+j}")
        e(f"v_add_f32 v{t+j}, s20, v{t+j}")
        e(f"v_mul_f32 v{t+j}, v{t+j}, v{a+j}")
        e(f"v_exp_f32 v{t+j}, v{t+j}")
    for j in range(8):
        e(f"v_add_f32 v{t+j}, 1.0, v{t+j}")
        e(f"v_rcp_f32 v{t+j}, v{t+j}")
    e("s_nop 0")
    for j in range(8):
        e(f"v_mul_f32 v{a+j}, v{t+j}, v{a+j}")

def gen_gemm(name, M, N, K, BM, BN, BK, GM, GN, S, A, B, epi, order='mn', withmod=False):
    NW = GM * GN
    nk = (K + BK - 1) // BK
    ks = BK // 16
    nbm, nbn = M // BM, (N + BN - 1) // BN
    ntile = nbm * nbn
    assert ntile % 8 == 0
    WM, WN = BM // GM, BN // GN
    MT, NT = WM // 32, WN // 32
    SW = min(BN, 128)
    RB = SW * 2
    CPS = SW // 32
    AROW = BK * 2
    ABYTES = BM * AROW
    BBYTES = BK * BN * 2
    BUF = ABYTES + BBYTES
    rowsA = 1024 // AROW
    rowsB = 1024 // RB
    nA, nB = BM // rowsA, BBYTES // 1024
    assert nA % NW == 0 and nB % NW == 0, (nA, nB, NW)
    nAi, nBi = nA // NW, nB // NW
    nper = nAi + nBi
    nj = BK // rowsB
    (Aptr, As, Abytes) = A
    (Bptrs, Bs, Bbytes, segN) = B
    L = f"L_{name}"
    begin(name)
    e(f"s_cmp_ge_u32 s2, {ntile}")
    e(f"s_cbranch_scc1 {L}_end")
    load_kargs()
    e("s_and_b32 s4, s2, 7")
    e("s_lshr_b32 s5, s2, 3")
    e(f"s_mul_i32 s4, s4, {ntile//8}")
    e("s_add_u32 s4, s4, s5")
    if order == 'mn':
        sdiv(28, 4, nbn, 5)
        e(f"s_mul_i32 s5, s28, {nbn}")
        e("s_sub_u32 s29, s4, s5")
    else:
        sdiv(29, 4, nbm, 5)
        e(f"s_mul_i32 s5, s29, {nbm}")
        e("s_sub_u32 s28, s4, s5")
    e(f"s_mul_i32 s28, s28, {BM}")
    e(f"s_mul_i32 s29, s29, {BN}")
    e("s_waitcnt lgkmcnt(0)")
    def ptr(spec):
        if spec[0] == 'ka':
            lo, hi = kaptr(spec[1]); return (lo, hi, 0)
        lo, hi = kaptr('ws'); return (lo, hi, WS[spec[1]])
    lo, hi, ex = ptr(Aptr)
    srd_off(8, lo, hi, ex, Abytes)
    if len(Bptrs) > 1:
        e(f"s_lshr_b32 s3, s29, {log2(segN)}")
        e(f"s_and_b32 s29, s29, {segN-1}")
    for si, sp in enumerate(Bptrs):
        lo, hi, ex = ptr(sp)
        if si == 0:
            e(f"s_add_u32 s12, s{lo}, 0x{ex:x}"); e(f"s_addc_u32 s13, s{hi}, 0")
        else:
            e(f"s_add_u32 s4, s{lo}, 0x{ex:x}"); e(f"s_addc_u32 s5, s{hi}, 0")
            e(f"s_cmp_eq_u32 s3, {si}")
            e("s_cselect_b32 s12, s4, s12"); e("s_cselect_b32 s13, s5, s13")
    e(f"s_mov_b32 s14, 0x{Bbytes:x}"); e("s_mov_b32 s15, 0x00020000")
    e("v_mov_b32 v9, v0")
    e("v_lshrrev_b32 v1, 6, v0")
    e("v_and_b32 v0, 63, v0")
    e("s_nop 0")
    e("v_readfirstlane_b32 s30, v1")
    if BK == 32:
        e("v_lshrrev_b32 v2, 2, v0"); e("v_and_b32 v3, 3, v0"); e("v_lshrrev_b32 v4, 4, v0"); e("v_xor_b32 v3, v3, v4")
    else:
        e("v_lshrrev_b32 v2, 3, v0"); e("v_and_b32 v3, 7, v0"); e("v_lshrrev_b32 v4, 4, v0")
        e("s_and_b32 s4, s30, 1"); e("s_lshl_b32 s4, s4, 2"); e("v_or_b32 v4, s4, v4"); e("v_xor_b32 v3, v3, v4")
    e(f"s_mov_b32 s4, {As}")
    e("v_mul_lo_u32 v2, v2, s4")
    e("v_lshl_add_u32 v2, v3, 4, v2")
    if RB == 256:
        e("v_lshrrev_b32 v3, 4, v0"); e("v_bfe_u32 v4, v0, 2, 2"); e("v_xor_b32 v4, v4, v3"); e("v_and_b32 v5, 3, v0")
    else:
        e("v_lshrrev_b32 v3, 3, v0"); e("v_bfe_u32 v4, v0, 2, 1"); e("v_bfe_u32 v5, v0, 4, 1"); e("v_xor_b32 v4, v4, v5"); e("v_and_b32 v5, 3, v0")
    e(f"s_mov_b32 s4, {Bs}")
    e("v_mul_lo_u32 v3, v3, s4")
    e("v_lshl_add_u32 v3, v4, 6, v3")
    e("v_lshl_add_u32 v3, v5, 4, v3")
    SA, SB = 32, 40
    e(f"s_mul_i32 s4, s30, {rowsA}")
    e("s_add_u32 s4, s4, s28")
    e(f"s_mul_i32 s4, s4, {As}")
    for t in range(nAi):
        e(f"s_add_u32 s{SA+t}, s4, {t*NW*rowsA*As}")
    for t in range(nBi):
        e(f"s_add_u32 s4, s30, {NW*t}")
        e(f"s_and_b32 s5, s4, {nj-1}")
        e(f"s_lshr_b32 s4, s4, {log2(nj)}")
        e(f"s_mul_i32 s5, s5, {rowsB*Bs}")
        e(f"s_mul_i32 s4, s4, {SW*2}")
        e("s_add_u32 s4, s4, s5")
        e("s_lshl_b32 s5, s29, 1")
        e(f"s_add_u32 s{SB+t}, s4, s5")
    e("s_lshl_b32 s48, s30, 10")
    sdiv(49, 30, GN, 4)
    e(f"s_mul_i32 s4, s49, {GN}")
    e("s_sub_u32 s50, s30, s4")
    e("v_and_b32 v4, 31, v0")
    e("v_lshrrev_b32 v5, 5, v0")
    if BK == 32: e("v_bfe_u32 v6, v0, 2, 2")
    else: e("v_bfe_u32 v6, v0, 1, 3")
    e("v_xor_b32 v6, v6, v5")
    e(f"s_mul_i32 s4, s49, {WM*AROW}")
    e(f"v_lshlrev_b32 v7, {log2(AROW)}, v4")
    e("v_add_u32 v7, s4, v7")
    for s in range(ks):
        e(f"v_xor_b32 v8, {2*s}, v6")
        e(f"v_lshl_add_u32 v{10+s}, v8, 4, v7")
    e("v_bfe_u32 v4, v0, 2, 2")
    e("v_lshl_add_u32 v8, v5, 3, v4")
    e(f"v_lshlrev_b32 v8, {log2(RB)}, v8")
    e("v_bfe_u32 v6, v0, 4, 1")
    e("v_lshl_add_u32 v8, v6, 5, v8")
    e("v_and_b32 v6, 1, v0")
    e("v_lshl_add_u32 v8, v6, 4, v8")
    e("v_bfe_u32 v6, v0, 1, 1")
    e("v_lshl_add_u32 v8, v6, 3, v8")
    e(f"v_add_u32 v8, {ABYTES}, v8")
    if RB == 256: e("v_mov_b32 v6, v4")
    else: e("v_lshrrev_b32 v6, 1, v4")
    for nt in range(NT):
        e(f"s_mul_i32 s4, s50, {NT}")
        e(f"s_add_u32 s4, s4, {nt}")
        e(f"s_and_b32 s5, s4, {CPS-1}")
        e(f"s_lshr_b32 s4, s4, {log2(CPS)}")
        e(f"s_mul_i32 s4, s4, {BK*RB}")
        e("v_xor_b32 v7, s5, v6")
        e(f"v_lshl_add_u32 v{14+nt}, v7, 6, v8")
        e(f"v_add_u32 v{14+nt}, s4, v{14+nt}")
    NBANK = (S*BUF + 65535) // 65536
    for b in range(1, NBANK):
        for i in range(8):
            if (i < 4 and i < ks) or (i >= 4 and i - 4 < NT):
                e(f"v_add_u32 v{10+8*b+i}, {65536*b}, v{10+i}")
    def ad(reg, off):
        return f"v{reg + 8*(off >> 16)} offset:{off & 65535}"
    FSZ = (MT + NT) * 4
    FB = 10 + 8*NBANK
    ACC = FB + 2 * FSZ
    def acc(mt, nt): return ACC + (mt*NT + nt) * 16
    def fa(st, mt): return FB + st*FSZ + mt*4
    def fb(st, nt): return FB + st*FSZ + MT*4 + nt*4
    def dma_pieces(buf):
        ps = []
        for t in range(nAi):
            ps.append([f"s_add_u32 m0, s48, {buf*BUF + t*NW*1024}",
                       f"s_add_u32 s{SA+t}, s{SA+t}, {BK*2}",
                       f"buffer_load_dwordx4 v2, s[8:11], s{SA+t} offen lds"])
        for t in range(nBi):
            ps.append([f"s_add_u32 m0, s48, {buf*BUF + ABYTES + t*NW*1024}",
                       f"s_add_u32 s{SB+t}, s{SB+t}, {BK*Bs}",
                       f"buffer_load_dwordx4 v3, s[12:15], s{SB+t} offen lds"])
        return ps
    def dma(buf):
        for pc in dma_pieces(buf):
            for x in pc: e(x)
    pend = []
    cnt = [0]
    NMF = ks * MT * NT
    def tick():
        cnt[0] += 1
        while pend and cnt[0] >= 1 + (nper - len(pend)) * (NMF - 1) // nper:
            for x in pend.pop(0): e(x)
    def reads(buf, s, st):
        for mt in range(MT):
            e(f"ds_read_b128 {vr(fa(st,mt),4)}, {ad(10+s, buf*BUF + mt*32*AROW)}")
        for nt in range(NT):
            e(f"ds_read_b64_tr_b16 {vr(fb(st,nt),2)}, {ad(14+nt, buf*BUF + s*16*RB)}")
            e(f"ds_read_b64_tr_b16 {vr(fb(st,nt)+2,2)}, {ad(14+nt, buf*BUF + s*16*RB + 4*RB)}")
    nrd = MT + 2*NT
    import os
    def mf(st, mt, nt):
        if os.environ.get('NOMFMA') == name:
            tick(); return
        e(f"v_mfma_f32_32x32x16_bf16 {vr(acc(mt,nt),16)}, {vr(fb(st,nt),4)}, {vr(fa(st,mt),4)}, {vr(acc(mt,nt),16)}")
        tick()
    for t in range(nAi): e(f"s_sub_u32 s{SA+t}, s{SA+t}, {BK*2}")
    for t in range(nBi): e(f"s_sub_u32 s{SB+t}, s{SB+t}, {BK*Bs}")
    SS = min(S, nk)
    if withmod:
        cl, ch = kaptr('c'); wl, wh = kaptr('wmod'); sl, sh = kaptr('ws')
        srd(16, cl, ch, 1024)
        srd(20, wl, wh, 512*3072*2)
        srd_off(24, sl, sh, WS['mod'], 3072*4)
        T = ACC
        e(f"v_lshlrev_b32 v{T}, 1, v9")
        e(f"buffer_load_ushort v{T+1}, v{T}, s[16:19], 0 offen")
        e("s_mov_b32 s4, 6144")
        e(f"v_mul_lo_u32 v{T}, v9, s4")
        e("s_mul_i32 s4, s2, 24")
        e(f"buffer_load_dwordx4 {vr(T+2,4)}, v{T}, s[20:23], s4 offen")
        e(f"buffer_load_dwordx2 {vr(T+6,2)}, v{T}, s[20:23], s4 offen offset:16")
        xl, xh_ = kaptr('x'); srd(52, xl, xh_, 2048*512*2)
        srd_off(56, sl, sh, WS['xh'], 2048*512*2)
        e("s_lshl_b32 s51, s2, 3")
        e("s_add_u32 s51, s51, s30")
        e("s_lshl_b32 s51, s51, 10")
        e(f"v_lshlrev_b32 v{T+32}, 4, v0")
        e(f"buffer_load_dwordx4 {vr(T+36,4)}, v{T+32}, s[52:55], s51 offen")
    for t in range(SS):
        dma(t)
    if withmod:
        T = ACC
        e(f"s_waitcnt vmcnt({SS*nper})")
        e(f"v_lshlrev_b32 v{T+1}, 16, v{T+1}")
        e(f"v_mul_f32 v{T}, 0xbfb8aa3b, v{T+1}")
        e(f"v_exp_f32 v{T}, v{T}")
        e("s_nop 0")
        e(f"v_add_f32 v{T}, 1.0, v{T}")
        e(f"v_rcp_f32 v{T}, v{T}")
        e("s_nop 0")
        e(f"v_mul_f32 v{T+1}, v{T+1}, v{T}")
        e(f"v_cvt_pk_bf16_f32 v{T+1}, v{T+1}, v{T+1}")
        e(f"v_lshlrev_b32 v{T+1}, 16, v{T+1}")
        P = T + 8
        for j in range(6):
            e(f"v_lshlrev_b32 v{P+2*j}, 16, v{T+2+j}")
            e(f"v_and_b32 v{P+2*j+1}, 0xffff0000, v{T+2+j}")
        for j in range(12):
            e(f"v_mul_f32 v{P+j}, v{P+j}, v{T+1}")
        for dpp in ("row_shr:1", "row_shr:2", "row_shr:4", "row_shr:8", "row_bcast:15 row_mask:0xa", "row_bcast:31 row_mask:0xc"):
            for j in range(12):
                e(f"v_add_f32_dpp v{P+j}, v{P+j}, v{P+j} {dpp}" + (" bound_ctrl:0" if "shr" in dpp else ""))
        e(f"v_mov_b32 v{T}, s48")
        e(f"v_lshrrev_b32 v{T}, 4, v{T}")
        e(f"v_add_u32 v{T}, {S*BUF}, v{T}")
        e("v_cmp_eq_u32 vcc, 63, v0")
        e("s_and_saveexec_b64 s[6:7], vcc")
        for j in range(3):
            e(f"ds_write_b128 v{T}, {vr(P+4*j,4)} offset:{16*j}")
        e("s_mov_b64 exec, s[6:7]")
        XA = T + 40
        def wsum(r):
            for dpp in ("row_shr:1", "row_shr:2", "row_shr:4", "row_shr:8", "row_bcast:15 row_mask:0xa", "row_bcast:31 row_mask:0xc"):
                e("s_nop 1")
                e(f"v_add_f32_dpp v{r}, v{r}, v{r} {dpp}" + (" bound_ctrl:0" if "shr" in dpp else ""))
            e("s_nop 1")
            e(f"v_readlane_b32 s4, v{r}, 63")
            e("s_nop 1")
            e(f"v_mov_b32 v{r}, s4")
        for i in range(4):
            e(f"v_lshlrev_b32 v{XA+2*i}, 16, v{T+36+i}")
            e(f"v_and_b32 v{XA+2*i+1}, 0xffff0000, v{T+36+i}")
        e(f"v_add_f32 v{T+33}, v{XA}, v{XA+1}")
        for i in range(2, 8): e(f"v_add_f32 v{T+33}, v{T+33}, v{XA+i}")
        wsum(T+33)
        e(f"v_mul_f32 v{T+33}, 0x{f2u(1/512):08x}, v{T+33}")
        for i in range(8): e(f"v_sub_f32 v{XA+i}, v{XA+i}, v{T+33}")
        e(f"v_mul_f32 v{T+33}, v{XA}, v{XA}")
        for i in range(1, 8): e(f"v_fmac_f32 v{T+33}, v{XA+i}, v{XA+i}")
        wsum(T+33)
        e(f"v_mul_f32 v{T+33}, 0x{f2u(1/512):08x}, v{T+33}")
        e(f"v_add_f32 v{T+33}, 0x{f2u(1e-5):08x}, v{T+33}")
        e(f"v_rsq_f32 v{T+33}, v{T+33}")
        e("s_nop 0")
        for i in range(8): e(f"v_mul_f32 v{XA+i}, v{XA+i}, v{T+33}")
        for i in range(4): e(f"v_cvt_pk_bf16_f32 v{T+36+i}, v{XA+2*i}, v{XA+2*i+1}")
        e(f"buffer_store_dwordx4 {vr(T+36,4)}, v{T+32}, s[56:59], s51 offen")
        e("s_waitcnt lgkmcnt(0)")
    e(f"s_waitcnt vmcnt({(SS-1)*nper + (1 if withmod else 0)})")
    e("s_barrier")
    if withmod:
        T = ACC
        e("v_cmp_gt_u32 vcc, 12, v9")
        e("s_and_saveexec_b64 s[6:7], vcc")
        e(f"s_cbranch_execz {L}_nomod")
        e(f"v_lshlrev_b32 v{T}, 2, v9")
        e(f"v_add_u32 v{T+9}, {S*BUF}, v{T}")
        for w in range(8):
            e(f"ds_read_b32 v{T+1+w}, v{T+9} offset:{w*64}")
        e("s_waitcnt lgkmcnt(0)")
        for w in range(1, 8):
            e(f"v_add_f32 v{T+1}, v{T+1}, v{T+1+w}")
        e(f"v_cvt_pk_bf16_f32 v{T+1}, v{T+1}, v{T+1}")
        e(f"v_lshlrev_b32 v{T+1}, 16, v{T+1}")
        e("s_mul_i32 s4, s2, 48")
        e(f"buffer_store_dword v{T+1}, v{T}, s[24:27], s4 offen")
        lab(f"{L}_nomod")
        e("s_mov_b64 exec, s[6:7]")
    reads(0, 0, 0)
    for i in range(MT*NT*16):
        e(f"v_mov_b32 v{ACC+i}, 0")
    def stage(u, dodma, last, vm):
        buf = u % S
        for s in range(ks):
            st = s & 1
            ops = [(mt, nt) for mt in range(MT) for nt in range(NT)]
            if s < ks - 1:
                reads(buf, s+1, st ^ 1)
                e(f"s_waitcnt lgkmcnt({nrd})")
                for (mt, nt) in ops: mf(st, mt, nt)
            else:
                e("s_waitcnt lgkmcnt(0)")
                if last:
                    for (mt, nt) in ops: mf(st, mt, nt)
                else:
                    mf(st, *ops[0])
                    while pend:
                        for x in pend.pop(0): e(x)
                    e(f"s_waitcnt vmcnt({vm})")
                    e("s_barrier")
                    cnt[0] = 0
                    if dodma: pend.extend(dma_pieces(buf))
                    reads((u+1) % S, 0, st ^ 1)
                    for (mt, nt) in ops[1:]: mf(st, mt, nt)
    nmain = max(nk - S, 0)
    r = nmain % S
    if r == 0 and nmain > 0: r = S
    for u in range(r):
        stage(u, True, False, (S-2)*nper)
    if nmain - r > 0:
        e(f"s_mov_b32 s31, {(nmain - r)//S}")
        lab(f"{L}_loop")
        for u in range(r, r + S):
            stage(u, True, False, (S-2)*nper)
        e("s_sub_u32 s31, s31, 1")
        e("s_cmp_lg_u32 s31, 0")
        e(f"s_cbranch_scc1 {L}_loop")
    for u in range(nmain, nk):
        stage(u, False, u == nk-1, max(nk-2-u, 0)*nper)
    e("s_nop 15")
    e("v_and_b32 v4, 31, v0")
    e(f"s_mul_i32 s4, s49, {WM}")
    e("s_add_u32 s4, s4, s28")
    e("v_add_u32 v4, s4, v4")
    e(f"s_mul_i32 s5, s50, {WN}")
    e("v_lshrrev_b32 v5, 5, v0")
    e("s_add_u32 s6, s5, s29")
    wsl, wsh = kaptr('ws')
    def colvalid_begin(nt, h, lbl):
        if N % BN == 0: return
        e(f"s_add_u32 s7, s6, {nt*32+h*16+16}")
        e(f"s_cmp_gt_u32 s7, {N}")
        e(f"s_cbranch_scc1 {lbl}")
    def pack8(dst, a):
        for j in range(4):
            e(f"v_cvt_pk_bf16_f32 v{dst+j}, v{a+2*j}, v{a+2*j+1}")
    def unpack8(dst, src):
        for j in range(4):
            e(f"v_lshlrev_b32 v{dst+2*j}, 16, v{src+j}")
            e(f"v_and_b32 v{dst+2*j+1}, 0xffff0000, v{src+j}")
    import os
    if os.environ.get('NOEPI') == name:
        e("s_endpgm")
    if epi == 'kv':
        srd_off(16, wsl, wsh, WS['k'], 32*MB)
        e("s_lshl_b32 s7, s3, 24")
        e("s_lshr_b32 s4, s6, 7")
        e("s_lshl_b32 s4, s4, 19")
        e("s_add_u32 s7, s7, s4")
        e("s_and_b32 s4, s6, 127")
        e("s_lshl_b32 s4, s4, 1")
        e("s_add_u32 s7, s7, s4")
        e("v_lshlrev_b32 v6, 8, v4")
        e("v_lshl_add_u32 v6, v5, 4, v6")
        e("v_add_u32 v6, s7, v6")
        assert WN <= 128
        k = 0
        for mt in range(MT):
            e(f"s_mov_b32 s7, {mt*32*256}")
            for nt in range(NT):
                for h in range(2):
                    t = 8 + (k % 2) * 4; k += 1
                    pack8(t, acc(mt, nt) + h*8)
                    e(f"buffer_store_dwordx4 {vr(t,4)}, v6, s[16:19], s7 offen offset:{(nt*32+h*16)*2} {os.environ.get('KVST','')}")
    elif epi in ('oproj', 'final'):
        gi = 2 if epi == 'oproj' else 5
        srd_off(20, wsl, wsh, WS['mod'], 3072*4)
        if epi == 'oproj':
            xl, xh = kaptr('x'); srd(24, xl, xh, 2048*512*2)
            srd_off(16, wsl, wsh, WS['x1'], 2048*512*2)
        else:
            srd_off(24, wsl, wsh, WS['x1'], 2048*512*2)
            ol, oh = kaptr('out'); srd(16, ol, oh, 2048*512*2)
        e("v_lshlrev_b32 v5, 3, v5")
        e("v_add_u32 v5, s6, v5")
        e("v_lshlrev_b32 v7, 2, v5")
        e("v_lshlrev_b32 v6, 9, v4")
        e("v_add_u32 v6, v6, v5")
        e("v_lshlrev_b32 v6, 1, v6")
        e(f"s_mov_b32 s7, {gi*2048}")
        G0 = ACC + MT*NT*16
        X0 = G0 + NT*16
        for nt in range(NT):
            for h in range(2):
                e(f"buffer_load_dwordx4 {vr(G0+(nt*2+h)*8,4)}, v7, s[20:23], s7 offen offset:{(nt*32+h*16)*4}")
                e(f"buffer_load_dwordx4 {vr(G0+(nt*2+h)*8+4,4)}, v7, s[20:23], s7 offen offset:{(nt*32+h*16)*4+16}")
        for mt in range(MT):
            e(f"s_mov_b32 s4, {mt*32*1024}")
            for nt in range(NT):
                for h in range(2):
                    e(f"buffer_load_dwordx4 {vr(X0+((mt*NT+nt)*2+h)*4,4)}, v6, s[24:27], s4 offen offset:{(nt*32+h*16)*2}")
        if epi == 'oproj':
            assert WN == 32
            srd_off(28, wsl, wsh, WS['st'], 2048*128)
            e("s_mov_b32 s5, 0x3f803f80")
            e("s_lshr_b32 s4, s6, 2")
            e("v_lshlrev_b32 v20, 7, v4")
            e("v_add_u32 v20, s4, v20")
        e("s_waitcnt vmcnt(0)")
        for mt in range(MT):
            e(f"s_mov_b32 s4, {mt*32*1024}")
            for nt in range(NT):
                for h in range(2):
                    a = acc(mt, nt) + h*8
                    xr = X0 + ((mt*NT+nt)*2+h)*4
                    g = G0 + (nt*2+h)*8
                    unpack8(8, xr)
                    for j in range(8):
                        e(f"v_fmac_f32 v{8+j}, v{g+j}, v{a+j}")
                    pack8(xr, 8)
                    e(f"buffer_store_dwordx4 {vr(xr,4)}, v6, s[16:19], s4 offen offset:{(nt*32+h*16)*2}")
                    if epi == 'oproj':
                        for j in range(4):
                            first = (nt == 0 and h == 0 and j == 0)
                            e(f"v_dot2_f32_bf16 v16, v{xr+j}, s5, " + ("0" if first else "v16"))
                            e(f"v_dot2_f32_bf16 v17, v{xr+j}, v{xr+j}, " + ("0" if first else "v17"))
            if epi == 'oproj':
                e("s_nop 4")
                e("v_mov_b32 v18, v16"); e("v_mov_b32 v19, v17")
                e("s_nop 1")
                e("v_permlane32_swap_b32 v16, v18")
                e("v_permlane32_swap_b32 v17, v19")
                e("s_nop 1")
                e("v_add_f32 v16, v16, v18"); e("v_add_f32 v17, v17, v19")
                e(f"s_mov_b32 s4, {mt*32*128}")
                e("buffer_store_dwordx2 v[16:17], v20, s[28:31], s4 offen")
        nvx = X0 + MT*NT*8
    elif epi == 'sp':
        bl, bh = kaptr('bsp')
        srd(20, bl, bh, 2048*2)
        srd_off(24, wsl, wsh, WS['z'], 2048*1376*2)
        srd_off(16, wsl, wsh, WS['u'], 2048*704*2)
        e("v_lshlrev_b32 v5, 3, v5")
        e("v_add_u32 v5, s6, v5")
        e("s_mov_b32 s4, 2752")
        e("v_mul_lo_u32 v6, v4, s4")
        e("v_lshl_add_u32 v6, v5, 1, v6")
        e("s_mov_b32 s4, 1408")
        e("v_mul_lo_u32 v7, v4, s4")
        e("v_lshl_add_u32 v7, v5, 1, v7")
        e("v_lshlrev_b32 v8, 1, v4")
        for mt in range(MT):
            e(f"buffer_load_ushort v{16+mt}, v8, s[20:23], 0 offen offset:{mt*64}")
        X0 = ACC + MT*NT*16
        for mt in range(MT):
            e(f"s_mov_b32 s7, {mt*32*2752}")
            for nt in range(NT):
                for h in range(2):
                    e(f"buffer_load_dwordx4 {vr(X0+((mt*NT+nt)*2+h)*4,4)}, v6, s[24:27], s7 offen offset:{(nt*32+h*16)*2}")
        e("s_waitcnt vmcnt(0)")
        for mt in range(MT):
            e(f"v_lshlrev_b32 v{16+mt}, 16, v{16+mt}")
        for nt in range(NT):
            for h in range(2):
                lbl = f"{L}_sk{nt}{h}"
                colvalid_begin(nt, h, lbl)
                for mt in range(MT):
                    a = acc(mt, nt) + h*8
                    xr = X0 + ((mt*NT+nt)*2+h)*4
                    unpack8(8, xr)
                    for j in range(8):
                        e(f"v_add_f32 v{a+j}, v{a+j}, v{16+mt}")
                        e(f"v_mul_f32 v{8+j}, v{8+j}, v{a+j}")
                    pack8(xr, 8)
                    e(f"s_mov_b32 s7, {mt*32*1408}")
                    e(f"buffer_store_dwordx4 {vr(xr,4)}, v7, s[16:19], s7 offen offset:{(nt*32+h*16)*2}")
                if N % BN:
                    e(f"s_branch {lbl}_d")
                    lab(lbl)
                    for j in range(4): e(f"v_mov_b32 v{8+j}, 0")
                    for mt in range(MT):
                        e(f"s_mov_b32 s7, {mt*32*1408}")
                        e(f"buffer_store_dwordx4 v[8:11], v7, s[16:19], s7 offen offset:{(nt*32+h*16)*2}")
                    lab(f"{lbl}_d")
        nvx = X0 + MT*NT*8
    lab(f"{L}_end")
    e("s_endpgm")
    nv = ACC + MT*NT*16
    if epi in ('oproj', 'final', 'sp'): nv = max(nv, nvx)
    lds = S * BUF + (512 if withmod else 0)
    end(name, (ntile,1,1), (64*NW,1,1), lds, nv)
```

```python
import sys, os
sys.path.insert(0, os.path.dirname(os.path.abspath(__file__)))
from v2_common import *
from v2_attn import *
import v2_common

def gen_win():
    name = "win_kernel"
    L = "L_win"
    lg = LG()
    begin(name)
    e("s_cmp_ge_u32 s2, 176")
    e(f"s_cbranch_scc1 {L}_end")
    load_kargs()
    e("s_and_b32 s4, s2, 7")
    e("s_lshr_b32 s5, s2, 3")
    e("s_mul_i32 s4, s4, 22")
    e("s_add_u32 s4, s4, s5")
    sdiv(17, 4, 11, 5)
    e("s_mul_i32 s5, s17, 11")
    e("s_sub_u32 s16, s4, s5")
    e("v_mov_b32 v9, v0")
    e("v_lshrrev_b32 v1, 6, v0")
    e("v_and_b32 v0, 63, v0")
    e("s_nop 0")
    e("v_readfirstlane_b32 s20, v1")
    e("s_waitcnt lgkmcnt(0)")
    wsl, wsh = kaptr('ws')
    srd_off(12, wsl, wsh, WS['z'], 2048*1376*2)
    srd_off(32, wsl, wsh, WS['x1'], 2048*512*2)
    ql, qh = kaptr('win'); srd(36, ql, qh, 512*1376*2)
    srd_off(56, wsl, wsh, WS['mod'], 3072*4)
    srd_off(40, wsl, wsh, WS['st'], 2048*128)
    VW, AV, MT0 = 12, 16, 240
    QA, R0, VX, AX = 32, 112, 13, 14
    MODL = 65536
    e("v_and_b32 v2, 31, v0")
    e("v_lshrrev_b32 v3, 5, v0")
    e("s_lshl_b32 s22, s17, 7")
    e("s_lshl_b32 s23, s20, 5")
    e("s_add_u32 s22, s22, s23")
    e("v_add_u32 v4, s22, v2")
    e("v_lshlrev_b32 v6, 3, v9")
    e(f"s_mov_b32 s4, {4*2048}")
    e(f"s_mov_b32 s5, {3*2048}")
    e(f"buffer_load_dwordx2 v[{MT0}:{MT0+1}], v6, s[56:59], s4 offen")
    e(f"buffer_load_dwordx2 v[{MT0+2}:{MT0+3}], v6, s[56:59], s5 offen")
    e("v_lshlrev_b32 v5, 7, v4")
    e("v_lshl_add_u32 v5, v3, 6, v5")
    for i in range(4):
        e(f"buffer_load_dwordx4 {vr(200+4*i,4)}, v5, s[40:43], 0 offen offset:{16*i}")
    e("v_lshrrev_b32 v6, 4, v0")
    e("v_bfe_u32 v7, v0, 2, 2")
    e("v_xor_b32 v7, v7, v6")
    e("v_and_b32 v8, 3, v0")
    e("v_lshlrev_b32 v7, 6, v7")
    e("v_lshl_add_u32 v7, v8, 4, v7")
    e("s_mov_b32 s4, 2752")
    e("v_mul_lo_u32 v1, v6, s4")
    e(f"v_add_u32 v{VW}, v7, v1")
    e("v_xor_b32 v7, v8, v6")
    e("v_lshrrev_b32 v1, 2, v0")
    e("v_lshlrev_b32 v1, 10, v1")
    e(f"v_lshl_add_u32 v{VX}, v7, 4, v1")
    e("s_lshl_b32 s25, s20, 10")
    e("s_lshl_b32 s44, s20, 11")
    e("s_lshl_b32 s45, s16, 8")
    e(f"s_mul_i32 s4, s20, {4*2752}")
    e("s_add_u32 s45, s45, s4")
    e("s_lshl_b32 s48, s22, 10")
    def dma_slot(j):
        b = (j % 4) * 16384
        for i in range(2):
            e(f"s_add_u32 m0, s44, {b + i*1024}")
            e(f"s_add_u32 s4, s48, {i*16384 + j*64}")
            e(f"buffer_load_dwordx4 v{VX}, s[32:35], s4 offen lds")
        for i in range(2):
            e(f"s_add_u32 m0, s25, {b + 8192 + i*4096}")
            e(f"s_add_u32 s4, s45, {(j*32 + i*16)*2752}")
            e(f"buffer_load_dwordx4 v{VW}, s[36:39], s4 offen lds")
    for j in range(3): dma_slot(j)
    e("v_bfe_u32 v6, v0, 2, 2")
    e("v_bfe_u32 v8, v0, 4, 1")
    e("v_lshlrev_b32 v8, 5, v8")
    e("v_and_b32 v7, 1, v0")
    e("v_lshl_add_u32 v8, v7, 4, v8")
    e("v_bfe_u32 v7, v0, 1, 1")
    e("v_lshl_add_u32 v8, v7, 3, v8")
    e("v_lshl_add_u32 v7, v3, 3, v6")
    e("v_lshl_add_u32 v7, v7, 8, v8")
    for db in range(4):
        e(f"v_xor_b32 v1, {db}, v6")
        e(f"v_lshl_add_u32 v{AV+db}, v1, 6, v7")
    e("v_xor_b32 v7, v6, v3")
    e("v_lshlrev_b32 v1, 6, v2")
    e("v_add_u32 v1, s44, v1")
    e(f"v_lshl_add_u32 v{AX}, v7, 4, v1")
    e("v_xor_b32 v7, 2, v7")
    e(f"v_lshl_add_u32 v{AX+1}, v7, 4, v1")
    e("v_lshlrev_b32 v30, 5, v3")
    e(f"v_add_u32 v30, {MODL}, v30")
    e("s_waitcnt vmcnt(12)")
    e(f"v_add_f32 v{MT0}, 1.0, v{MT0}")
    e(f"v_add_f32 v{MT0+1}, 1.0, v{MT0+1}")
    e(f"v_cvt_pk_bf16_f32 v{MT0}, v{MT0}, v{MT0+1}")
    e(f"v_and_b32 v{MT0+1}, 0xffff0000, v{MT0}")
    e(f"v_lshlrev_b32 v{MT0}, 16, v{MT0}")
    e("v_lshlrev_b32 v6, 3, v9")
    e(f"v_add_u32 v6, {MODL}, v6")
    e(f"ds_write_b64 v6, v[{MT0}:{MT0+1}]")
    e(f"ds_write_b64 v6, v[{MT0+2}:{MT0+3}] offset:2048")
    e("v_add_f32 v28, v200, v202"); e("v_add_f32 v29, v201, v203")
    for i in range(2, 8):
        e(f"v_add_f32 v28, v28, v{200+2*i}"); e(f"v_add_f32 v29, v29, v{201+2*i}")
    e("v_mov_b32 v26, v28"); e("v_mov_b32 v27, v29")
    e("s_nop 1")
    e("v_permlane32_swap_b32 v28, v26")
    e("v_permlane32_swap_b32 v29, v27")
    e("s_nop 1")
    e("v_add_f32 v28, v28, v26")
    e("v_add_f32 v29, v29, v27")
    e(f"v_mul_f32 v28, 0x{f2u(1/512):08x}, v28")
    e(f"v_mul_f32 v29, 0x{f2u(1/512):08x}, v29")
    e("v_fma_f32 v29, -v28, v28, v29")
    e("v_max_f32 v29, 0, v29")
    e(f"v_add_f32 v29, 0x{f2u(1e-5):08x}, v29")
    e("v_rsq_f32 v29, v29")
    e("s_nop 0")
    e("v_mul_f32 v28, v28, v29")
    e("v_sub_f32 v28, 0, v28")
    lnproj2(L, QA, R0, AX, AV, lg, True, dma_slot, 0)
    e("s_nop 15")
    c1 = -2.0 * 0.7978845608028654 * 1.4426950408889634
    e(f"s_mov_b32 s20, 0x{f2u(c1):08x}")
    e(f"s_mov_b32 s21, 0x{f2u(c1*0.044715):08x}")
    e("s_mov_b32 s4, 2752")
    e("v_mul_lo_u32 v5, v4, s4")
    e("v_lshl_add_u32 v5, v3, 4, v5")
    e("s_lshl_b32 s23, s16, 8")
    for db in range(4):
        if db == 3:
            e("s_cmp_eq_u32 s16, 10")
            e(f"s_cbranch_scc1 {L}_end")
        for h in range(2):
            a = QA + db*16 + h*8
            gelu8(a, 112)
            for j in range(4):
                e(f"v_cvt_pk_bf16_f32 v{a+j}, v{a+2*j}, v{a+2*j+1}")
            e(f"buffer_store_dwordx4 {vr(a,4)}, v5, s[12:15], s23 offen offset:{(db*32+h*16)*2}")
    lab(f"{L}_end")
    e("s_endpgm")
    end(name, (176,1,1), (256,1,1), 65536 + 4096, 256)

def gen_lnz():
    name = "lnz_kernel"
    begin(name)
    L = "L_lnz_end"
    e("s_cmp_ge_u32 s2, 512")
    e(f"s_cbranch_scc1 {L}")
    e(f"s_load_dwordx2 s[6:7], s[0:1], {KA['ws']}")
    e("s_waitcnt lgkmcnt(0)")
    srd_off(8, 6, 7, WS['z'] + 688*2, 2048*1376*2 - 688*2); srd_off(12, 6, 7, WS['z2n'], 2048*704*2)
    e("v_lshrrev_b32 v1, 6, v0")
    e("v_and_b32 v2, 63, v0")
    e("s_lshl_b32 s3, s2, 2")
    e("v_add_u32 v1, s3, v1")
    e("s_mov_b32 s20, 2752")
    e("v_mul_lo_u32 v3, v1, s20")
    e("v_lshl_add_u32 v3, v2, 4, v3")
    e("s_mov_b32 s20, 1408")
    e("v_mul_lo_u32 v4, v1, s20")
    e("v_lshl_add_u32 v4, v2, 4, v4")
    e("buffer_load_dwordx4 v[8:11], v3, s[8:11], 0 offen")
    for i in range(4): e(f"v_mov_b32 v{12+i}, 0")
    e("v_cmp_gt_u32 vcc, 22, v2")
    e("s_and_saveexec_b64 s[22:23], vcc")
    e("buffer_load_dwordx4 v[12:15], v3, s[8:11], 0 offen offset:1024")
    e("s_mov_b64 exec, s[22:23]")
    e("s_waitcnt vmcnt(0)")
    for ch in range(2):
        for i in range(4):
            e(f"v_lshlrev_b32 v{16+8*ch+2*i}, 16, v{8+4*ch+i}")
            e(f"v_and_b32 v{17+8*ch+2*i}, 0xffff0000, v{8+4*ch+i}")
    def wsum(r, t):
        for dpp in ("row_shr:1", "row_shr:2", "row_shr:4", "row_shr:8", "row_bcast:15 row_mask:0xa", "row_bcast:31 row_mask:0xc"):
            e("s_nop 1")
            e(f"v_add_f32_dpp v{r}, v{r}, v{r} {dpp}" + (" bound_ctrl:0" if "shr" in dpp else ""))
        e("s_nop 1")
        e(f"v_readlane_b32 s24, v{r}, 63")
        e("s_nop 1")
        e(f"v_mov_b32 v{r}, s24")
    e("v_mov_b32 v6, v16")
    for i in range(1, 16): e(f"v_add_f32 v6, v6, v{16+i}")
    wsum(6, 7)
    e(f"s_mov_b32 s20, 0x{f2u(1.0/688):08x}")
    e("v_mul_f32 v6, s20, v6")
    e("v_cmp_gt_u32 vcc, 22, v2")
    for i in range(16):
        e(f"v_sub_f32 v{16+i}, v{16+i}, v6")
        if i >= 8: e(f"v_cndmask_b32 v{16+i}, 0, v{16+i}, vcc")
    e("v_mul_f32 v6, v16, v16")
    for i in range(1, 16): e(f"v_fmac_f32 v6, v{16+i}, v{16+i}")
    wsum(6, 7)
    e("v_mul_f32 v6, s20, v6")
    e(f"v_add_f32 v6, 0x{f2u(1e-5):08x}, v6")
    e("v_rsq_f32 v6, v6")
    e("s_nop 0")
    for i in range(16): e(f"v_mul_f32 v{16+i}, v{16+i}, v6")
    for ch in range(2):
        for i in range(4):
            e(f"v_cvt_pk_bf16_f32 v{8+4*ch+i}, v{16+8*ch+2*i}, v{17+8*ch+2*i}")
    e("buffer_store_dwordx4 v[8:11], v4, s[12:15], 0 offen")
    e("v_cmp_gt_u32 vcc, 24, v2")
    e("s_and_saveexec_b64 s[22:23], vcc")
    e("buffer_store_dwordx4 v[12:15], v4, s[12:15], 0 offen offset:1024")
    lab(L)
    e("s_endpgm")
    end(name, (512,1,1), (256,1,1), 0, 48)

def main():
    cfg = dict(kv=(256,256,32,2,4,4), op=(64,64,64,2,2,4), sp=(128,64,64,2,2,4), wo=(64,64,64,2,2,4))
    for a in sys.argv[2:]:
        k, v = a.split("=")
        cfg[k] = tuple(int(x) for x in v.split(","))
    raw('.amdgcn_target "amdgcn-amd-amdhsa--gfx950"')
    raw(".text")
    W = 512*4096*2
    BM, BN, BK, GM, GN, S = cfg['kv']
    gen_gemm("kv_kernel", 2048, 8192, 512, BM, BN, BK, GM, GN, S,
             (('ka','ckv'), 1024, 2048*512*2), ([('ka','wuk'), ('ka','wuv')], 8192, W, 4096), 'kv', order=os.environ.get('KVORD','nm'), withmod=True)
    gen_attn()
    BM, BN, BK, GM, GN, S = cfg['op']
    gen_gemm("oproj_kernel", 2048, 512, 4096, BM, BN, BK, GM, GN, S,
             (('ws','ctx'), 8192, 2048*4096*2), ([('ka','wo')], 1024, 4096*512*2, 512), 'oproj', order='mn')
    gen_win()
    gen_lnz()
    BM, BN, BK, GM, GN, S = cfg['sp']
    gen_gemm("wsp_kernel", 2048, 688, 2048, BM, BN, BK, GM, GN, S,
             (('ka','wsp'), 4096, 2048*2048*2), ([('ws','z2n')], 1408, 2048*704*2, 1024), 'sp', order='mn')
    BM, BN, BK, GM, GN, S = cfg['wo']
    gen_gemm("wout_kernel", 2048, 512, 704, BM, BN, BK, GM, GN, S,
             (('ws','u'), 1408, 2048*704*2), ([('ka','wout')], 1024, 688*512*2, 512), 'final', order='mn')
    hdr = open("adaLN_cond__compressed_kv_cla__mixer_gmlp__prompt.s.ref").read().split("\n")
    hdr = [h for h in hdr if h.startswith(";") and "@launch" not in h and "Override" not in h and "grid=ceil" not in h]
    txt = "\n".join(hdr) + "\n"
    for (n, g, b, lds, nv, ns) in kernels:
        txt += f"; @launch kernel={n} grid=({g[0]},{g[1]},{g[2]}) block=({b[0]},{b[1]},{b[2]}) lds={lds}\n"
    txt += "\n".join(out) + "\n"
    txt += '.section .rodata,"a"\n'
    for (n, g, b, lds, nv, ns) in kernels:
        nv8 = (nv + 7) // 8 * 8
        txt += f""".p2align 6
.amdhsa_kernel {n}
  .amdhsa_next_free_vgpr {nv8}
  .amdhsa_next_free_sgpr {ns}
  .amdhsa_accum_offset {min(nv8,256)}
  .amdhsa_group_segment_fixed_size 0
  .amdhsa_kernarg_size 128
  .amdhsa_user_sgpr_count 2
  .amdhsa_user_sgpr_kernarg_segment_ptr 1
  .amdhsa_system_sgpr_workgroup_id_x 1
.end_amdhsa_kernel
"""
    open(sys.argv[1], "w").write(txt)
    for k in kernels: print(k)

main()
```

```python
from v2_common import *

class LG:
    def __init__(self): self.n = 0
    def issue(self, k=1):
        self.n += k; return self.n
    def wait(self, ticket):
        left = self.n - ticket
        e(f"s_waitcnt lgkmcnt({min(left, 15)})")
    def waitall(self):
        e("s_waitcnt lgkmcnt(0)")

def lnproj_prologue(L, X, QA, WF, MT0, AW, xs_srd, xrow_v, lg, mod_lds, wchunk_dma, after_chunk, nchunks=4):
    T = 20
    e("v_mov_b32 v28, 0"); e("v_mov_b32 v29, 0")
    e("s_mov_b32 s44, 0x3f803f80")
    for i in range(128):
        e(f"v_dot2_f32_bf16 v28, v{X+i}, s44, v28")
        e(f"v_dot2_f32_bf16 v29, v{X+i}, v{X+i}, v29")
    e("v_mov_b32 v30, v28"); e("v_mov_b32 v31, v29")
    e("s_nop 1")
    e("v_permlane32_swap_b32 v28, v30")
    e("v_permlane32_swap_b32 v29, v31")
    e("s_nop 1")
    e("v_add_f32 v28, v28, v30")
    e("v_add_f32 v29, v29, v31")
    e(f"v_mul_f32 v28, 0x{f2u(1/512):08x}, v28")
    e(f"v_mul_f32 v29, 0x{f2u(1/512):08x}, v29")
    e("v_fma_f32 v29, -v28, v28, v29")
    e("v_max_f32 v29, 0, v29")
    e(f"v_add_f32 v29, 0x{f2u(1e-5):08x}, v29")
    e("v_rsq_f32 v29, v29")
    e("s_nop 0")
    e("v_mul_f32 v28, v28, v29")
    e("v_sub_f32 v28, 0, v28")
    import os
    if os.environ.get('ATT_EXIT') == '2': e("s_endpgm")
    e("v_lshlrev_b32 v30, 5, v3")
    e(f"v_add_u32 v30, {mod_lds}, v30")
    mod_lds = 0
    def modreads(s):
        e(f"ds_read_b128 {vr(MT0,4)}, v30 offset:{mod_lds + s*64}")
        e(f"ds_read_b128 {vr(MT0+4,4)}, v30 offset:{mod_lds + s*64 + 16}")
        e(f"ds_read_b128 {vr(MT0+8,4)}, v30 offset:{mod_lds + 2048 + s*64}")
        e(f"ds_read_b128 {vr(MT0+12,4)}, v30 offset:{mod_lds + 2048 + s*64 + 16}")
        return lg.issue(4)
    def hpart(s, half):
        for j in range(2):
            r = X + 4*s + 2*half + j
            a = T + 4*half + 2*j
            m = 4*half + 2*j
            e(f"v_lshlrev_b32 v{a}, 16, v{r}")
            e(f"v_and_b32 v{a+1}, 0xffff0000, v{r}")
            e(f"v_fma_f32 v{a}, v{a}, v29, v28")
            e(f"v_fma_f32 v{a+1}, v{a+1}, v29, v28")
            e(f"v_fma_f32 v{a}, v{a}, v{MT0+m}, v{MT0+8+m}")
            e(f"v_fma_f32 v{a+1}, v{a+1}, v{MT0+m+1}, v{MT0+8+m+1}")
            e(f"v_cvt_pk_bf16_f32 v{r}, v{a}, v{a+1}")
    def wreads(s, dbs):
        base = ((s // 8) % 2) * 32768 + (s % 8) * 4096
        for db in dbs:
            e(f"ds_read_b64_tr_b16 {vr(WF+db*4,2)}, v{AW+db} offset:{base}")
            e(f"ds_read_b64_tr_b16 {vr(WF+db*4+2,2)}, v{AW+db} offset:{base + 1024}")
        return lg.issue(2*len(dbs))
    def mf(s, db):
        c = "0" if s == 0 else vr(QA+db*16,16)
        e(f"v_mfma_f32_32x32x16_bf16 {vr(QA+db*16,16)}, {vr(WF+db*4,4)}, {vr(X+4*s,4)}, {c}")
    after_chunk(-1)
    tm = modreads(0)
    tw01 = wreads(0, [0, 1]); tw23 = wreads(0, [2, 3])
    lg.wait(tm)
    hpart(0, 0); hpart(0, 1)
    tm = modreads(1)
    NS = nchunks * 8
    for s in range(NS):
        lastc = (s % 8 == 7)
        lg.wait(tw01)
        mf(s, 0); mf(s, 1)
        if not lastc: tw01n = wreads(s+1, [0, 1])
        if s + 1 < NS:
            lg.wait(tm)
            hpart(s+1, 0)
        lg.wait(tw23)
        mf(s, 2); mf(s, 3)
        if not lastc: tw23n = wreads(s+1, [2, 3])
        if s + 1 < NS:
            hpart(s+1, 1)
            if s + 2 < NS: tm = modreads(s+2)
        if lastc:
            lg.waitall()
            after_chunk(s // 8)
            if s + 1 < NS:
                tw01n = wreads(s+1, [0, 1]); tw23n = wreads(s+1, [2, 3])
        if s + 1 < NS:
            tw01, tw23 = tw01n, tw23n

def lnproj2(L, QA, R0, AX, AW, lg, norm, dma_slot, nslots_after):
    XR = [R0, R0+4]; XH = [R0+8, R0+12]; WF = [R0+16, R0+32]; MT = [R0+48, R0+64]
    T = 20
    def xread(s):
        e(f"ds_read_b128 {vr(XR[s%2],4)}, v{AX+(s%2)} offset:{((s//2)%4)*16384}")
        return lg.issue(1)
    def modreads(s):
        m = MT[s%2]
        e(f"ds_read_b128 {vr(m,4)}, v30 offset:{s*64}")
        e(f"ds_read_b128 {vr(m+4,4)}, v30 offset:{s*64 + 16}")
        e(f"ds_read_b128 {vr(m+8,4)}, v30 offset:{2048 + s*64}")
        e(f"ds_read_b128 {vr(m+12,4)}, v30 offset:{2048 + s*64 + 16}")
        return lg.issue(4)
    def wreads(s):
        base = ((s//2)%4)*16384 + 8192 + (s%2)*4096
        for db in range(4):
            e(f"ds_read_b64_tr_b16 {vr(WF[s%2]+db*4,2)}, v{AW+db} offset:{base}")
            e(f"ds_read_b64_tr_b16 {vr(WF[s%2]+db*4+2,2)}, v{AW+db} offset:{base + 1024}")
        return lg.issue(8)
    def trans(s):
        o = []
        for j in range(4):
            r = XR[s%2] + j; a = T + 2*j; m = MT[s%2] + 2*j
            o.append(f"v_lshlrev_b32 v{a}, 16, v{r}")
            o.append(f"v_and_b32 v{a+1}, 0xffff0000, v{r}")
            if norm:
                o.append(f"v_fma_f32 v{a}, v{a}, v29, v28")
                o.append(f"v_fma_f32 v{a+1}, v{a+1}, v29, v28")
            o.append(f"v_fma_f32 v{a}, v{a}, v{m}, v{m+8}")
            o.append(f"v_fma_f32 v{a+1}, v{a+1}, v{m+1}, v{m+9}")
            o.append(f"v_cvt_pk_bf16_f32 v{XH[s%2]+j}, v{a}, v{a+1}")
        return o
    def mf(s, db):
        c = "0" if s == 0 else vr(QA+db*16,16)
        e(f"v_mfma_f32_32x32x16_bf16 {vr(QA+db*16,16)}, {vr(WF[s%2]+db*4,4)}, {vr(XH[s%2],4)}, {c}")
    e("s_waitcnt vmcnt(4) lgkmcnt(0)")
    e("s_barrier")
    dma_slot(3)
    xread(0); t0 = modreads(0)
    xread(1); modreads(1)
    wreads(0)
    lg.wait(t0)
    for x in trans(0): e(x)
    for s in range(32):
        t = s // 2
        if s % 2 == 0 and t >= 1:
            nxt2 = t + 2
            ok = nxt2 <= 15 + nslots_after
            if t + 1 <= 15:
                e(f"s_waitcnt vmcnt({4 if ok else 0})")
            if t + 3 <= 15 + nslots_after:
                e("s_barrier")
                dma_slot(t + 3)
            elif t + 1 <= 15:
                e("s_barrier")
        n = 0
        import os
        if os.environ.get('PRO_NOCOMP'): continue
        if s + 2 < 32:
            xread(s+2); modreads(s+2); n += 5
        if s + 1 < 32:
            wreads(s+1); n += 8
        e(f"s_waitcnt lgkmcnt({n})")
        fl = trans(s+1) if s + 1 < 32 else []
        per = (len(fl) + 3) // 4
        for db in range(4):
            mf(s, db)
            for _ in range(per):
                if fl: e(fl.pop(0))

def gen_attn():
    name = "attn_kernel"
    L = "L_attn"
    lg = LG()
    begin(name)
    e("s_cmp_ge_u32 s2, 512")
    e(f"s_cbranch_scc1 {L}_end")
    import os
    if os.environ.get('ATT_EXIT') == '0': e("s_endpgm")
    load_kargs()
    e("s_and_b32 s4, s2, 7")
    e("s_lshr_b32 s5, s2, 3")
    e("s_and_b32 s6, s5, 1")
    e("s_lshr_b32 s7, s5, 5")
    e("s_bfe_u32 s16, s5, 0x40001")
    e("s_lshl_b32 s17, s7, 4")
    e("s_or_b32 s16, s16, s17")
    e("s_xor_b32 s6, s6, s7")
    e("s_and_b32 s17, s16, 7")
    e("s_sub_u32 s18, 15, s17")
    e("s_cmp_eq_u32 s6, 0")
    e("s_cselect_b32 s17, s18, s17")
    import os
    if os.environ.get('ATT_HMAP') == '1':
        e("s_lshr_b32 s16, s16, 3")
        e("s_lshl_b32 s4, s4, 2")
        e("s_add_u32 s16, s16, s4")
    elif os.environ.get('ATT_HMAP') == '2':
        e("s_lshr_b32 s16, s2, 3")
        e("s_and_b32 s16, s16, 31")
    else:
        e("s_lshr_b32 s16, s16, 3")
        e("s_lshl_b32 s16, s16, 3")
        e("s_add_u32 s16, s16, s4")
    e("v_mov_b32 v9, v0")
    e("v_lshrrev_b32 v1, 6, v0")
    e("v_and_b32 v0, 63, v0")
    e("s_nop 0")
    e("v_readfirstlane_b32 s20, v1")
    e("s_waitcnt lgkmcnt(0)")
    wsl, wsh = kaptr('ws')
    srd_off(8, wsl, wsh, WS['k'], 32*MB)
    srd_off(12, wsl, wsh, WS['ctx'], 16*MB)
    srd_off(32, wsl, wsh, WS['xh'], 2048*512*2)
    ql, qh = kaptr('wq'); srd(36, ql, qh, 512*4096*2)
    srd_off(56, wsl, wsh, WS['mod'], 3072*4)
    VK, VV, VW, VM, VL, VREL = 10, 11, 12, 13, 14, 15
    AV, AK, VMC, T = 16, 20, 28, 29
    Q, P, KF, O, S0, S1, MT0 = 32, 64, 80, 112, 176, 208, 240
    QA, R0, VX, AX = 32, 112, 13, 14
    VK4, NEGM, VFL = 248, 64, 28
    MODL = 65536
    e("v_and_b32 v2, 31, v0")
    e("v_lshrrev_b32 v3, 5, v0")
    e("s_lshl_b32 s22, s17, 7")
    e("s_lshl_b32 s23, s20, 5")
    e("s_add_u32 s22, s22, s23")
    e("v_add_u32 v4, s22, v2")
    e("v_lshlrev_b32 v6, 3, v9")
    e("s_mov_b32 s4, 2048")
    e(f"buffer_load_dwordx2 v[{MT0}:{MT0+1}], v6, s[56:59], s4 offen")
    e(f"buffer_load_dwordx2 v[{MT0+2}:{MT0+3}], v6, s[56:59], 0 offen")
    e("v_lshrrev_b32 v6, 4, v0")
    e("v_and_b32 v8, 15, v0")
    e("v_xor_b32 v7, v6, v8")
    e("v_lshlrev_b32 v1, 8, v6")
    for i in range(4):
        e(f"v_xor_b32 v8, {4*i}, v7")
        e(f"v_lshl_add_u32 v{VK4+i}, v8, 4, v1")
    e("v_bfe_u32 v7, v0, 2, 2")
    e("v_xor_b32 v7, v7, v6")
    e("v_and_b32 v8, 3, v0")
    e("v_lshlrev_b32 v7, 6, v7")
    e("v_lshl_add_u32 v7, v8, 4, v7")
    e(f"v_add_u32 v{VV}, v7, v1")
    e("v_lshlrev_b32 v1, 13, v6")
    e(f"v_add_u32 v{VW}, v7, v1")
    e("v_xor_b32 v7, v8, v6")
    e("v_lshrrev_b32 v1, 2, v0")
    e("v_lshlrev_b32 v1, 10, v1")
    e(f"v_lshl_add_u32 v{VX}, v7, 4, v1")
    e("s_lshl_b32 s25, s20, 10")
    e("s_lshl_b32 s44, s20, 11")
    e("s_lshl_b32 s45, s16, 8")
    e("s_lshl_b32 s4, s20, 15")
    e("s_add_u32 s45, s45, s4")
    e("s_lshl_b32 s48, s22, 10")
    e("s_lshl_b32 s21, s16, 19")
    e("s_lshl_b32 s23, s20, 12")
    e("s_add_u32 s24, s21, s23")
    e(f"s_add_u32 s26, s24, 0x{16*MB:x}")
    e("s_lshl_b32 s49, s20, 12")
    e("s_lshl_b32 s27, s17, 1")
    e("s_add_u32 s27, s27, 2")
    if os.environ.get('ATT_FLAT'): e(f"s_mov_b32 s27, {os.environ.get('ATT_FLAT')}")
    def kdma_l(buf):
        o = [[f"s_add_u32 m0, s49, {buf*16384}", "s_nop 0", f"buffer_load_dwordx4 v{VK4}, s[8:11], s24 offen lds"]]
        for i in range(1, 4):
            o.append([f"buffer_load_dwordx4 v{VK4+i}, s[8:11], s24 offen offset:{i*1024} lds"])
        o[-1].append("s_add_u32 s24, s24, 16384")
        return o
    def vdma_l(buf):
        o = [[f"s_add_u32 m0, s49, {32768 + buf*16384}", "s_nop 0", f"buffer_load_dwordx4 v{VV}, s[8:11], s26 offen lds"]]
        for i in range(1, 4):
            o.append([f"buffer_load_dwordx4 v{VV}, s[8:11], s26 offen offset:{i*1024} lds"])
        o[-1].append("s_add_u32 s26, s26, 16384")
        return o
    def kdma(buf):
        for p in kdma_l(buf):
            for x in p: e(x)
    def vdma(buf):
        for p in vdma_l(buf):
            for x in p: e(x)
    def dma_slot(j):
        if j == 16: kdma(0); return
        if j == 17: kdma(1); return
        if j == 18: vdma(0); return
        b = (j % 4) * 16384
        for i in range(2):
            e(f"s_add_u32 m0, s44, {b + i*1024}")
            e(f"s_add_u32 s4, s48, {i*16384 + j*64}")
            if os.environ.get('PRO_NODMA'): e("s_mov_b32 s4, 0x7f000000")
            if os.environ.get('PRO_NOX'): e("s_mov_b32 s4, 0x7f000000")
            e(f"buffer_load_dwordx4 v{VX}, s[32:35], s4 offen lds")
        for i in range(2):
            e(f"s_add_u32 m0, s25, {b + 8192 + i*4096}")
            e(f"s_add_u32 s4, s45, {(j*32 + i*16)*8192}")
            if os.environ.get('PRO_NODMA'): e("s_mov_b32 s4, 0x7f000000")
            if os.environ.get('PRO_NOW'): e("s_mov_b32 s4, 0x7f000000")
            e(f"buffer_load_dwordx4 v{VW}, s[36:39], s4 offen lds")
    for j in range(3): dma_slot(j)
    e("v_bfe_u32 v6, v0, 2, 2")
    e("v_bfe_u32 v8, v0, 4, 1")
    e("v_lshlrev_b32 v8, 5, v8")
    e("v_and_b32 v7, 1, v0")
    e("v_lshl_add_u32 v8, v7, 4, v8")
    e("v_bfe_u32 v7, v0, 1, 1")
    e("v_lshl_add_u32 v8, v7, 3, v8")
    e("v_lshl_add_u32 v7, v3, 3, v6")
    e("v_lshl_add_u32 v7, v7, 8, v8")
    for db in range(4):
        e(f"v_xor_b32 v1, {db}, v6")
        e(f"v_lshl_add_u32 v{AV+db}, v1, 6, v7")
    e("v_xor_b32 v7, v6, v3")
    e("v_lshlrev_b32 v1, 6, v2")
    e("v_add_u32 v1, s44, v1")
    e(f"v_lshl_add_u32 v{AX}, v7, 4, v1")
    e("v_xor_b32 v7, 2, v7")
    e(f"v_lshl_add_u32 v{AX+1}, v7, 4, v1")
    e("v_lshlrev_b32 v30, 5, v3")
    e(f"v_add_u32 v30, {MODL}, v30")
    e("s_waitcnt vmcnt(12)")
    if os.environ.get('ATT_EXIT') == '1': e("s_endpgm")
    if os.environ.get('ATT_EXIT') == '2': e("s_waitcnt vmcnt(0)"); e("s_endpgm")
    e(f"v_add_f32 v{MT0}, 1.0, v{MT0}")
    e(f"v_add_f32 v{MT0+1}, 1.0, v{MT0+1}")
    e(f"v_cvt_pk_bf16_f32 v{MT0}, v{MT0}, v{MT0+1}")
    e(f"v_and_b32 v{MT0+1}, 0xffff0000, v{MT0}")
    e(f"v_lshlrev_b32 v{MT0}, 16, v{MT0}")
    e("v_lshlrev_b32 v6, 3, v9")
    e(f"v_add_u32 v6, {MODL}, v6")
    e(f"ds_write_b64 v6, v[{MT0}:{MT0+1}]")
    e(f"ds_write_b64 v6, v[{MT0+2}:{MT0+3}] offset:2048")
    lnproj2(L, QA, R0, AX, AV, lg, False, dma_slot, 3)
    e("s_nop 15")
    if os.environ.get('ATT_EXIT') == '3': e("s_endpgm")
    csc = (128 ** -0.5) * 1.4426950408889634
    e(f"s_mov_b32 s28, 0x{f2u(csc):08x}")
    for i in range(32):
        e(f"v_mul_f32 v{QA+2*i}, s28, v{QA+2*i}")
        e(f"v_mul_f32 v{QA+2*i+1}, s28, v{QA+2*i+1}")
        e(f"v_cvt_pk_bf16_f32 v{Q+i}, v{QA+2*i}, v{QA+2*i+1}")
    e("v_lshlrev_b32 v6, 2, v3")
    e(f"v_sub_u32 v{VREL}, v4, v6")
    e("v_and_b32 v6, 15, v0")
    e("v_xor_b32 v6, v6, v3")
    e("v_lshlrev_b32 v7, 8, v2")
    for ds in range(8):
        e(f"v_xor_b32 v1, {2*ds}, v6")
        e(f"v_lshl_add_u32 v{AK+ds}, v1, 4, v7")
    e("v_bfe_u32 v6, v0, 2, 2")
    e("v_lshl_add_u32 v7, v3, 2, v6")
    e("v_lshl_add_u32 v7, v7, 8, v8")
    e("v_add_u32 v7, 32768, v7")
    for db in range(4):
        e(f"v_xor_b32 v1, {db}, v6")
        e(f"v_lshl_add_u32 v{AV+db}, v1, 6, v7")
    for i in range(64):
        e(f"v_mov_b32 v{O+i}, 0")
    for i in range(16):
        e(f"v_mov_b32 v{NEGM+i}, 0")
    e(f"v_mov_b32 v{VL}, 0")
    e(f"v_mov_b32 v{VFL}, 0xf149f2ca")
    e(f"s_mov_b32 s31, 0x{f2u(8.0):08x}")
    e("s_mov_b32 s29, 0")
    e("s_sub_u32 s30, s27, 2")
    e("s_mov_b32 s43, 0")
    SB = [S0, S1]
    def kitem(buf, q):
        if os.environ.get('ATT_NOLDS'): return lg.issue(0)
        g = q // 4; ds = (g % 2) * 4 + q % 4
        e(f"ds_read_b128 {vr(KF+(q%8)*4,4)}, v{AK+ds} offset:{buf*16384 + (g//2)*8192}")
        return lg.issue(1)
    def vitem(buf, p):
        if os.environ.get('ATT_NOLDS'): return lg.issue(0)
        t = p // 4; db = p % 4
        e(f"ds_read_b64_tr_b16 {vr(KF+(p%8)*4,2)}, v{AV+db} offset:{buf*16384 + t*4096}")
        e(f"ds_read_b64_tr_b16 {vr(KF+(p%8)*4+2,2)}, v{AV+db} offset:{buf*16384 + t*4096 + 2048}")
        return lg.issue(2)
    def qk_mfma(S, q):
        g = q // 4; ds = (g % 2) * 4 + q % 4; kb = g // 2
        c = vr(NEGM,16) if ds == 0 else vr(S+kb*16,16)
        return f"v_mfma_f32_32x32x16_bf16 {vr(S+kb*16,16)}, {vr(KF+(q%8)*4,4)}, {vr(Q+4*ds,4)}, {c}"
    def pv_mfma(S, p):
        t = p // 4; db = p % 4
        return f"v_mfma_f32_32x32x16_bf16 {vr(O+db*16,16)}, {vr(KF+(p%8)*4,4)}, {vr(S+8*t,4)}, {vr(O+db*16,16)}"
    uid = [0]
    def mask_max(S):
        uid[0] += 1
        lb = f"{L}_nm{uid[0]}"
        o = []
        o.append(("blk", [
            "s_cmp_lt_u32 s43, s30",
            f"s_cbranch_scc1 {lb}",
            f"v_subrev_u32 v{T}, s29, v{VREL}",
            f"v_mov_b32 v{T+1}, 0xf149f2ca"] +
            sum([[f"v_cmp_gt_i32 vcc, {kb*32 + (i//4)*8 + i%4}, v{T}", "s_nop 1",
                  f"v_cndmask_b32 v{S+kb*16+i}, v{S+kb*16+i}, v{T+1}, vcc"] for kb in range(2) for i in range(16)], []) +
            [f"{lb}:", "s_add_u32 s29, s29, 64", "s_add_u32 s43, s43, 1"]))
        o.append(f"v_max3_f32 v{T}, v{S}, v{S+1}, v{S+2}")
        o.append(f"v_max3_f32 v{T+1}, v{S+3}, v{S+4}, v{S+5}")
        for i in range(6, 30, 4):
            o.append(f"v_max3_f32 v{T}, v{T}, v{S+i}, v{S+i+1}")
            o.append(f"v_max3_f32 v{T+1}, v{T+1}, v{S+i+2}, v{S+i+3}")
        o.append(f"v_max3_f32 v{T}, v{T}, v{S+30}, v{S+31}")
        o.append(f"v_max_f32 v{T}, v{T}, v{T+1}")
        o.append(f"v_mov_b32 v{T+1}, v{T}")
        o.append("PAD")
        o.append("PAD")
        o.append(f"v_permlane32_swap_b32 v{T}, v{T+1}")
        o.append("PAD")
        o.append("PAD")
        o.append(f"v_max_f32 v{T}, v{T}, v{T+1}")
        o.append(f"v_cmp_lt_f32 s[40:41], s31, v{T}")
        return o
    def slowpath(S):
        uid[0] += 1
        lb = f"{L}_sp{uid[0]}"
        e("s_cmp_eq_u64 s[40:41], 0")
        e(f"s_cbranch_scc1 {lb}")
        e("s_nop 15")
        e(f"v_max_f32 v{T}, v{T}, v{VFL}")
        e(f"v_exp_f32 v{T+1}, -v{T}")
        e(f"v_mov_b32 v{VFL}, 0")
        e(f"v_mul_f32 v{VL}, v{VL}, v{T+1}")
        for i in range(64):
            e(f"v_mul_f32 v{O+i}, v{O+i}, v{T+1}")
        for i in range(32):
            e(f"v_sub_f32 v{S+i}, v{S+i}, v{T}")
        for i in range(16):
            e(f"v_sub_f32 v{NEGM+i}, v{NEGM+i}, v{T}")
        e("s_nop 1")
        lab(lb)
    def exps(S):
        o = []
        for t in range(4):
            b = S + t*8
            seq = []
            o.append(f"v_exp_f32 v{b}, v{b}")
            for i in range(1, 8):
                o.append(f"v_exp_f32 v{b+i}, v{b+i}")
                o.append(f"v_add_f32 v{VL}, v{VL}, v{b+i-1}")
                if i % 2 == 0:
                    o.append(f"v_cvt_pk_bf16_f32 v{b+(i-2)//2}, v{b+i-2}, v{b+i-1}")
            o.append("PAD")
            o.append(f"v_add_f32 v{VL}, v{VL}, v{b+7}")
            o.append(f"v_cvt_pk_bf16_f32 v{b+3}, v{b+6}, v{b+7}")
        return o
    def emit(x):
        if isinstance(x, tuple):
            for s_ in x[1]:
                if s_.endswith(":"): lab(s_[:-1])
                else: e(s_)
        elif x == "PAD": e("s_nop 0")
        else: e(x)
    def popf(lst, n):
        k = 0
        first = True
        while lst and k < n:
            x = lst.pop(0)
            if x == "PAD" and first:
                first = False
                continue
            first = False
            emit(x); k += 1
    def need(lst, t, S):
        for x in lst:
            if isinstance(x, str) and x.startswith("v_cvt_pk") and f"v{S+8*t+3}," in x: return True
        return False
    e("s_waitcnt vmcnt(8)")
    e("s_barrier")
    tk = [kitem(0, q) for q in range(8)]
    for q in range(16):
        lg.wait(tk[q])
        e(qk_mfma(S0, q))
        if q < 8: tk.append(kitem(0, q+8))
    e("s_waitcnt vmcnt(0)")
    e("s_barrier")
    kdma(0)
    vdma(1)
    tk = [kitem(1, q) for q in range(8)]
    for x in mask_max(S0): emit(x)
    e("s_mov_b64 s[40:41], -1")
    e("s_lshr_b32 s42, s27, 1")
    if os.environ.get('ATT_NOLOOP'): e(f"s_branch {L}_fin")
    if os.environ.get('ATT_STAMP'):
        e("s_memtime s[60:61]"); e("s_memrealtime s[62:63]"); e("s_waitcnt lgkmcnt(0)")
    lab(f"{L}_loop")
    for u in range(2):
        cur, nxt = SB[u], SB[u ^ 1]
        fill = exps(cur)
        mm = mask_max(nxt)
        slowpath(cur)
        if os.environ.get('ATT_NOVALU'): fill = []; mm = []
        def pop(lst, n):
            k = 0
            while lst and k < n:
                x = lst.pop(0)
                if x == "PAD":
                    continue
                emit(x); k += 1
        for q in range(16):
            lg.wait(tk[q])
            e(qk_mfma(nxt, q))
            if q < 8: tk.append(kitem(u ^ 1, q+8))
            else: tk.append(vitem(u, q-8))
            popf(fill, 3)
        tk = tk[16:]
        dm = []
        for p in range(16):
            if p % 4 == 0:
                while len(fill) > 0 and need(fill, p // 4, cur): emit(fill.pop(0))
                if any("v_cvt_pk" in y for y in out[-2:]): e("s_nop 1")
            lg.wait(tk[p])
            e(pv_mfma(cur, p))
            if p < 8: tk.append(vitem(u, p+8))
            elif p == 9:
                e("s_waitcnt vmcnt(0) lgkmcnt(0)")
                if not os.environ.get('ATT_NOBAR'): e("s_barrier")
                tk.append(kitem(u, 0)); tk.append(kitem(u, 1))
                dm = kdma_l(u ^ 1) + vdma_l(u)
                if os.environ.get('ATT_NODMA'): dm = [[] for _ in dm]
            elif p > 9:
                tk.append(kitem(u, p-8))
                for _ in range(2 if p < 12 else 1):
                    for x in dm.pop(0): e(x)
            if fill: popf(fill, 3)
            if p >= 2 and (not fill or p >= 8): popf(mm, 3 if p < 9 else 2)
        while fill: emit(fill.pop(0))
        while mm: emit(mm.pop(0))
        tk = tk[16:]
    e("s_sub_u32 s42, s42, 1")
    e("s_cmp_lg_u32 s42, 0")
    e(f"s_cbranch_scc1 {L}_loop")
    lab(f"{L}_fin")
    if os.environ.get('ATT_STAMP'):
        e("s_memtime s[96:97]"); e("s_memrealtime s[98:99]"); e("s_waitcnt lgkmcnt(0)")
        e("s_sub_u32 s60, s96, s60"); e("s_sub_u32 s62, s98, s62")
        dl, dh = kaptr('ws')
        srd_off(96, dl, dh, 200*MB, 1 << 20)
        e("v_mov_b32 v20, s60"); e("v_mov_b32 v21, s62"); e("v_mov_b32 v22, s27"); e("s_getreg_b32 s5, hwreg(HW_REG_HW_ID)"); e("s_getreg_b32 s4, hwreg(HW_REG_XCC_ID)"); e("s_lshl_b32 s4, s4, 28"); e("s_and_b32 s5, s5, 0xfffffff"); e("s_or_b32 s5, s5, s4"); e("v_mov_b32 v23, s5")
        e("s_lshl_b32 s4, s2, 6"); e("s_lshl_b32 s5, s20, 4"); e("s_add_u32 s4, s4, s5")
        e("v_mov_b32 v24, 0")
        e("buffer_store_dwordx4 v[20:23], v24, s[96:99], s4 offen")
    e("s_nop 15")
    e(f"v_mov_b32 v{T}, v{VL}")
    e("s_nop 1")
    e(f"v_permlane32_swap_b32 v{T}, v{VL}")
    e("s_nop 1")
    e(f"v_add_f32 v{T}, v{T}, v{VL}")
    e(f"v_rcp_f32 v{T}, v{T}")
    e("v_lshlrev_b32 v5, 13, v4")
    e("v_lshl_add_u32 v5, v3, 4, v5")
    e("s_lshl_b32 s23, s16, 8")
    for db in range(4):
        for h in range(2):
            a = O + db*16 + h*8
            for j in range(8):
                e(f"v_mul_f32 v{a+j}, v{a+j}, v{T}")
            for j in range(4):
                e(f"v_cvt_pk_bf16_f32 v{a+j}, v{a+2*j}, v{a+2*j+1}")
            e(f"buffer_store_dwordx4 {vr(a,4)}, v5, s[12:15], s23 offen offset:{(db*32+h*16)*2}")
    NQ = int(os.environ.get('PFQ', '4'))
    if NQ:
        e(f"s_cmp_ge_u32 s17, {NQ}")
        e(f"s_cbranch_scc1 {L}_nopf")
        e(f"s_mul_i32 s4, s16, {NQ}")
        e("s_add_u32 s4, s4, s17")
        e("s_lshl_b32 s4, s4, 12")
        e("v_lshlrev_b32 v5, 4, v9")
        e("v_add_u32 v5, s4, v5")
        RND = 32 * NQ * 4096
        for (nm, nb) in (('wo', 4096*512*2), ('win', 512*1376*2), ('wsp', 2048*2048*2), ('wout', 688*512*2)):
            pl, ph = kaptr(nm)
            srd(32, pl, ph, nb)
            for r_ in range((nb + RND - 1) // RND):
                e(f"s_mov_b32 s4, 0x{r_*RND:x}")
                e(f"buffer_load_dwordx4 v[16:19], v5, s[32:35], s4 offen")
        lab(f"{L}_nopf")
    e("s_waitcnt vmcnt(0)")
    lab(f"{L}_end")
    e("s_endpgm")
    end(name, (512,1,1), (256,1,1), 65536 + 4096, 256)
```

```python
import sys, struct
KA = dict(x=0, ckv=8, wq=16, wuk=24, wuv=32, wo=40, bx=48, win=56, wsp=64, bsp=72, wout=80, c=88, wmod=96, out=104, dbg=112, ws=120)
MB = 1 << 20
WS = dict(mod=0, k=20*MB, v=36*MB, ctx=52*MB, x1=68*MB, z=74*MB, z2n=80*MB, u=84*MB, xh=88*MB, st=92*MB)
out = []
def e(s): out.append("    " + s)
def lab(s): out.append(s + ":")
def raw(s): out.append(s)
kernels = []
def begin(name):
    raw(f".globl {name}"); raw(".p2align 8"); raw(f".type {name},@function"); lab(name)
def end(name, grid, block, lds, nv, ns=100):
    kernels.append((name, grid, block, lds, nv, ns))
def srd(d, lo, hi, nbytes):
    e(f"s_mov_b32 s{d}, s{lo}"); e(f"s_mov_b32 s{d+1}, s{hi}")
    e(f"s_mov_b32 s{d+2}, 0x{nbytes:x}"); e(f"s_mov_b32 s{d+3}, 0x00020000")
def srd_off(d, lo, hi, off, nbytes):
    e(f"s_add_u32 s{d}, s{lo}, 0x{off:x}"); e(f"s_addc_u32 s{d+1}, s{hi}, 0")
    e(f"s_mov_b32 s{d+2}, 0x{nbytes:x}"); e(f"s_mov_b32 s{d+3}, 0x00020000")
def vr(a, n): return f"v[{a}:{a+n-1}]"
def f2u(x): return struct.unpack("<I", struct.pack("<f", x))[0]
def kaptr(n):
    o = KA[n] // 4
    return 64 + o, 65 + o
def load_kargs():
    e("s_load_dwordx16 s[64:79], s[0:1], 0")
    e("s_load_dwordx16 s[80:95], s[0:1], 64")
def log2(x):
    assert x & (x - 1) == 0 and x > 0
    return x.bit_length() - 1
def sdiv(dst, src, d, tmp):
    if d & (d - 1) == 0:
        e(f"s_lshr_b32 s{dst}, s{src}, {log2(d)}")
    else:
        e(f"s_mov_b32 s{tmp}, 0x{(1 << 32) // d + 1:x}")
        e(f"s_mul_hi_u32 s{dst}, s{src}, s{tmp}")

def gelu8(a, t):
    for j in range(8):
        e(f"v_mul_f32 v{t+j}, v{a+j}, v{a+j}")
        e(f"v_fma_f32 v{t+j}, v{t+j}, s21, v1") if False else None
    for j in range(8):
        e(f"v_mul_f32 v{t+j}, s21, v{t+j}")
        e(f"v_add_f32 v{t+j}, s20, v{t+j}")
        e(f"v_mul_f32 v{t+j}, v{t+j}, v{a+j}")
        e(f"v_exp_f32 v{t+j}, v{t+j}")
    for j in range(8):
        e(f"v_add_f32 v{t+j}, 1.0, v{t+j}")
        e(f"v_rcp_f32 v{t+j}, v{t+j}")
    e("s_nop 0")
    for j in range(8):
        e(f"v_mul_f32 v{a+j}, v{t+j}, v{a+j}")

def gen_gemm(name, M, N, K, BM, BN, BK, GM, GN, S, A, B, epi, order='mn', withmod=False):
    NW = GM * GN
    nk = (K + BK - 1) // BK
    ks = BK // 16
    nbm, nbn = M // BM, (N + BN - 1) // BN
    ntile = nbm * nbn
    assert ntile % 8 == 0
    WM, WN = BM // GM, BN // GN
    MT, NT = WM // 32, WN // 32
    SW = min(BN, 128)
    RB = SW * 2
    CPS = SW // 32
    AROW = BK * 2
    ABYTES = BM * AROW
    BBYTES = BK * BN * 2
    BUF = ABYTES + BBYTES
    rowsA = 1024 // AROW
    rowsB = 1024 // RB
    nA, nB = BM // rowsA, BBYTES // 1024
    assert nA % NW == 0 and nB % NW == 0, (nA, nB, NW)
    nAi, nBi = nA // NW, nB // NW
    nper = nAi + nBi
    nj = BK // rowsB
    (Aptr, As, Abytes) = A
    (Bptrs, Bs, Bbytes, segN) = B
    L = f"L_{name}"
    begin(name)
    e(f"s_cmp_ge_u32 s2, {ntile}")
    e(f"s_cbranch_scc1 {L}_end")
    load_kargs()
    e("s_and_b32 s4, s2, 7")
    e("s_lshr_b32 s5, s2, 3")
    e(f"s_mul_i32 s4, s4, {ntile//8}")
    e("s_add_u32 s4, s4, s5")
    if order == 'mn':
        sdiv(28, 4, nbn, 5)
        e(f"s_mul_i32 s5, s28, {nbn}")
        e("s_sub_u32 s29, s4, s5")
    else:
        sdiv(29, 4, nbm, 5)
        e(f"s_mul_i32 s5, s29, {nbm}")
        e("s_sub_u32 s28, s4, s5")
    e(f"s_mul_i32 s28, s28, {BM}")
    e(f"s_mul_i32 s29, s29, {BN}")
    e("s_waitcnt lgkmcnt(0)")
    def ptr(spec):
        if spec[0] == 'ka':
            lo, hi = kaptr(spec[1]); return (lo, hi, 0)
        lo, hi = kaptr('ws'); return (lo, hi, WS[spec[1]])
    lo, hi, ex = ptr(Aptr)
    srd_off(8, lo, hi, ex, Abytes)
    if len(Bptrs) > 1:
        e(f"s_lshr_b32 s3, s29, {log2(segN)}")
        e(f"s_and_b32 s29, s29, {segN-1}")
    for si, sp in enumerate(Bptrs):
        lo, hi, ex = ptr(sp)
        if si == 0:
            e(f"s_add_u32 s12, s{lo}, 0x{ex:x}"); e(f"s_addc_u32 s13, s{hi}, 0")
        else:
            e(f"s_add_u32 s4, s{lo}, 0x{ex:x}"); e(f"s_addc_u32 s5, s{hi}, 0")
            e(f"s_cmp_eq_u32 s3, {si}")
            e("s_cselect_b32 s12, s4, s12"); e("s_cselect_b32 s13, s5, s13")
    e(f"s_mov_b32 s14, 0x{Bbytes:x}"); e("s_mov_b32 s15, 0x00020000")
    e("v_mov_b32 v9, v0")
    e("v_lshrrev_b32 v1, 6, v0")
    e("v_and_b32 v0, 63, v0")
    e("s_nop 0")
    e("v_readfirstlane_b32 s30, v1")
    if BK == 32:
        e("v_lshrrev_b32 v2, 2, v0"); e("v_and_b32 v3, 3, v0"); e("v_lshrrev_b32 v4, 4, v0"); e("v_xor_b32 v3, v3, v4")
    else:
        e("v_lshrrev_b32 v2, 3, v0"); e("v_and_b32 v3, 7, v0"); e("v_lshrrev_b32 v4, 4, v0")
        e("s_and_b32 s4, s30, 1"); e("s_lshl_b32 s4, s4, 2"); e("v_or_b32 v4, s4, v4"); e("v_xor_b32 v3, v3, v4")
    e(f"s_mov_b32 s4, {As}")
    e("v_mul_lo_u32 v2, v2, s4")
    e("v_lshl_add_u32 v2, v3, 4, v2")
    if RB == 256:
        e("v_lshrrev_b32 v3, 4, v0"); e("v_bfe_u32 v4, v0, 2, 2"); e("v_xor_b32 v4, v4, v3"); e("v_and_b32 v5, 3, v0")
    else:
        e("v_lshrrev_b32 v3, 3, v0"); e("v_bfe_u32 v4, v0, 2, 1"); e("v_bfe_u32 v5, v0, 4, 1"); e("v_xor_b32 v4, v4, v5"); e("v_and_b32 v5, 3, v0")
    e(f"s_mov_b32 s4, {Bs}")
    e("v_mul_lo_u32 v3, v3, s4")
    e("v_lshl_add_u32 v3, v4, 6, v3")
    e("v_lshl_add_u32 v3, v5, 4, v3")
    SA, SB = 32, 40
    e(f"s_mul_i32 s4, s30, {rowsA}")
    e("s_add_u32 s4, s4, s28")
    e(f"s_mul_i32 s4, s4, {As}")
    for t in range(nAi):
        e(f"s_add_u32 s{SA+t}, s4, {t*NW*rowsA*As}")
    for t in range(nBi):
        e(f"s_add_u32 s4, s30, {NW*t}")
        e(f"s_and_b32 s5, s4, {nj-1}")
        e(f"s_lshr_b32 s4, s4, {log2(nj)}")
        e(f"s_mul_i32 s5, s5, {rowsB*Bs}")
        e(f"s_mul_i32 s4, s4, {SW*2}")
        e("s_add_u32 s4, s4, s5")
        e("s_lshl_b32 s5, s29, 1")
        e(f"s_add_u32 s{SB+t}, s4, s5")
    e("s_lshl_b32 s48, s30, 10")
    sdiv(49, 30, GN, 4)
    e(f"s_mul_i32 s4, s49, {GN}")
    e("s_sub_u32 s50, s30, s4")
    e("v_and_b32 v4, 31, v0")
    e("v_lshrrev_b32 v5, 5, v0")
    if BK == 32: e("v_bfe_u32 v6, v0, 2, 2")
    else: e("v_bfe_u32 v6, v0, 1, 3")
    e("v_xor_b32 v6, v6, v5")
    e(f"s_mul_i32 s4, s49, {WM*AROW}")
    e(f"v_lshlrev_b32 v7, {log2(AROW)}, v4")
    e("v_add_u32 v7, s4, v7")
    for s in range(ks):
        e(f"v_xor_b32 v8, {2*s}, v6")
        e(f"v_lshl_add_u32 v{10+s}, v8, 4, v7")
    e("v_bfe_u32 v4, v0, 2, 2")
    e("v_lshl_add_u32 v8, v5, 3, v4")
    e(f"v_lshlrev_b32 v8, {log2(RB)}, v8")
    e("v_bfe_u32 v6, v0, 4, 1")
    e("v_lshl_add_u32 v8, v6, 5, v8")
    e("v_and_b32 v6, 1, v0")
    e("v_lshl_add_u32 v8, v6, 4, v8")
    e("v_bfe_u32 v6, v0, 1, 1")
    e("v_lshl_add_u32 v8, v6, 3, v8")
    e(f"v_add_u32 v8, {ABYTES}, v8")
    if RB == 256: e("v_mov_b32 v6, v4")
    else: e("v_lshrrev_b32 v6, 1, v4")
    for nt in range(NT):
        e(f"s_mul_i32 s4, s50, {NT}")
        e(f"s_add_u32 s4, s4, {nt}")
        e(f"s_and_b32 s5, s4, {CPS-1}")
        e(f"s_lshr_b32 s4, s4, {log2(CPS)}")
        e(f"s_mul_i32 s4, s4, {BK*RB}")
        e("v_xor_b32 v7, s5, v6")
        e(f"v_lshl_add_u32 v{14+nt}, v7, 6, v8")
        e(f"v_add_u32 v{14+nt}, s4, v{14+nt}")
    NBANK = (S*BUF + 65535) // 65536
    for b in range(1, NBANK):
        for i in range(8):
            if (i < 4 and i < ks) or (i >= 4 and i - 4 < NT):
                e(f"v_add_u32 v{10+8*b+i}, {65536*b}, v{10+i}")
    def ad(reg, off):
        return f"v{reg + 8*(off >> 16)} offset:{off & 65535}"
    FSZ = (MT + NT) * 4
    FB = 10 + 8*NBANK
    ACC = FB + 2 * FSZ
    def acc(mt, nt): return ACC + (mt*NT + nt) * 16
    def fa(st, mt): return FB + st*FSZ + mt*4
    def fb(st, nt): return FB + st*FSZ + MT*4 + nt*4
    PF = []
    import os
    if epi == 'kv' and os.environ.get('PF', '1') == '1':
        for (nm, nb) in (('wq', 4096*512*2),):
            for r_ in range((nb + 2*MB - 1) // (2*MB)):
                PF.append((nm, nb, r_*2*MB))
        assert len(PF) <= nk - S
    PFV = ACC + MT*NT*16
    PF0 = nk - len(PF)
    def extra(j): return 1 if (PF0 <= j < nk) else 0
    def dma_pieces(buf, j=-1):
        ps = []
        for t in range(nAi):
            ps.append([f"s_add_u32 m0, s48, {buf*BUF + t*NW*1024}",
                       f"s_add_u32 s{SA+t}, s{SA+t}, {BK*2}",
                       f"buffer_load_dwordx4 v2, s[8:11], s{SA+t} offen lds"])
        for t in range(nBi):
            ps.append([f"s_add_u32 m0, s48, {buf*BUF + ABYTES + t*NW*1024}",
                       f"s_add_u32 s{SB+t}, s{SB+t}, {BK*Bs}",
                       f"buffer_load_dwordx4 v3, s[12:15], s{SB+t} offen lds"])
        if extra(j):
            nm, nb, off = PF[j - PF0]
            pl, ph = kaptr(nm)
            ps.append([f"s_mov_b32 s20, s{pl}", f"s_mov_b32 s21, s{ph}", f"s_mov_b32 s22, 0x{nb:x}", "s_mov_b32 s23, 0x00020000",
                       f"s_mov_b32 s24, 0x{off:x}",
                       f"buffer_load_dwordx4 {vr(PFV,4)}, v7, s[20:23], s24 offen"])
        return ps
    def dma(buf):
        for pc in dma_pieces(buf):
            for x in pc: e(x)
    pend = []
    cnt = [0, nper]
    NMF = ks * MT * NT
    def tick():
        cnt[0] += 1
        while pend and cnt[0] >= 1 + (cnt[1] - len(pend)) * (NMF - 1) // cnt[1]:
            for x in pend.pop(0): e(x)
    def reads(buf, s, st):
        for mt in range(MT):
            e(f"ds_read_b128 {vr(fa(st,mt),4)}, {ad(10+s, buf*BUF + mt*32*AROW)}")
        for nt in range(NT):
            e(f"ds_read_b64_tr_b16 {vr(fb(st,nt),2)}, {ad(14+nt, buf*BUF + s*16*RB)}")
            e(f"ds_read_b64_tr_b16 {vr(fb(st,nt)+2,2)}, {ad(14+nt, buf*BUF + s*16*RB + 4*RB)}")
    nrd = MT + 2*NT
    import os
    def mf(st, mt, nt):
        if os.environ.get('NOMFMA') == name:
            tick(); return
        e(f"v_mfma_f32_32x32x16_bf16 {vr(acc(mt,nt),16)}, {vr(fb(st,nt),4)}, {vr(fa(st,mt),4)}, {vr(acc(mt,nt),16)}")
        tick()
    for t in range(nAi): e(f"s_sub_u32 s{SA+t}, s{SA+t}, {BK*2}")
    for t in range(nBi): e(f"s_sub_u32 s{SB+t}, s{SB+t}, {BK*Bs}")
    SS = min(S, nk)
    if withmod:
        cl, ch = kaptr('c'); wl, wh = kaptr('wmod'); sl, sh = kaptr('ws')
        srd(16, cl, ch, 1024)
        srd(20, wl, wh, 512*3072*2)
        srd_off(24, sl, sh, WS['mod'], 3072*4)
        T = ACC
        e(f"v_lshlrev_b32 v{T}, 1, v9")
        e(f"buffer_load_ushort v{T+1}, v{T}, s[16:19], 0 offen")
        e("s_mov_b32 s4, 6144")
        e(f"v_mul_lo_u32 v{T}, v9, s4")
        e("s_mul_i32 s4, s2, 24")
        e(f"buffer_load_dwordx4 {vr(T+2,4)}, v{T}, s[20:23], s4 offen")
        e(f"buffer_load_dwordx2 {vr(T+6,2)}, v{T}, s[20:23], s4 offen offset:16")
        xl, xh_ = kaptr('x'); srd(52, xl, xh_, 2048*512*2)
        srd_off(56, sl, sh, WS['xh'], 2048*512*2)
        e("s_lshl_b32 s51, s2, 3")
        e("s_add_u32 s51, s51, s30")
        e("s_lshl_b32 s51, s51, 10")
        e(f"v_lshlrev_b32 v{T+32}, 4, v0")
        e(f"buffer_load_dwordx4 {vr(T+36,4)}, v{T+32}, s[52:55], s51 offen")
    for t in range(SS):
        dma(t)
    if withmod:
        T = ACC
        e(f"s_waitcnt vmcnt({SS*nper})")
        e(f"v_lshlrev_b32 v{T+1}, 16, v{T+1}")
        e(f"v_mul_f32 v{T}, 0xbfb8aa3b, v{T+1}")
        e(f"v_exp_f32 v{T}, v{T}")
        e("s_nop 0")
        e(f"v_add_f32 v{T}, 1.0, v{T}")
        e(f"v_rcp_f32 v{T}, v{T}")
        e("s_nop 0")
        e(f"v_mul_f32 v{T+1}, v{T+1}, v{T}")
        e(f"v_cvt_pk_bf16_f32 v{T+1}, v{T+1}, v{T+1}")
        e(f"v_lshlrev_b32 v{T+1}, 16, v{T+1}")
        P = T + 8
        for j in range(6):
            e(f"v_lshlrev_b32 v{P+2*j}, 16, v{T+2+j}")
            e(f"v_and_b32 v{P+2*j+1}, 0xffff0000, v{T+2+j}")
        for j in range(12):
            e(f"v_mul_f32 v{P+j}, v{P+j}, v{T+1}")
        for dpp in ("row_shr:1", "row_shr:2", "row_shr:4", "row_shr:8", "row_bcast:15 row_mask:0xa", "row_bcast:31 row_mask:0xc"):
            for j in range(12):
                e(f"v_add_f32_dpp v{P+j}, v{P+j}, v{P+j} {dpp}" + (" bound_ctrl:0" if "shr" in dpp else ""))
        e(f"v_mov_b32 v{T}, s48")
        e(f"v_lshrrev_b32 v{T}, 4, v{T}")
        e(f"v_add_u32 v{T}, {S*BUF}, v{T}")
        e("v_cmp_eq_u32 vcc, 63, v0")
        e("s_and_saveexec_b64 s[6:7], vcc")
        for j in range(3):
            e(f"ds_write_b128 v{T}, {vr(P+4*j,4)} offset:{16*j}")
        e("s_mov_b64 exec, s[6:7]")
        XA = T + 40
        def wsum(r):
            for dpp in ("row_shr:1", "row_shr:2", "row_shr:4", "row_shr:8", "row_bcast:15 row_mask:0xa", "row_bcast:31 row_mask:0xc"):
                e("s_nop 1")
                e(f"v_add_f32_dpp v{r}, v{r}, v{r} {dpp}" + (" bound_ctrl:0" if "shr" in dpp else ""))
            e("s_nop 1")
            e(f"v_readlane_b32 s4, v{r}, 63")
            e("s_nop 1")
            e(f"v_mov_b32 v{r}, s4")
        for i in range(4):
            e(f"v_lshlrev_b32 v{XA+2*i}, 16, v{T+36+i}")
            e(f"v_and_b32 v{XA+2*i+1}, 0xffff0000, v{T+36+i}")
        e(f"v_add_f32 v{T+33}, v{XA}, v{XA+1}")
        for i in range(2, 8): e(f"v_add_f32 v{T+33}, v{T+33}, v{XA+i}")
        wsum(T+33)
        e(f"v_mul_f32 v{T+33}, 0x{f2u(1/512):08x}, v{T+33}")
        for i in range(8): e(f"v_sub_f32 v{XA+i}, v{XA+i}, v{T+33}")
        e(f"v_mul_f32 v{T+33}, v{XA}, v{XA}")
        for i in range(1, 8): e(f"v_fmac_f32 v{T+33}, v{XA+i}, v{XA+i}")
        wsum(T+33)
        e(f"v_mul_f32 v{T+33}, 0x{f2u(1/512):08x}, v{T+33}")
        e(f"v_add_f32 v{T+33}, 0x{f2u(1e-5):08x}, v{T+33}")
        e(f"v_rsq_f32 v{T+33}, v{T+33}")
        e("s_nop 0")
        for i in range(8): e(f"v_mul_f32 v{XA+i}, v{XA+i}, v{T+33}")
        for i in range(4): e(f"v_cvt_pk_bf16_f32 v{T+36+i}, v{XA+2*i}, v{XA+2*i+1}")
        e(f"buffer_store_dwordx4 {vr(T+36,4)}, v{T+32}, s[56:59], s51 offen")
        e("s_waitcnt lgkmcnt(0)")
    e(f"s_waitcnt vmcnt({(SS-1)*nper + (1 if withmod else 0)})")
    e("s_barrier")
    if withmod:
        T = ACC
        e("v_cmp_gt_u32 vcc, 12, v9")
        e("s_and_saveexec_b64 s[6:7], vcc")
        e(f"s_cbranch_execz {L}_nomod")
        e(f"v_lshlrev_b32 v{T}, 2, v9")
        e(f"v_add_u32 v{T+9}, {S*BUF}, v{T}")
        for w in range(8):
            e(f"ds_read_b32 v{T+1+w}, v{T+9} offset:{w*64}")
        e("s_waitcnt lgkmcnt(0)")
        for w in range(1, 8):
            e(f"v_add_f32 v{T+1}, v{T+1}, v{T+1+w}")
        e(f"v_cvt_pk_bf16_f32 v{T+1}, v{T+1}, v{T+1}")
        e(f"v_lshlrev_b32 v{T+1}, 16, v{T+1}")
        e("s_mul_i32 s4, s2, 48")
        e(f"buffer_store_dword v{T+1}, v{T}, s[24:27], s4 offen")
        lab(f"{L}_nomod")
        e("s_mov_b64 exec, s[6:7]")
    reads(0, 0, 0)
    for i in range(MT*NT*16):
        e(f"v_mov_b32 v{ACC+i}, 0")
    def stage(u, dodma, last, vm):
        buf = u % S
        for s in range(ks):
            st = s & 1
            ops = [(mt, nt) for mt in range(MT) for nt in range(NT)]
            if s < ks - 1:
                reads(buf, s+1, st ^ 1)
                e(f"s_waitcnt lgkmcnt({nrd})")
                for (mt, nt) in ops: mf(st, mt, nt)
            else:
                e("s_waitcnt lgkmcnt(0)")
                if last:
                    for (mt, nt) in ops: mf(st, mt, nt)
                else:
                    mf(st, *ops[0])
                    while pend:
                        for x in pend.pop(0): e(x)
                    e(f"s_waitcnt vmcnt({vm})")
                    e("s_barrier")
                    cnt[0] = 0
                    if dodma:
                        pend.extend(dma_pieces(buf, u + S if PF else -1)); cnt[1] = len(pend)
                    reads((u+1) % S, 0, st ^ 1)
                    for (mt, nt) in ops[1:]: mf(st, mt, nt)
    nmain = max(nk - S, 0)
    r = nmain % S
    if r == 0 and nmain > 0: r = S
    def vmx(u): return sum(nper + extra(j) for j in range(u+2, min(u+S-1, nk-1)+1)) + extra(u+1)
    if PF:
        r = nmain
        e("v_lshlrev_b32 v7, 4, v9")
        e("s_lshl_b32 s7, s2, 13")
        e("v_add_u32 v7, s7, v7")
    for u in range(r):
        stage(u, True, False, vmx(u))
    if nmain - r > 0:
        e(f"s_mov_b32 s31, {(nmain - r)//S}")
        lab(f"{L}_loop")
        for u in range(r, r + S):
            stage(u, True, False, (S-2)*nper)
        e("s_sub_u32 s31, s31, 1")
        e("s_cmp_lg_u32 s31, 0")
        e(f"s_cbranch_scc1 {L}_loop")
    for u in range(nmain, nk):
        stage(u, False, u == nk-1, vmx(u))
    e("s_nop 15")
    e("v_and_b32 v4, 31, v0")
    e(f"s_mul_i32 s4, s49, {WM}")
    e("s_add_u32 s4, s4, s28")
    e("v_add_u32 v4, s4, v4")
    e(f"s_mul_i32 s5, s50, {WN}")
    e("v_lshrrev_b32 v5, 5, v0")
    e("s_add_u32 s6, s5, s29")
    wsl, wsh = kaptr('ws')
    def colvalid_begin(nt, h, lbl):
        if N % BN == 0: return
        e(f"s_add_u32 s7, s6, {nt*32+h*16+16}")
        e(f"s_cmp_gt_u32 s7, {N}")
        e(f"s_cbranch_scc1 {lbl}")
    def pack8(dst, a):
        for j in range(4):
            e(f"v_cvt_pk_bf16_f32 v{dst+j}, v{a+2*j}, v{a+2*j+1}")
    def unpack8(dst, src):
        for j in range(4):
            e(f"v_lshlrev_b32 v{dst+2*j}, 16, v{src+j}")
            e(f"v_and_b32 v{dst+2*j+1}, 0xffff0000, v{src+j}")
    import os
    if os.environ.get('NOEPI') == name:
        e("s_endpgm")
    if epi == 'kv':
        srd_off(16, wsl, wsh, WS['k'], 32*MB)
        e("s_lshl_b32 s7, s3, 24")
        e("s_lshr_b32 s4, s6, 7")
        e("s_lshl_b32 s4, s4, 19")
        e("s_add_u32 s7, s7, s4")
        e("s_and_b32 s4, s6, 127")
        e("s_lshl_b32 s4, s4, 1")
        e("s_add_u32 s7, s7, s4")
        e("v_lshlrev_b32 v6, 8, v4")
        e("v_lshl_add_u32 v6, v5, 4, v6")
        e("v_add_u32 v6, s7, v6")
        assert WN <= 128
        k = 0
        for mt in range(MT):
            e(f"s_mov_b32 s7, {mt*32*256}")
            for nt in range(NT):
                for h in range(2):
                    t = 8 + (k % 2) * 4; k += 1
                    pack8(t, acc(mt, nt) + h*8)
                    e(f"buffer_store_dwordx4 {vr(t,4)}, v6, s[16:19], s7 offen offset:{(nt*32+h*16)*2} {os.environ.get('KVST','')}")
    elif epi in ('oproj', 'final'):
        gi = 2 if epi == 'oproj' else 5
        srd_off(20, wsl, wsh, WS['mod'], 3072*4)
        if epi == 'oproj':
            xl, xh = kaptr('x'); srd(24, xl, xh, 2048*512*2)
            srd_off(16, wsl, wsh, WS['x1'], 2048*512*2)
        else:
            srd_off(24, wsl, wsh, WS['x1'], 2048*512*2)
            ol, oh = kaptr('out'); srd(16, ol, oh, 2048*512*2)
        e("v_lshlrev_b32 v5, 3, v5")
        e("v_add_u32 v5, s6, v5")
        e("v_lshlrev_b32 v7, 2, v5")
        e("v_lshlrev_b32 v6, 9, v4")
        e("v_add_u32 v6, v6, v5")
        e("v_lshlrev_b32 v6, 1, v6")
        e(f"s_mov_b32 s7, {gi*2048}")
        G0 = ACC + MT*NT*16
        X0 = G0 + NT*16
        for nt in range(NT):
            for h in range(2):
                e(f"buffer_load_dwordx4 {vr(G0+(nt*2+h)*8,4)}, v7, s[20:23], s7 offen offset:{(nt*32+h*16)*4}")
                e(f"buffer_load_dwordx4 {vr(G0+(nt*2+h)*8+4,4)}, v7, s[20:23], s7 offen offset:{(nt*32+h*16)*4+16}")
        for mt in range(MT):
            e(f"s_mov_b32 s4, {mt*32*1024}")
            for nt in range(NT):
                for h in range(2):
                    e(f"buffer_load_dwordx4 {vr(X0+((mt*NT+nt)*2+h)*4,4)}, v6, s[24:27], s4 offen offset:{(nt*32+h*16)*2}")
        if epi == 'oproj':
            assert WN == 32
            srd_off(28, wsl, wsh, WS['st'], 2048*128)
            e("s_mov_b32 s5, 0x3f803f80")
            e("s_lshr_b32 s4, s6, 2")
            e("v_lshlrev_b32 v20, 7, v4")
            e("v_add_u32 v20, s4, v20")
        e("s_waitcnt vmcnt(0)")
        for mt in range(MT):
            e(f"s_mov_b32 s4, {mt*32*1024}")
            for nt in range(NT):
                for h in range(2):
                    a = acc(mt, nt) + h*8
                    xr = X0 + ((mt*NT+nt)*2+h)*4
                    g = G0 + (nt*2+h)*8
                    unpack8(8, xr)
                    for j in range(8):
                        e(f"v_fmac_f32 v{8+j}, v{g+j}, v{a+j}")
                    pack8(xr, 8)
                    e(f"buffer_store_dwordx4 {vr(xr,4)}, v6, s[16:19], s4 offen offset:{(nt*32+h*16)*2}")
                    if epi == 'oproj':
                        for j in range(4):
                            first = (nt == 0 and h == 0 and j == 0)
                            e(f"v_dot2_f32_bf16 v16, v{xr+j}, s5, " + ("0" if first else "v16"))
                            e(f"v_dot2_f32_bf16 v17, v{xr+j}, v{xr+j}, " + ("0" if first else "v17"))
            if epi == 'oproj':
                e("s_nop 4")
                e("v_mov_b32 v18, v16"); e("v_mov_b32 v19, v17")
                e("s_nop 1")
                e("v_permlane32_swap_b32 v16, v18")
                e("v_permlane32_swap_b32 v17, v19")
                e("s_nop 1")
                e("v_add_f32 v16, v16, v18"); e("v_add_f32 v17, v17, v19")
                e(f"s_mov_b32 s4, {mt*32*128}")
                e("buffer_store_dwordx2 v[16:17], v20, s[28:31], s4 offen")
        nvx = X0 + MT*NT*8
    elif epi == 'sp':
        bl, bh = kaptr('bsp')
        srd(20, bl, bh, 2048*2)
        srd_off(24, wsl, wsh, WS['z'], 2048*1376*2)
        srd_off(16, wsl, wsh, WS['u'], 2048*704*2)
        e("v_lshlrev_b32 v5, 3, v5")
        e("v_add_u32 v5, s6, v5")
        e("s_mov_b32 s4, 2752")
        e("v_mul_lo_u32 v6, v4, s4")
        e("v_lshl_add_u32 v6, v5, 1, v6")
        e("s_mov_b32 s4, 1408")
        e("v_mul_lo_u32 v7, v4, s4")
        e("v_lshl_add_u32 v7, v5, 1, v7")
        e("v_lshlrev_b32 v8, 1, v4")
        for mt in range(MT):
            e(f"buffer_load_ushort v{16+mt}, v8, s[20:23], 0 offen offset:{mt*64}")
        X0 = ACC + MT*NT*16
        for mt in range(MT):
            e(f"s_mov_b32 s7, {mt*32*2752}")
            for nt in range(NT):
                for h in range(2):
                    e(f"buffer_load_dwordx4 {vr(X0+((mt*NT+nt)*2+h)*4,4)}, v6, s[24:27], s7 offen offset:{(nt*32+h*16)*2}")
        e("s_waitcnt vmcnt(0)")
        for mt in range(MT):
            e(f"v_lshlrev_b32 v{16+mt}, 16, v{16+mt}")
        for nt in range(NT):
            for h in range(2):
                lbl = f"{L}_sk{nt}{h}"
                colvalid_begin(nt, h, lbl)
                for mt in range(MT):
                    a = acc(mt, nt) + h*8
                    xr = X0 + ((mt*NT+nt)*2+h)*4
                    unpack8(8, xr)
                    for j in range(8):
                        e(f"v_add_f32 v{a+j}, v{a+j}, v{16+mt}")
                        e(f"v_mul_f32 v{8+j}, v{8+j}, v{a+j}")
                    pack8(xr, 8)
                    e(f"s_mov_b32 s7, {mt*32*1408}")
                    e(f"buffer_store_dwordx4 {vr(xr,4)}, v7, s[16:19], s7 offen offset:{(nt*32+h*16)*2}")
                if N % BN:
                    e(f"s_branch {lbl}_d")
                    lab(lbl)
                    for j in range(4): e(f"v_mov_b32 v{8+j}, 0")
                    for mt in range(MT):
                        e(f"s_mov_b32 s7, {mt*32*1408}")
                        e(f"buffer_store_dwordx4 v[8:11], v7, s[16:19], s7 offen offset:{(nt*32+h*16)*2}")
                    lab(f"{lbl}_d")
        nvx = X0 + MT*NT*8
    if epi == 'kv': e("s_waitcnt vmcnt(0)")
    lab(f"{L}_end")
    e("s_endpgm")
    nv = ACC + MT*NT*16 + (4 if PF else 0)
    if epi in ('oproj', 'final', 'sp'): nv = max(nv, nvx)
    lds = S * BUF + (512 if withmod else 0)
    end(name, (ntile,1,1), (64*NW,1,1), lds, nv)
```

```python
from v2_common import *

class LG:
    def __init__(self): self.n = 0
    def issue(self, k=1):
        self.n += k; return self.n
    def wait(self, ticket):
        left = self.n - ticket
        e(f"s_waitcnt lgkmcnt({min(left, 15)})")
    def waitall(self):
        e("s_waitcnt lgkmcnt(0)")

def lnproj_prologue(L, X, QA, WF, MT0, AW, xs_srd, xrow_v, lg, mod_lds, wchunk_dma, after_chunk, nchunks=4):
    T = 20
    e("v_mov_b32 v28, 0"); e("v_mov_b32 v29, 0")
    e("s_mov_b32 s44, 0x3f803f80")
    for i in range(128):
        e(f"v_dot2_f32_bf16 v28, v{X+i}, s44, v28")
        e(f"v_dot2_f32_bf16 v29, v{X+i}, v{X+i}, v29")
    e("v_mov_b32 v30, v28"); e("v_mov_b32 v31, v29")
    e("s_nop 1")
    e("v_permlane32_swap_b32 v28, v30")
    e("v_permlane32_swap_b32 v29, v31")
    e("s_nop 1")
    e("v_add_f32 v28, v28, v30")
    e("v_add_f32 v29, v29, v31")
    e(f"v_mul_f32 v28, 0x{f2u(1/512):08x}, v28")
    e(f"v_mul_f32 v29, 0x{f2u(1/512):08x}, v29")
    e("v_fma_f32 v29, -v28, v28, v29")
    e("v_max_f32 v29, 0, v29")
    e(f"v_add_f32 v29, 0x{f2u(1e-5):08x}, v29")
    e("v_rsq_f32 v29, v29")
    e("s_nop 0")
    e("v_mul_f32 v28, v28, v29")
    e("v_sub_f32 v28, 0, v28")
    import os
    if os.environ.get('ATT_EXIT') == '2': e("s_endpgm")
    e("v_lshlrev_b32 v30, 5, v3")
    e(f"v_add_u32 v30, {mod_lds}, v30")
    mod_lds = 0
    def modreads(s):
        e(f"ds_read_b128 {vr(MT0,4)}, v30 offset:{mod_lds + s*64}")
        e(f"ds_read_b128 {vr(MT0+4,4)}, v30 offset:{mod_lds + s*64 + 16}")
        e(f"ds_read_b128 {vr(MT0+8,4)}, v30 offset:{mod_lds + 2048 + s*64}")
        e(f"ds_read_b128 {vr(MT0+12,4)}, v30 offset:{mod_lds + 2048 + s*64 + 16}")
        return lg.issue(4)
    def hpart(s, half):
        for j in range(2):
            r = X + 4*s + 2*half + j
            a = T + 4*half + 2*j
            m = 4*half + 2*j
            e(f"v_lshlrev_b32 v{a}, 16, v{r}")
            e(f"v_and_b32 v{a+1}, 0xffff0000, v{r}")
            e(f"v_fma_f32 v{a}, v{a}, v29, v28")
            e(f"v_fma_f32 v{a+1}, v{a+1}, v29, v28")
            e(f"v_fma_f32 v{a}, v{a}, v{MT0+m}, v{MT0+8+m}")
            e(f"v_fma_f32 v{a+1}, v{a+1}, v{MT0+m+1}, v{MT0+8+m+1}")
            e(f"v_cvt_pk_bf16_f32 v{r}, v{a}, v{a+1}")
    def wreads(s, dbs):
        base = ((s // 8) % 2) * 32768 + (s % 8) * 4096
        for db in dbs:
            e(f"ds_read_b64_tr_b16 {vr(WF+db*4,2)}, v{AW+db} offset:{base}")
            e(f"ds_read_b64_tr_b16 {vr(WF+db*4+2,2)}, v{AW+db} offset:{base + 1024}")
        return lg.issue(2*len(dbs))
    def mf(s, db):
        c = "0" if s == 0 else vr(QA+db*16,16)
        e(f"v_mfma_f32_32x32x16_bf16 {vr(QA+db*16,16)}, {vr(WF+db*4,4)}, {vr(X+4*s,4)}, {c}")
    after_chunk(-1)
    tm = modreads(0)
    tw01 = wreads(0, [0, 1]); tw23 = wreads(0, [2, 3])
    lg.wait(tm)
    hpart(0, 0); hpart(0, 1)
    tm = modreads(1)
    NS = nchunks * 8
    for s in range(NS):
        lastc = (s % 8 == 7)
        lg.wait(tw01)
        mf(s, 0); mf(s, 1)
        if not lastc: tw01n = wreads(s+1, [0, 1])
        if s + 1 < NS:
            lg.wait(tm)
            hpart(s+1, 0)
        lg.wait(tw23)
        mf(s, 2); mf(s, 3)
        if not lastc: tw23n = wreads(s+1, [2, 3])
        if s + 1 < NS:
            hpart(s+1, 1)
            if s + 2 < NS: tm = modreads(s+2)
        if lastc:
            lg.waitall()
            after_chunk(s // 8)
            if s + 1 < NS:
                tw01n = wreads(s+1, [0, 1]); tw23n = wreads(s+1, [2, 3])
        if s + 1 < NS:
            tw01, tw23 = tw01n, tw23n

def lnproj2(L, QA, R0, AX, AW, lg, norm, dma_slot, nslots_after, nx=0, ND=4):
    XR = [R0, R0+4]; XH = [R0+8, R0+12]; WF = [R0+16, R0+32]; MT = [R0+48, R0+64]
    T = 20
    def xread(s):
        e(f"ds_read_b128 {vr(XR[s%2],4)}, v{AX+(s%2)} offset:{((s//2)%4)*16384}")
        return lg.issue(1)
    def modreads(s):
        m = MT[s%2]
        e(f"ds_read_b128 {vr(m,4)}, v30 offset:{s*64}")
        e(f"ds_read_b128 {vr(m+4,4)}, v30 offset:{s*64 + 16}")
        e(f"ds_read_b128 {vr(m+8,4)}, v30 offset:{2048 + s*64}")
        e(f"ds_read_b128 {vr(m+12,4)}, v30 offset:{2048 + s*64 + 16}")
        return lg.issue(4)
    def wreads(s):
        base = ((s//2)%4)*16384 + 8192 + (s%2)*4096
        for db in range(ND):
            e(f"ds_read_b64_tr_b16 {vr(WF[s%2]+db*4,2)}, v{AW+db} offset:{base}")
            e(f"ds_read_b64_tr_b16 {vr(WF[s%2]+db*4+2,2)}, v{AW+db} offset:{base + 1024}")
        return lg.issue(2*ND)
    def trans(s):
        o = []
        for j in range(4):
            r = XR[s%2] + j; a = T + 2*j; m = MT[s%2] + 2*j
            o.append(f"v_lshlrev_b32 v{a}, 16, v{r}")
            o.append(f"v_and_b32 v{a+1}, 0xffff0000, v{r}")
            if norm:
                o.append(f"v_fma_f32 v{a}, v{a}, v29, v28")
                o.append(f"v_fma_f32 v{a+1}, v{a+1}, v29, v28")
            o.append(f"v_fma_f32 v{a}, v{a}, v{m}, v{m+8}")
            o.append(f"v_fma_f32 v{a+1}, v{a+1}, v{m+1}, v{m+9}")
            o.append(f"v_cvt_pk_bf16_f32 v{XH[s%2]+j}, v{a}, v{a+1}")
        return o
    def mf(s, db):
        c = "0" if s == 0 else vr(QA+db*16,16)
        e(f"v_mfma_f32_32x32x16_bf16 {vr(QA+db*16,16)}, {vr(WF[s%2]+db*4,4)}, {vr(XH[s%2],4)}, {c}")
    e(f"s_waitcnt vmcnt({4 + nx}) lgkmcnt(0)")
    e("s_barrier")
    dma_slot(3)
    xread(0); t0 = modreads(0)
    xread(1); modreads(1)
    wreads(0)
    lg.wait(t0)
    for x in trans(0): e(x)
    for s in range(32):
        t = s // 2
        if s % 2 == 0 and t >= 1:
            nxt2 = t + 2
            ok = nxt2 <= 15 + nslots_after
            if t + 1 <= 15:
                e(f"s_waitcnt vmcnt({(4 + (nx if t == 1 else 0)) if ok else 0})")
            if t + 3 <= 15 + nslots_after:
                e("s_barrier")
                dma_slot(t + 3)
            elif t + 1 <= 15:
                e("s_barrier")
        n = 0
        import os
        if os.environ.get('PRO_NOCOMP'): continue
        if s + 2 < 32:
            xread(s+2); modreads(s+2); n += 5
        if s + 1 < 32:
            wreads(s+1); n += 2*ND
        e(f"s_waitcnt lgkmcnt({n})")
        fl = trans(s+1) if s + 1 < 32 else []
        per = (len(fl) + ND - 1) // ND
        for db in range(ND):
            mf(s, db)
            for _ in range(per):
                if fl: e(fl.pop(0))

def gen_attn():
    name = "attn_kernel"
    L = "L_attn"
    lg = LG()
    begin(name)
    e("s_cmp_ge_u32 s2, 512")
    e(f"s_cbranch_scc1 {L}_end")
    import os
    if os.environ.get('ATT_EXIT') == '0': e("s_endpgm")
    load_kargs()
    e("s_and_b32 s4, s2, 7")
    e("s_lshr_b32 s5, s2, 3")
    e("s_and_b32 s6, s5, 1")
    e("s_lshr_b32 s7, s5, 5")
    e("s_bfe_u32 s16, s5, 0x40001")
    e("s_lshl_b32 s17, s7, 4")
    e("s_or_b32 s16, s16, s17")
    e("s_xor_b32 s6, s6, s7")
    e("s_and_b32 s17, s16, 7")
    e("s_sub_u32 s18, 15, s17")
    e("s_cmp_eq_u32 s6, 0")
    e("s_cselect_b32 s17, s18, s17")
    import os
    if os.environ.get('ATT_HMAP') == '1':
        e("s_lshr_b32 s16, s16, 3")
        e("s_lshl_b32 s4, s4, 2")
        e("s_add_u32 s16, s16, s4")
    elif os.environ.get('ATT_HMAP') == '2':
        e("s_lshr_b32 s16, s2, 3")
        e("s_and_b32 s16, s16, 31")
    else:
        e("s_lshr_b32 s16, s16, 3")
        e("s_lshl_b32 s16, s16, 3")
        e("s_add_u32 s16, s16, s4")
    e("v_mov_b32 v9, v0")
    e("v_lshrrev_b32 v1, 6, v0")
    e("v_and_b32 v0, 63, v0")
    e("s_nop 0")
    e("v_readfirstlane_b32 s20, v1")
    e("s_waitcnt lgkmcnt(0)")
    wsl, wsh = kaptr('ws')
    srd_off(8, wsl, wsh, WS['k'], 32*MB)
    srd_off(12, wsl, wsh, WS['ctx'], 16*MB)
    srd_off(32, wsl, wsh, WS['xh'], 2048*512*2)
    ql, qh = kaptr('wq'); srd(36, ql, qh, 512*4096*2)
    srd_off(56, wsl, wsh, WS['mod'], 3072*4)
    VK, VV, VW, VM, VL, VREL = 10, 11, 12, 13, 14, 15
    AV, AK, VMC, T = 16, 20, 28, 29
    Q, P, KF, O, S0, S1, MT0 = 32, 64, 80, 112, 176, 208, 240
    QA, R0, VX, AX = 32, 112, 13, 14
    VK4, NEGM, VFL = 248, 64, 28
    MODL = 65536
    e("v_and_b32 v2, 31, v0")
    e("v_lshrrev_b32 v3, 5, v0")
    e("s_lshl_b32 s22, s17, 7")
    e("s_lshl_b32 s23, s20, 5")
    e("s_add_u32 s22, s22, s23")
    e("v_add_u32 v4, s22, v2")
    e("v_lshlrev_b32 v6, 3, v9")
    e("s_mov_b32 s4, 2048")
    e(f"buffer_load_dwordx2 v[{MT0}:{MT0+1}], v6, s[56:59], s4 offen")
    e(f"buffer_load_dwordx2 v[{MT0+2}:{MT0+3}], v6, s[56:59], 0 offen")
    e("v_lshrrev_b32 v6, 4, v0")
    e("v_and_b32 v8, 15, v0")
    e("v_xor_b32 v7, v6, v8")
    e("v_lshlrev_b32 v1, 8, v6")
    for i in range(4):
        e(f"v_xor_b32 v8, {4*i}, v7")
        e(f"v_lshl_add_u32 v{VK4+i}, v8, 4, v1")
    e("v_bfe_u32 v7, v0, 2, 2")
    e("v_xor_b32 v7, v7, v6")
    e("v_and_b32 v8, 3, v0")
    e("v_lshlrev_b32 v7, 6, v7")
    e("v_lshl_add_u32 v7, v8, 4, v7")
    e(f"v_add_u32 v{VV}, v7, v1")
    e("v_lshlrev_b32 v1, 13, v6")
    e(f"v_add_u32 v{VW}, v7, v1")
    e("v_xor_b32 v7, v8, v6")
    e("v_lshrrev_b32 v1, 2, v0")
    e("v_lshlrev_b32 v1, 6, v1")
    e(f"v_lshl_add_u32 v{VX}, v7, 4, v1")
    e("s_lshl_b32 s25, s20, 10")
    e("s_lshl_b32 s44, s20, 11")
    e("s_lshl_b32 s45, s16, 8")
    e("s_lshl_b32 s4, s20, 15")
    e("s_add_u32 s45, s45, s4")
    e("s_lshl_b32 s48, s22, 10")
    e("s_lshl_b32 s21, s16, 19")
    e("s_lshl_b32 s23, s20, 12")
    e("s_add_u32 s24, s21, s23")
    e(f"s_add_u32 s26, s24, 0x{16*MB:x}")
    e("s_lshl_b32 s49, s20, 12")
    e("s_lshl_b32 s27, s17, 1")
    e("s_add_u32 s27, s27, 2")
    if os.environ.get('ATT_FLAT'): e(f"s_mov_b32 s27, {os.environ.get('ATT_FLAT')}")
    TA = int(os.environ.get('ATT_TA', '0'))
    VT = 252
    def touch():
        if not TA: return []
        return [f"buffer_load_dword v{VT+1}, v{VT}, s[8:11], s50 offen", "s_add_u32 s50, s50, 16384"]
    if TA:
        e("s_lshr_b32 s4, s20, 1")
        e("s_lshl_b32 s4, s4, 24")
        e("s_add_u32 s50, s21, s4")
        e("s_and_b32 s4, s20, 1")
        e("s_lshl_b32 s4, s4, 13")
        e(f"v_lshlrev_b32 v{VT}, 7, v0")
        e(f"v_add_u32 v{VT}, s4, v{VT}")
    def kdma_l(buf):
        o = [[f"s_add_u32 m0, s49, {buf*16384}", "s_nop 0", f"buffer_load_dwordx4 v{VK4}, s[8:11], s24 offen lds"]]
        for i in range(1, 4):
            o.append([f"buffer_load_dwordx4 v{VK4+i}, s[8:11], s24 offen offset:{i*1024} lds"])
        o[-1].append("s_add_u32 s24, s24, 16384")
        return o
    def vdma_l(buf):
        o = [[f"s_add_u32 m0, s49, {32768 + buf*16384}", "s_nop 0", f"buffer_load_dwordx4 v{VV}, s[8:11], s26 offen lds"]]
        for i in range(1, 4):
            o.append([f"buffer_load_dwordx4 v{VV}, s[8:11], s26 offen offset:{i*1024} lds"])
        o[-1].append("s_add_u32 s26, s26, 16384")
        return o
    def kdma(buf):
        for p in kdma_l(buf):
            for x in p: e(x)
    def vdma(buf):
        for p in vdma_l(buf):
            for x in p: e(x)
    def dma_slot(j):
        if j == 16: kdma(0); return
        if j == 17: kdma(1); return
        if j == 18: vdma(0); return
        b = (j % 4) * 16384
        for i in range(2):
            e(f"s_add_u32 m0, s44, {b + i*1024}")
            e(f"s_add_u32 s4, s48, {i*16384 + j*1024}")
            if os.environ.get('PRO_NODMA'): e("s_mov_b32 s4, 0x7f000000")
            if os.environ.get('PRO_NOX'): e("s_mov_b32 s4, 0x7f000000")
            e(f"buffer_load_dwordx4 v{VX}, s[32:35], s4 offen lds")
        for i in range(2):
            e(f"s_add_u32 m0, s25, {b + 8192 + i*4096}")
            e(f"s_add_u32 s4, s45, {(j*32 + i*16)*8192}")
            if os.environ.get('PRO_NODMA'): e("s_mov_b32 s4, 0x7f000000")
            if os.environ.get('PRO_NOW'): e("s_mov_b32 s4, 0x7f000000")
            e(f"buffer_load_dwordx4 v{VW}, s[36:39], s4 offen lds")
    for j in range(3): dma_slot(j)
    for j in range(TA):
        for x in touch(): e(x)
    e("v_bfe_u32 v6, v0, 2, 2")
    e("v_bfe_u32 v8, v0, 4, 1")
    e("v_lshlrev_b32 v8, 5, v8")
    e("v_and_b32 v7, 1, v0")
    e("v_lshl_add_u32 v8, v7, 4, v8")
    e("v_bfe_u32 v7, v0, 1, 1")
    e("v_lshl_add_u32 v8, v7, 3, v8")
    e("v_lshl_add_u32 v7, v3, 3, v6")
    e("v_lshl_add_u32 v7, v7, 8, v8")
    for db in range(4):
        e(f"v_xor_b32 v1, {db}, v6")
        e(f"v_lshl_add_u32 v{AV+db}, v1, 6, v7")
    e("v_xor_b32 v7, v6, v3")
    e("v_lshlrev_b32 v1, 6, v2")
    e("v_add_u32 v1, s44, v1")
    e(f"v_lshl_add_u32 v{AX}, v7, 4, v1")
    e("v_xor_b32 v7, 2, v7")
    e(f"v_lshl_add_u32 v{AX+1}, v7, 4, v1")
    e("v_lshlrev_b32 v30, 5, v3")
    e(f"v_add_u32 v30, {MODL}, v30")
    e(f"s_waitcnt vmcnt({12 + TA})")
    if os.environ.get('ATT_EXIT') == '1': e("s_endpgm")
    if os.environ.get('ATT_EXIT') == '2': e("s_waitcnt vmcnt(0)"); e("s_endpgm")
    e(f"v_add_f32 v{MT0}, 1.0, v{MT0}")
    e(f"v_add_f32 v{MT0+1}, 1.0, v{MT0+1}")
    e(f"v_cvt_pk_bf16_f32 v{MT0}, v{MT0}, v{MT0+1}")
    e(f"v_and_b32 v{MT0+1}, 0xffff0000, v{MT0}")
    e(f"v_lshlrev_b32 v{MT0}, 16, v{MT0}")
    e("v_lshlrev_b32 v6, 3, v9")
    e(f"v_add_u32 v6, {MODL}, v6")
    e(f"ds_write_b64 v6, v[{MT0}:{MT0+1}]")
    e(f"ds_write_b64 v6, v[{MT0+2}:{MT0+3}] offset:2048")
    lnproj2(L, QA, R0, AX, AV, lg, False, dma_slot, 3, TA)
    e("s_nop 15")
    if os.environ.get('ATT_EXIT') == '3': e("s_endpgm")
    csc = (128 ** -0.5) * 1.4426950408889634
    e(f"s_mov_b32 s28, 0x{f2u(csc):08x}")
    for i in range(32):
        e(f"v_mul_f32 v{QA+2*i}, s28, v{QA+2*i}")
        e(f"v_mul_f32 v{QA+2*i+1}, s28, v{QA+2*i+1}")
        e(f"v_cvt_pk_bf16_f32 v{Q+i}, v{QA+2*i}, v{QA+2*i+1}")
    e("v_lshlrev_b32 v6, 2, v3")
    e(f"v_sub_u32 v{VREL}, v4, v6")
    e("v_and_b32 v6, 15, v0")
    e("v_xor_b32 v6, v6, v3")
    e("v_lshlrev_b32 v7, 8, v2")
    for ds in range(8):
        e(f"v_xor_b32 v1, {2*ds}, v6")
        e(f"v_lshl_add_u32 v{AK+ds}, v1, 4, v7")
    e("v_bfe_u32 v6, v0, 2, 2")
    e("v_lshl_add_u32 v7, v3, 2, v6")
    e("v_lshl_add_u32 v7, v7, 8, v8")
    e("v_add_u32 v7, 32768, v7")
    for db in range(4):
        e(f"v_xor_b32 v1, {db}, v6")
        e(f"v_lshl_add_u32 v{AV+db}, v1, 6, v7")
    for i in range(64):
        e(f"v_mov_b32 v{O+i}, 0")
    for i in range(16):
        e(f"v_mov_b32 v{NEGM+i}, 0")
    e(f"v_mov_b32 v{VL}, 0")
    e(f"v_mov_b32 v{VFL}, 0xf149f2ca")
    e(f"s_mov_b32 s31, 0x{f2u(8.0):08x}")
    e("s_mov_b32 s29, 0")
    e("s_sub_u32 s30, s27, 2")
    e("s_mov_b32 s43, 0")
    SB = [S0, S1]
    def kitem(buf, q):
        if os.environ.get('ATT_NOLDS'): return lg.issue(0)
        g = q // 4; ds = (g % 2) * 4 + q % 4
        e(f"ds_read_b128 {vr(KF+(q%8)*4,4)}, v{AK+ds} offset:{buf*16384 + (g//2)*8192}")
        return lg.issue(1)
    def vitem(buf, p):
        if os.environ.get('ATT_NOLDS'): return lg.issue(0)
        t = p // 4; db = p % 4
        e(f"ds_read_b64_tr_b16 {vr(KF+(p%8)*4,2)}, v{AV+db} offset:{buf*16384 + t*4096}")
        e(f"ds_read_b64_tr_b16 {vr(KF+(p%8)*4+2,2)}, v{AV+db} offset:{buf*16384 + t*4096 + 2048}")
        return lg.issue(2)
    def qk_mfma(S, q):
        g = q // 4; ds = (g % 2) * 4 + q % 4; kb = g // 2
        c = vr(NEGM,16) if ds == 0 else vr(S+kb*16,16)
        return f"v_mfma_f32_32x32x16_bf16 {vr(S+kb*16,16)}, {vr(KF+(q%8)*4,4)}, {vr(Q+4*ds,4)}, {c}"
    def pv_mfma(S, p):
        t = p // 4; db = p % 4
        return f"v_mfma_f32_32x32x16_bf16 {vr(O+db*16,16)}, {vr(KF+(p%8)*4,4)}, {vr(S+8*t,4)}, {vr(O+db*16,16)}"
    uid = [0]
    def mask_max(S):
        uid[0] += 1
        lb = f"{L}_nm{uid[0]}"
        o = []
        o.append(("blk", [
            "s_cmp_lt_u32 s43, s30",
            f"s_cbranch_scc1 {lb}",
            f"v_subrev_u32 v{T}, s29, v{VREL}",
            f"v_mov_b32 v{T+1}, 0xf149f2ca"] +
            sum([[f"v_cmp_gt_i32 vcc, {kb*32 + (i//4)*8 + i%4}, v{T}", "s_nop 1",
                  f"v_cndmask_b32 v{S+kb*16+i}, v{S+kb*16+i}, v{T+1}, vcc"] for kb in range(2) for i in range(16)], []) +
            [f"{lb}:", "s_add_u32 s29, s29, 64", "s_add_u32 s43, s43, 1"]))
        o.append(f"v_max3_f32 v{T}, v{S}, v{S+1}, v{S+2}")
        o.append(f"v_max3_f32 v{T+1}, v{S+3}, v{S+4}, v{S+5}")
        for i in range(6, 30, 4):
            o.append(f"v_max3_f32 v{T}, v{T}, v{S+i}, v{S+i+1}")
            o.append(f"v_max3_f32 v{T+1}, v{T+1}, v{S+i+2}, v{S+i+3}")
        o.append(f"v_max3_f32 v{T}, v{T}, v{S+30}, v{S+31}")
        o.append(f"v_max_f32 v{T}, v{T}, v{T+1}")
        o.append(f"v_mov_b32 v{T+1}, v{T}")
        o.append("PAD")
        o.append("PAD")
        o.append(f"v_permlane32_swap_b32 v{T}, v{T+1}")
        o.append("PAD")
        o.append("PAD")
        o.append(f"v_max_f32 v{T}, v{T}, v{T+1}")
        o.append(f"v_cmp_lt_f32 s[40:41], s31, v{T}")
        return o
    def slowpath(S):
        uid[0] += 1
        lb = f"{L}_sp{uid[0]}"
        e("s_cmp_eq_u64 s[40:41], 0")
        e(f"s_cbranch_scc1 {lb}")
        e("s_nop 15")
        e(f"v_max_f32 v{T}, v{T}, v{VFL}")
        e(f"v_exp_f32 v{T+1}, -v{T}")
        e(f"v_mov_b32 v{VFL}, 0")
        e(f"v_mul_f32 v{VL}, v{VL}, v{T+1}")
        for i in range(64):
            e(f"v_mul_f32 v{O+i}, v{O+i}, v{T+1}")
        for i in range(32):
            e(f"v_sub_f32 v{S+i}, v{S+i}, v{T}")
        for i in range(16):
            e(f"v_sub_f32 v{NEGM+i}, v{NEGM+i}, v{T}")
        e("s_nop 1")
        lab(lb)
    def exps(S):
        o = []
        for t in range(4):
            b = S + t*8
            seq = []
            o.append(f"v_exp_f32 v{b}, v{b}")
            for i in range(1, 8):
                o.append(f"v_exp_f32 v{b+i}, v{b+i}")
                o.append(f"v_add_f32 v{VL}, v{VL}, v{b+i-1}")
                if i % 2 == 0:
                    o.append(f"v_cvt_pk_bf16_f32 v{b+(i-2)//2}, v{b+i-2}, v{b+i-1}")
            o.append("PAD")
            o.append(f"v_add_f32 v{VL}, v{VL}, v{b+7}")
            o.append(f"v_cvt_pk_bf16_f32 v{b+3}, v{b+6}, v{b+7}")
        return o
    def emit(x):
        if isinstance(x, tuple):
            for s_ in x[1]:
                if s_.endswith(":"): lab(s_[:-1])
                else: e(s_)
        elif x == "PAD": e("s_nop 0")
        else: e(x)
    def popf(lst, n):
        k = 0
        first = True
        while lst and k < n:
            x = lst.pop(0)
            if x == "PAD" and first:
                first = False
                continue
            first = False
            emit(x); k += 1
    def need(lst, t, S):
        for x in lst:
            if isinstance(x, str) and x.startswith("v_cvt_pk") and f"v{S+8*t+3}," in x: return True
        return False
    e("s_waitcnt vmcnt(8)")
    e("s_barrier")
    tk = [kitem(0, q) for q in range(8)]
    for q in range(16):
        lg.wait(tk[q])
        e(qk_mfma(S0, q))
        if q < 8: tk.append(kitem(0, q+8))
    e("s_waitcnt vmcnt(0)")
    e("s_barrier")
    kdma(0)
    vdma(1)
    for x in touch(): e(x)
    tk = [kitem(1, q) for q in range(8)]
    for x in mask_max(S0): emit(x)
    e("s_mov_b64 s[40:41], -1")
    e("s_lshr_b32 s42, s27, 1")
    if os.environ.get('ATT_NOLOOP'): e(f"s_branch {L}_fin")
    if os.environ.get('ATT_STAMP'):
        e("s_memtime s[60:61]"); e("s_memrealtime s[62:63]"); e("s_waitcnt lgkmcnt(0)")
    lab(f"{L}_loop")
    for u in range(2):
        cur, nxt = SB[u], SB[u ^ 1]
        fill = exps(cur)
        mm = mask_max(nxt)
        slowpath(cur)
        if os.environ.get('ATT_NOVALU'): fill = []; mm = []
        def pop(lst, n):
            k = 0
            while lst and k < n:
                x = lst.pop(0)
                if x == "PAD":
                    continue
                emit(x); k += 1
        for q in range(16):
            lg.wait(tk[q])
            e(qk_mfma(nxt, q))
            if q < 8: tk.append(kitem(u ^ 1, q+8))
            else: tk.append(vitem(u, q-8))
            popf(fill, 3)
        tk = tk[16:]
        dm = []
        for p in range(16):
            if p % 4 == 0:
                while len(fill) > 0 and need(fill, p // 4, cur): emit(fill.pop(0))
                if any("v_cvt_pk" in y for y in out[-2:]): e("s_nop 1")
            lg.wait(tk[p])
            e(pv_mfma(cur, p))
            if p < 8: tk.append(vitem(u, p+8))
            elif p == 9:
                e(f"s_waitcnt vmcnt({os.environ.get('ATT_VM', 1 if TA else 0)}) lgkmcnt(0)")
                if not os.environ.get('ATT_NOBAR'): e("s_barrier")
                tk.append(kitem(u, 0)); tk.append(kitem(u, 1))
                dm = kdma_l(u ^ 1) + vdma_l(u)
                dm[-1] = dm[-1] + touch()
                if os.environ.get('ATT_NODMA'): dm = [[] for _ in dm]
            elif p > 9:
                tk.append(kitem(u, p-8))
                for _ in range(2 if p < 12 else 1):
                    for x in dm.pop(0): e(x)
            if fill: popf(fill, 3)
            if p >= 2 and (not fill or p >= 8): popf(mm, 3 if p < 9 else 2)
        while fill: emit(fill.pop(0))
        while mm: emit(mm.pop(0))
        tk = tk[16:]
    e("s_sub_u32 s42, s42, 1")
    e("s_cmp_lg_u32 s42, 0")
    e(f"s_cbranch_scc1 {L}_loop")
    lab(f"{L}_fin")
    if os.environ.get('ATT_STAMP'):
        e("s_memtime s[96:97]"); e("s_memrealtime s[98:99]"); e("s_waitcnt lgkmcnt(0)")
        e("s_sub_u32 s60, s96, s60"); e("s_sub_u32 s62, s98, s62")
        dl, dh = kaptr('ws')
        srd_off(96, dl, dh, 200*MB, 1 << 20)
        e("v_mov_b32 v20, s60"); e("v_mov_b32 v21, s62"); e("v_mov_b32 v22, s27"); e("s_getreg_b32 s5, hwreg(HW_REG_HW_ID)"); e("s_getreg_b32 s4, hwreg(HW_REG_XCC_ID)"); e("s_lshl_b32 s4, s4, 28"); e("s_and_b32 s5, s5, 0xfffffff"); e("s_or_b32 s5, s5, s4"); e("v_mov_b32 v23, s5")
        e("s_lshl_b32 s4, s2, 6"); e("s_lshl_b32 s5, s20, 4"); e("s_add_u32 s4, s4, s5")
        e("v_mov_b32 v24, 0")
        e("buffer_store_dwordx4 v[20:23], v24, s[96:99], s4 offen")
    e("s_nop 15")
    e(f"v_mov_b32 v{T}, v{VL}")
    e("s_nop 1")
    e(f"v_permlane32_swap_b32 v{T}, v{VL}")
    e("s_nop 1")
    e(f"v_add_f32 v{T}, v{T}, v{VL}")
    e(f"v_rcp_f32 v{T}, v{T}")
    e("v_lshlrev_b32 v5, 13, v4")
    e("v_lshl_add_u32 v5, v3, 4, v5")
    e("s_lshl_b32 s23, s16, 8")
    for db in range(4):
        for h in range(2):
            a = O + db*16 + h*8
            for j in range(8):
                e(f"v_mul_f32 v{a+j}, v{a+j}, v{T}")
            for j in range(4):
                e(f"v_cvt_pk_bf16_f32 v{a+j}, v{a+2*j}, v{a+2*j+1}")
            e(f"buffer_store_dwordx4 {vr(a,4)}, v5, s[12:15], s23 offen offset:{(db*32+h*16)*2}")
    NQ = int(os.environ.get('PFQ', '4'))
    if NQ:
        e(f"s_cmp_ge_u32 s17, {NQ}")
        e(f"s_cbranch_scc1 {L}_nopf")
        e(f"s_mul_i32 s4, s16, {NQ}")
        e("s_add_u32 s4, s4, s17")
        e("s_lshl_b32 s4, s4, 12")
        e("v_lshlrev_b32 v5, 4, v9")
        e("v_add_u32 v5, s4, v5")
        RND = 32 * NQ * 4096
        for (nm, nb) in (('wo', 4096*512*2), ('win', 512*1376*2), ('wsp', 2048*2048*2), ('wout', 688*512*2)):
            pl, ph = kaptr(nm)
            srd(32, pl, ph, nb)
            for r_ in range((nb + RND - 1) // RND):
                e(f"s_mov_b32 s4, 0x{r_*RND:x}")
                e(f"buffer_load_dwordx4 v[16:19], v5, s[32:35], s4 offen")
        lab(f"{L}_nopf")
    e("s_waitcnt vmcnt(0)")
    lab(f"{L}_end")
    e("s_endpgm")
    end(name, (512,1,1), (256,1,1), 65536 + 4096, 256)
```

```python
import sys, struct
KA = dict(x=0, ckv=8, wq=16, wuk=24, wuv=32, wo=40, bx=48, win=56, wsp=64, bsp=72, wout=80, c=88, wmod=96, out=104, dbg=112, ws=120)
MB = 1 << 20
WS = dict(mod=0, k=20*MB, v=36*MB, ctx=52*MB, x1=68*MB, z=74*MB, z2n=80*MB, u=84*MB, xh=88*MB, st=92*MB, x1t=96*MB)
out = []
def e(s): out.append("    " + s)
def lab(s): out.append(s + ":")
def raw(s): out.append(s)
kernels = []
def begin(name):
    raw(f".globl {name}"); raw(".p2align 8"); raw(f".type {name},@function"); lab(name)
def end(name, grid, block, lds, nv, ns=100):
    kernels.append((name, grid, block, lds, nv, ns))
def srd(d, lo, hi, nbytes):
    e(f"s_mov_b32 s{d}, s{lo}"); e(f"s_mov_b32 s{d+1}, s{hi}")
    e(f"s_mov_b32 s{d+2}, 0x{nbytes:x}"); e(f"s_mov_b32 s{d+3}, 0x00020000")
def srd_off(d, lo, hi, off, nbytes):
    e(f"s_add_u32 s{d}, s{lo}, 0x{off:x}"); e(f"s_addc_u32 s{d+1}, s{hi}, 0")
    e(f"s_mov_b32 s{d+2}, 0x{nbytes:x}"); e(f"s_mov_b32 s{d+3}, 0x00020000")
def vr(a, n): return f"v[{a}:{a+n-1}]"
def f2u(x): return struct.unpack("<I", struct.pack("<f", x))[0]
def kaptr(n):
    o = KA[n] // 4
    return 64 + o, 65 + o
def load_kargs():
    e("s_load_dwordx16 s[64:79], s[0:1], 0")
    e("s_load_dwordx16 s[80:95], s[0:1], 64")
def log2(x):
    assert x & (x - 1) == 0 and x > 0
    return x.bit_length() - 1
def sdiv(dst, src, d, tmp):
    if d & (d - 1) == 0:
        e(f"s_lshr_b32 s{dst}, s{src}, {log2(d)}")
    else:
        e(f"s_mov_b32 s{tmp}, 0x{(1 << 32) // d + 1:x}")
        e(f"s_mul_hi_u32 s{dst}, s{src}, s{tmp}")

def gelu8(a, t):
    for j in range(8):
        e(f"v_mul_f32 v{t+j}, v{a+j}, v{a+j}")
        e(f"v_fma_f32 v{t+j}, v{t+j}, s21, v1") if False else None
    for j in range(8):
        e(f"v_mul_f32 v{t+j}, s21, v{t+j}")
        e(f"v_add_f32 v{t+j}, s20, v{t+j}")
        e(f"v_mul_f32 v{t+j}, v{t+j}, v{a+j}")
        e(f"v_exp_f32 v{t+j}, v{t+j}")
    for j in range(8):
        e(f"v_add_f32 v{t+j}, 1.0, v{t+j}")
        e(f"v_rcp_f32 v{t+j}, v{t+j}")
    e("s_nop 0")
    for j in range(8):
        e(f"v_mul_f32 v{a+j}, v{t+j}, v{a+j}")

def gen_gemm(name, M, N, K, BM, BN, BK, GM, GN, S, A, B, epi, order='mn', withmod=False, deep=False):
    NW = GM * GN
    nk = (K + BK - 1) // BK
    ks = BK // 16
    nbm, nbn = M // BM, (N + BN - 1) // BN
    ntile = nbm * nbn
    assert ntile % 8 == 0
    WM, WN = BM // GM, BN // GN
    MT, NT = WM // 32, WN // 32
    SW = min(BN, 128)
    RB = SW * 2
    CPS = SW // 32
    AROW = BK * 2
    ABYTES = BM * AROW
    BBYTES = BK * BN * 2
    BUF = ABYTES + BBYTES
    rowsA = 1024 // AROW
    rowsB = 1024 // RB
    nA, nB = BM // rowsA, BBYTES // 1024
    assert nA % NW == 0 and nB % NW == 0, (nA, nB, NW)
    nAi, nBi = nA // NW, nB // NW
    nper = nAi + nBi
    nj = BK // rowsB
    (Aptr, As, Abytes) = A
    (Bptrs, Bs, Bbytes, segN) = B
    L = f"L_{name}"
    begin(name)
    e(f"s_cmp_ge_u32 s2, {ntile}")
    e(f"s_cbranch_scc1 {L}_end")
    load_kargs()
    e("s_and_b32 s4, s2, 7")
    e("s_lshr_b32 s5, s2, 3")
    e(f"s_mul_i32 s4, s4, {ntile//8}")
    e("s_add_u32 s4, s4, s5")
    if order == 'mn':
        sdiv(28, 4, nbn, 5)
        e(f"s_mul_i32 s5, s28, {nbn}")
        e("s_sub_u32 s29, s4, s5")
    else:
        sdiv(29, 4, nbm, 5)
        e(f"s_mul_i32 s5, s29, {nbm}")
        e("s_sub_u32 s28, s4, s5")
    e(f"s_mul_i32 s28, s28, {BM}")
    e(f"s_mul_i32 s29, s29, {BN}")
    e("s_waitcnt lgkmcnt(0)")
    def ptr(spec):
        if spec[0] == 'ka':
            lo, hi = kaptr(spec[1]); return (lo, hi, 0)
        lo, hi = kaptr('ws'); return (lo, hi, WS[spec[1]])
    lo, hi, ex = ptr(Aptr)
    srd_off(8, lo, hi, ex, Abytes)
    if len(Bptrs) > 1:
        e(f"s_lshr_b32 s3, s29, {log2(segN)}")
        e(f"s_and_b32 s29, s29, {segN-1}")
    for si, sp in enumerate(Bptrs):
        lo, hi, ex = ptr(sp)
        if si == 0:
            e(f"s_add_u32 s12, s{lo}, 0x{ex:x}"); e(f"s_addc_u32 s13, s{hi}, 0")
        else:
            e(f"s_add_u32 s4, s{lo}, 0x{ex:x}"); e(f"s_addc_u32 s5, s{hi}, 0")
            e(f"s_cmp_eq_u32 s3, {si}")
            e("s_cselect_b32 s12, s4, s12"); e("s_cselect_b32 s13, s5, s13")
    e(f"s_mov_b32 s14, 0x{Bbytes:x}"); e("s_mov_b32 s15, 0x00020000")
    e("v_mov_b32 v9, v0")
    e("v_lshrrev_b32 v1, 6, v0")
    e("v_and_b32 v0, 63, v0")
    e("s_nop 0")
    e("v_readfirstlane_b32 s30, v1")
    if BK == 32:
        e("v_lshrrev_b32 v2, 2, v0"); e("v_and_b32 v3, 3, v0"); e("v_lshrrev_b32 v4, 4, v0"); e("v_xor_b32 v3, v3, v4")
    else:
        e("v_lshrrev_b32 v2, 3, v0"); e("v_and_b32 v3, 7, v0"); e("v_lshrrev_b32 v4, 4, v0")
        e("s_and_b32 s4, s30, 1"); e("s_lshl_b32 s4, s4, 2"); e("v_or_b32 v4, s4, v4"); e("v_xor_b32 v3, v3, v4")
    e(f"s_mov_b32 s4, {As}")
    e("v_mul_lo_u32 v2, v2, s4")
    e("v_lshl_add_u32 v2, v3, 4, v2")
    if RB == 256:
        e("v_lshrrev_b32 v3, 4, v0"); e("v_bfe_u32 v4, v0, 2, 2"); e("v_xor_b32 v4, v4, v3"); e("v_and_b32 v5, 3, v0")
    else:
        e("v_lshrrev_b32 v3, 3, v0"); e("v_bfe_u32 v4, v0, 2, 1"); e("v_bfe_u32 v5, v0, 4, 1"); e("v_xor_b32 v4, v4, v5"); e("v_and_b32 v5, 3, v0")
    e(f"s_mov_b32 s4, {Bs}")
    e("v_mul_lo_u32 v3, v3, s4")
    e("v_lshl_add_u32 v3, v4, 6, v3")
    e("v_lshl_add_u32 v3, v5, 4, v3")
    SA, SB = 32, 40
    e(f"s_mul_i32 s4, s30, {rowsA}")
    e("s_add_u32 s4, s4, s28")
    e(f"s_mul_i32 s4, s4, {As}")
    for t in range(nAi):
        e(f"s_add_u32 s{SA+t}, s4, {t*NW*rowsA*As}")
    for t in range(nBi):
        e(f"s_add_u32 s4, s30, {NW*t}")
        e(f"s_and_b32 s5, s4, {nj-1}")
        e(f"s_lshr_b32 s4, s4, {log2(nj)}")
        e(f"s_mul_i32 s5, s5, {rowsB*Bs}")
        e(f"s_mul_i32 s4, s4, {SW*2}")
        e("s_add_u32 s4, s4, s5")
        e("s_lshl_b32 s5, s29, 1")
        e(f"s_add_u32 s{SB+t}, s4, s5")
    e("s_lshl_b32 s48, s30, 10")
    sdiv(49, 30, GN, 4)
    e(f"s_mul_i32 s4, s49, {GN}")
    e("s_sub_u32 s50, s30, s4")
    e("v_and_b32 v4, 31, v0")
    e("v_lshrrev_b32 v5, 5, v0")
    if BK == 32: e("v_bfe_u32 v6, v0, 2, 2")
    else: e("v_bfe_u32 v6, v0, 1, 3")
    e("v_xor_b32 v6, v6, v5")
    e(f"s_mul_i32 s4, s49, {WM*AROW}")
    e(f"v_lshlrev_b32 v7, {log2(AROW)}, v4")
    e("v_add_u32 v7, s4, v7")
    for s in range(ks):
        e(f"v_xor_b32 v8, {2*s}, v6")
        e(f"v_lshl_add_u32 v{10+s}, v8, 4, v7")
    e("v_bfe_u32 v4, v0, 2, 2")
    e("v_lshl_add_u32 v8, v5, 3, v4")
    e(f"v_lshlrev_b32 v8, {log2(RB)}, v8")
    e("v_bfe_u32 v6, v0, 4, 1")
    e("v_lshl_add_u32 v8, v6, 5, v8")
    e("v_and_b32 v6, 1, v0")
    e("v_lshl_add_u32 v8, v6, 4, v8")
    e("v_bfe_u32 v6, v0, 1, 1")
    e("v_lshl_add_u32 v8, v6, 3, v8")
    e(f"v_add_u32 v8, {ABYTES}, v8")
    if RB == 256: e("v_mov_b32 v6, v4")
    else: e("v_lshrrev_b32 v6, 1, v4")
    for nt in range(NT):
        e(f"s_mul_i32 s4, s50, {NT}")
        e(f"s_add_u32 s4, s4, {nt}")
        e(f"s_and_b32 s5, s4, {CPS-1}")
        e(f"s_lshr_b32 s4, s4, {log2(CPS)}")
        e(f"s_mul_i32 s4, s4, {BK*RB}")
        e("v_xor_b32 v7, s5, v6")
        e(f"v_lshl_add_u32 v{14+nt}, v7, 6, v8")
        e(f"v_add_u32 v{14+nt}, s4, v{14+nt}")
    NBANK = (S*BUF + 65535) // 65536
    for b in range(1, NBANK):
        for i in range(8):
            if (i < 4 and i < ks) or (i >= 4 and i - 4 < NT):
                e(f"v_add_u32 v{10+8*b+i}, {65536*b}, v{10+i}")
    def ad(reg, off):
        return f"v{reg + 8*(off >> 16)} offset:{off & 65535}"
    FSZ = (MT + NT) * 4
    FB = 10 + 8*NBANK
    ACC = FB + 2 * FSZ * (ks if deep else 1)
    def acc(mt, nt): return ACC + (mt*NT + nt) * 16
    def fa(st, mt): return FB + st*FSZ + mt*4
    def fb(st, nt): return FB + st*FSZ + MT*4 + nt*4
    PF = []
    import os
    if epi == 'kv' and os.environ.get('PF', '1') == '1':
        for (nm, nb) in (('wq', 4096*512*2),):
            for r_ in range((nb + 2*MB - 1) // (2*MB)):
                PF.append((nm, nb, r_*2*MB))
        assert len(PF) <= nk - S
    PFV = ACC + MT*NT*16
    PF0 = nk - len(PF)
    PFS = []
    if PF and os.environ.get('PFS', '0') == '1':
        for (nm, nb) in (('ckv', 2048*512*2), ('wuk', 4096*512*2), ('wuv', 4096*512*2)):
            for r_ in range((nb + 2*MB - 1) // (2*MB)):
                PFS.append((nm, nb, r_*2*MB))
    def extl(j):
        if PF0 <= j < nk: return [PF[j - PF0]]
        if j == S - 1: return PFS
        return []
    def extra(j): return len(extl(j))
    ROT = (K & (K-1)) == 0 and name in os.environ.get('ROT', 'oproj_kernel,wsp_kernel').split(',')
    def dma_pieces(buf, j=-1):
        ps = []
        if ROT:
            assert nBi <= 4
            for t in range(nAi):
                ps.append(([f"s_add_u32 s44, s44, {BK*2}", f"s_and_b32 s44, s44, {K*2-1}", f"s_mul_i32 s45, s44, {Bs//2}"] if t == 0 else []) +
                          [f"s_add_u32 m0, s48, {buf*BUF + t*NW*1024}",
                           f"s_add_u32 s46, s{SA+t}, s44",
                           f"buffer_load_dwordx4 v2, s[8:11], s46 offen lds"])
            for t in range(nBi):
                ps.append([f"s_add_u32 m0, s48, {buf*BUF + ABYTES + t*NW*1024}",
                           f"s_add_u32 s46, s{SB+t}, s45",
                           f"buffer_load_dwordx4 v3, s[12:15], s46 offen lds"])
        for t in range(nAi if not ROT else 0):
            ps.append([f"s_add_u32 m0, s48, {buf*BUF + t*NW*1024}",
                       f"s_add_u32 s{SA+t}, s{SA+t}, {BK*2}",
                       f"buffer_load_dwordx4 v2, s[8:11], s{SA+t} offen lds"])
        for t in range(nBi if not ROT else 0):
            ps.append([f"s_add_u32 m0, s48, {buf*BUF + ABYTES + t*NW*1024}",
                       f"s_add_u32 s{SB+t}, s{SB+t}, {BK*Bs}",
                       f"buffer_load_dwordx4 v3, s[12:15], s{SB+t} offen lds"])
        for (nm, nb, off) in extl(j):
            pl, ph = kaptr(nm)
            ps.append([f"s_mov_b32 s60, s{pl}", f"s_mov_b32 s61, s{ph}", f"s_mov_b32 s62, 0x{nb:x}", "s_mov_b32 s63, 0x00020000",
                       f"s_mov_b32 s7, 0x{off:x}",
                       f"buffer_load_dwordx4 {vr(PFV,4)}, v7, s[60:63], s7 offen"])
        return ps
    def dma(buf):
        for pc in dma_pieces(buf, buf if PF else -1):
            for x in pc: e(x)
    pend = []
    cnt = [0, nper]
    NMF = ks * MT * NT
    def tick():
        cnt[0] += 1
        while pend and cnt[0] >= 1 + (cnt[1] - len(pend)) * (NMF - 1) // cnt[1]:
            for x in pend.pop(0): e(x)
    def reads(buf, s, st):
        for mt in range(MT):
            e(f"ds_read_b128 {vr(fa(st,mt),4)}, {ad(10+s, buf*BUF + mt*32*AROW)}")
        for nt in range(NT):
            e(f"ds_read_b64_tr_b16 {vr(fb(st,nt),2)}, {ad(14+nt, buf*BUF + s*16*RB)}")
            e(f"ds_read_b64_tr_b16 {vr(fb(st,nt)+2,2)}, {ad(14+nt, buf*BUF + s*16*RB + 4*RB)}")
    nrd = MT + 2*NT
    import os
    def mf(st, mt, nt):
        if os.environ.get('NOMFMA') == name:
            tick(); return
        e(f"v_mfma_f32_32x32x16_bf16 {vr(acc(mt,nt),16)}, {vr(fb(st,nt),4)}, {vr(fa(st,mt),4)}, {vr(acc(mt,nt),16)}")
        tick()
    if ROT:
        RM = os.environ.get('ROTM', '7')
        e(f"s_and_b32 s44, s2, {RM}")
        e(f"s_mul_i32 s44, s44, {K*2//(int(RM)+1)}")
        e(f"s_sub_u32 s44, s44, {BK*2}")
    else:
        for t in range(nAi): e(f"s_sub_u32 s{SA+t}, s{SA+t}, {BK*2}")
        for t in range(nBi): e(f"s_sub_u32 s{SB+t}, s{SB+t}, {BK*Bs}")
    SS = min(S, nk)
    if withmod:
        cl, ch = kaptr('c'); wl, wh = kaptr('wmod'); sl, sh = kaptr('ws')
        srd(16, cl, ch, 1024)
        srd(20, wl, wh, 512*3072*2)
        srd_off(24, sl, sh, WS['mod'], 3072*4)
        T = ACC
        e(f"v_lshlrev_b32 v{T}, 1, v9")
        e(f"buffer_load_ushort v{T+1}, v{T}, s[16:19], 0 offen")
        e("s_mov_b32 s4, 6144")
        e(f"v_mul_lo_u32 v{T}, v9, s4")
        e("s_mul_i32 s4, s2, 24")
        e(f"buffer_load_dwordx4 {vr(T+2,4)}, v{T}, s[20:23], s4 offen")
        e(f"buffer_load_dwordx2 {vr(T+6,2)}, v{T}, s[20:23], s4 offen offset:16")
        xl, xh_ = kaptr('x'); srd(52, xl, xh_, 2048*512*2)
        srd_off(56, sl, sh, WS['xh'], 2048*512*2)
        e("s_lshl_b32 s51, s2, 3")
        e("s_add_u32 s51, s51, s30")
        e("s_lshl_b32 s51, s51, 10")
        e(f"v_lshlrev_b32 v{T+32}, 4, v0")
        e(f"buffer_load_dwordx4 {vr(T+36,4)}, v{T+32}, s[52:55], s51 offen")
    if PF:
        e("v_lshlrev_b32 v7, 4, v9")
        e("s_lshl_b32 s7, s2, 13")
        e("v_add_u32 v7, s7, v7")
    for t in range(SS):
        dma(t)
    if withmod:
        T = ACC
        e(f"s_waitcnt vmcnt({SS*nper + len(PFS)})")
        e(f"v_lshlrev_b32 v{T+1}, 16, v{T+1}")
        e(f"v_mul_f32 v{T}, 0xbfb8aa3b, v{T+1}")
        e(f"v_exp_f32 v{T}, v{T}")
        e("s_nop 0")
        e(f"v_add_f32 v{T}, 1.0, v{T}")
        e(f"v_rcp_f32 v{T}, v{T}")
        e("s_nop 0")
        e(f"v_mul_f32 v{T+1}, v{T+1}, v{T}")
        e(f"v_cvt_pk_bf16_f32 v{T+1}, v{T+1}, v{T+1}")
        e(f"v_lshlrev_b32 v{T+1}, 16, v{T+1}")
        P = T + 8
        for j in range(6):
            e(f"v_lshlrev_b32 v{P+2*j}, 16, v{T+2+j}")
            e(f"v_and_b32 v{P+2*j+1}, 0xffff0000, v{T+2+j}")
        for j in range(12):
            e(f"v_mul_f32 v{P+j}, v{P+j}, v{T+1}")
        for dpp in ("row_shr:1", "row_shr:2", "row_shr:4", "row_shr:8", "row_bcast:15 row_mask:0xa", "row_bcast:31 row_mask:0xc"):
            for j in range(12):
                e(f"v_add_f32_dpp v{P+j}, v{P+j}, v{P+j} {dpp}" + (" bound_ctrl:0" if "shr" in dpp else ""))
        e(f"v_mov_b32 v{T}, s48")
        e(f"v_lshrrev_b32 v{T}, 4, v{T}")
        e(f"v_add_u32 v{T}, {S*BUF}, v{T}")
        e("v_cmp_eq_u32 vcc, 63, v0")
        e("s_and_saveexec_b64 s[6:7], vcc")
        for j in range(3):
            e(f"ds_write_b128 v{T}, {vr(P+4*j,4)} offset:{16*j}")
        e("s_mov_b64 exec, s[6:7]")
        XA = T + 40
        def wsum(r):
            for dpp in ("row_shr:1", "row_shr:2", "row_shr:4", "row_shr:8", "row_bcast:15 row_mask:0xa", "row_bcast:31 row_mask:0xc"):
                e("s_nop 1")
                e(f"v_add_f32_dpp v{r}, v{r}, v{r} {dpp}" + (" bound_ctrl:0" if "shr" in dpp else ""))
            e("s_nop 1")
            e(f"v_readlane_b32 s4, v{r}, 63")
            e("s_nop 1")
            e(f"v_mov_b32 v{r}, s4")
        for i in range(4):
            e(f"v_lshlrev_b32 v{XA+2*i}, 16, v{T+36+i}")
            e(f"v_and_b32 v{XA+2*i+1}, 0xffff0000, v{T+36+i}")
        e(f"v_add_f32 v{T+33}, v{XA}, v{XA+1}")
        for i in range(2, 8): e(f"v_add_f32 v{T+33}, v{T+33}, v{XA+i}")
        wsum(T+33)
        e(f"v_mul_f32 v{T+33}, 0x{f2u(1/512):08x}, v{T+33}")
        for i in range(8): e(f"v_sub_f32 v{XA+i}, v{XA+i}, v{T+33}")
        e(f"v_mul_f32 v{T+33}, v{XA}, v{XA}")
        for i in range(1, 8): e(f"v_fmac_f32 v{T+33}, v{XA+i}, v{XA+i}")
        wsum(T+33)
        e(f"v_mul_f32 v{T+33}, 0x{f2u(1/512):08x}, v{T+33}")
        e(f"v_add_f32 v{T+33}, 0x{f2u(1e-5):08x}, v{T+33}")
        e(f"v_rsq_f32 v{T+33}, v{T+33}")
        e("s_nop 0")
        for i in range(8): e(f"v_mul_f32 v{XA+i}, v{XA+i}, v{T+33}")
        for i in range(4): e(f"v_cvt_pk_bf16_f32 v{T+36+i}, v{XA+2*i}, v{XA+2*i+1}")
        e("s_lshr_b32 s4, s51, 14")
        e("s_lshl_b32 s4, s4, 14")
        e("s_bfe_u32 s5, s51, 0x4000a")
        e("s_lshl_b32 s5, s5, 6")
        e("s_add_u32 s4, s4, s5")
        e(f"v_lshrrev_b32 v{T+32}, 2, v0")
        e(f"v_lshlrev_b32 v{T+32}, 10, v{T+32}")
        e(f"v_and_b32 v{T+33}, 3, v0")
        e(f"v_lshl_add_u32 v{T+32}, v{T+33}, 4, v{T+32}")
        e(f"buffer_store_dwordx4 {vr(T+36,4)}, v{T+32}, s[56:59], s4 offen")
        e("s_waitcnt lgkmcnt(0)")
    e(f"s_waitcnt vmcnt({(SS-1)*nper + (1 if withmod else 0) + len(PFS)})")
    e("s_barrier")
    if withmod:
        T = ACC
        e("v_cmp_gt_u32 vcc, 12, v9")
        e("s_and_saveexec_b64 s[6:7], vcc")
        e(f"s_cbranch_execz {L}_nomod")
        e(f"v_lshlrev_b32 v{T}, 2, v9")
        e(f"v_add_u32 v{T+9}, {S*BUF}, v{T}")
        for w in range(8):
            e(f"ds_read_b32 v{T+1+w}, v{T+9} offset:{w*64}")
        e("s_waitcnt lgkmcnt(0)")
        for w in range(1, 8):
            e(f"v_add_f32 v{T+1}, v{T+1}, v{T+1+w}")
        e(f"v_cvt_pk_bf16_f32 v{T+1}, v{T+1}, v{T+1}")
        e(f"v_lshlrev_b32 v{T+1}, 16, v{T+1}")
        e("s_mul_i32 s4, s2, 48")
        e(f"buffer_store_dword v{T+1}, v{T}, s[24:27], s4 offen")
        lab(f"{L}_nomod")
        e("s_mov_b64 exec, s[6:7]")
    if deep:
        assert S % 2 == 0
        for s in range(ks): reads(0, s, s)
    else:
        reads(0, 0, 0)
    for i in range(MT*NT*16):
        e(f"v_mov_b32 v{ACC+i}, 0")
    def stage_deep(u, dodma, last, vm):
        buf = u % S
        p = (u & 1) * ks
        q = ((u & 1) ^ 1) * ks
        ops = [(mt, nt) for mt in range(MT) for nt in range(NT)]
        if last:
            e("s_waitcnt lgkmcnt(0)")
        else:
            e(f"s_waitcnt vmcnt({vm}) lgkmcnt(0)")
            e("s_barrier")
        cnt[0] = 0
        if dodma:
            pend.extend(dma_pieces(buf, u + S if PF else -1)); cnt[1] = len(pend)
        for s in range(ks):
            if not last: reads((u+1) % S, s, q + s)
            for (mt, nt) in ops: mf(p + s, mt, nt)
        while pend:
            for x in pend.pop(0): e(x)
    def stage(u, dodma, last, vm):
        if deep: return stage_deep(u, dodma, last, vm)
        buf = u % S
        for s in range(ks):
            st = s & 1
            ops = [(mt, nt) for mt in range(MT) for nt in range(NT)]
            if s < ks - 1:
                reads(buf, s+1, st ^ 1)
                e(f"s_waitcnt lgkmcnt({nrd})")
                for (mt, nt) in ops: mf(st, mt, nt)
            else:
                e("s_waitcnt lgkmcnt(0)")
                if last:
                    for (mt, nt) in ops: mf(st, mt, nt)
                else:
                    mf(st, *ops[0])
                    while pend:
                        for x in pend.pop(0): e(x)
                    e(f"s_waitcnt vmcnt({vm})")
                    e("s_barrier")
                    cnt[0] = 0
                    if dodma:
                        pend.extend(dma_pieces(buf, u + S if PF else -1)); cnt[1] = len(pend)
                    reads((u+1) % S, 0, st ^ 1)
                    for (mt, nt) in ops[1:]: mf(st, mt, nt)
    nmain = max(nk - S, 0)
    r = nmain % S
    if r == 0 and nmain > 0: r = S
    def vmx(u): return sum(nper + extra(j) for j in range(u+2, min(u+S-1, nk-1)+1)) + extra(u+1)
    if PF:
        r = nmain
    for u in range(r):
        stage(u, True, False, vmx(u))
    if nmain - r > 0:
        e(f"s_mov_b32 s31, {(nmain - r)//S}")
        lab(f"{L}_loop")
        for u in range(r, r + S):
            stage(u, True, False, (S-2)*nper)
        e("s_sub_u32 s31, s31, 1")
        e("s_cmp_lg_u32 s31, 0")
        e(f"s_cbranch_scc1 {L}_loop")
    for u in range(nmain, nk):
        stage(u, False, u == nk-1, vmx(u))
    e("s_nop 15")
    e("v_and_b32 v4, 31, v0")
    e(f"s_mul_i32 s4, s49, {WM}")
    e("s_add_u32 s4, s4, s28")
    e("v_add_u32 v4, s4, v4")
    e(f"s_mul_i32 s5, s50, {WN}")
    e("v_lshrrev_b32 v5, 5, v0")
    e("s_add_u32 s6, s5, s29")
    wsl, wsh = kaptr('ws')
    def colvalid_begin(nt, h, lbl):
        if N % BN == 0: return
        e(f"s_add_u32 s7, s6, {nt*32+h*16+16}")
        e(f"s_cmp_gt_u32 s7, {N}")
        e(f"s_cbranch_scc1 {lbl}")
    def pack8(dst, a):
        for j in range(4):
            e(f"v_cvt_pk_bf16_f32 v{dst+j}, v{a+2*j}, v{a+2*j+1}")
    def unpack8(dst, src):
        for j in range(4):
            e(f"v_lshlrev_b32 v{dst+2*j}, 16, v{src+j}")
            e(f"v_and_b32 v{dst+2*j+1}, 0xffff0000, v{src+j}")
    import os
    if os.environ.get('NOEPI') == name:
        e("s_endpgm")
    if epi == 'kv':
        srd_off(16, wsl, wsh, WS['k'], 32*MB)
        e("s_lshl_b32 s7, s3, 24")
        e("s_lshr_b32 s4, s6, 7")
        e("s_lshl_b32 s4, s4, 19")
        e("s_add_u32 s7, s7, s4")
        e("s_and_b32 s4, s6, 127")
        e("s_lshl_b32 s4, s4, 1")
        e("s_add_u32 s7, s7, s4")
        e("v_lshlrev_b32 v6, 8, v4")
        e("v_lshl_add_u32 v6, v5, 4, v6")
        e("v_add_u32 v6, s7, v6")
        assert WN <= 128
        k = 0
        for mt in range(MT):
            e(f"s_mov_b32 s7, {mt*32*256}")
            for nt in range(NT):
                for h in range(2):
                    t = 8 + (k % 2) * 4; k += 1
                    pack8(t, acc(mt, nt) + h*8)
                    e(f"buffer_store_dwordx4 {vr(t,4)}, v6, s[16:19], s7 offen offset:{(nt*32+h*16)*2} {os.environ.get('KVST','')}")
    elif epi in ('oproj', 'final'):
        gi = 2 if epi == 'oproj' else 5
        srd_off(20, wsl, wsh, WS['mod'], 3072*4)
        if epi == 'oproj':
            xl, xh = kaptr('x'); srd(24, xl, xh, 2048*512*2)
            srd_off(16, wsl, wsh, WS['x1'], 2048*512*2)
        else:
            srd_off(24, wsl, wsh, WS['x1'], 2048*512*2)
            ol, oh = kaptr('out'); srd(16, ol, oh, 2048*512*2)
        e("v_lshlrev_b32 v5, 3, v5")
        e("v_add_u32 v5, s6, v5")
        e("v_lshlrev_b32 v7, 2, v5")
        e("v_lshlrev_b32 v6, 9, v4")
        e("v_add_u32 v6, v6, v5")
        e("v_lshlrev_b32 v6, 1, v6")
        e(f"s_mov_b32 s7, {gi*2048}")
        G0 = ACC + MT*NT*16
        X0 = G0 + NT*16
        for nt in range(NT):
            for h in range(2):
                e(f"buffer_load_dwordx4 {vr(G0+(nt*2+h)*8,4)}, v7, s[20:23], s7 offen offset:{(nt*32+h*16)*4}")
                e(f"buffer_load_dwordx4 {vr(G0+(nt*2+h)*8+4,4)}, v7, s[20:23], s7 offen offset:{(nt*32+h*16)*4+16}")
        for mt in range(MT):
            e(f"s_mov_b32 s4, {mt*32*1024}")
            for nt in range(NT):
                for h in range(2):
                    e(f"buffer_load_dwordx4 {vr(X0+((mt*NT+nt)*2+h)*4,4)}, v6, s[24:27], s4 offen offset:{(nt*32+h*16)*2}")
        if epi == 'oproj':
            assert WN == 32
            srd_off(28, wsl, wsh, WS['st'], 2048*128)
            e("s_mov_b32 s5, 0x3f803f80")
            e("s_lshr_b32 s4, s6, 2")
            e("v_lshlrev_b32 v20, 7, v4")
            e("v_add_u32 v20, s4, v20")
            assert MT == 1
            srd_off(32, wsl, wsh, WS['x1t'], 2048*512*2)
            e("v_lshrrev_b32 v21, 4, v4")
            e("v_lshlrev_b32 v21, 14, v21")
            e("v_and_b32 v22, 15, v4")
            e("v_lshl_add_u32 v21, v22, 6, v21")
            e("v_lshrrev_b32 v22, 5, v0")
            e("v_lshl_add_u32 v21, v22, 4, v21")
            e("s_lshl_b32 s36, s6, 5")
        e("s_waitcnt vmcnt(0)")
        for mt in range(MT):
            e(f"s_mov_b32 s4, {mt*32*1024}")
            for nt in range(NT):
                for h in range(2):
                    a = acc(mt, nt) + h*8
                    xr = X0 + ((mt*NT+nt)*2+h)*4
                    g = G0 + (nt*2+h)*8
                    unpack8(8, xr)
                    for j in range(8):
                        e(f"v_fmac_f32 v{8+j}, v{g+j}, v{a+j}")
                    pack8(xr, 8)
                    e(f"buffer_store_dwordx4 {vr(xr,4)}, v6, s[16:19], s4 offen offset:{(nt*32+h*16)*2}")
                    if epi == 'oproj':
                        e(f"buffer_store_dwordx4 {vr(xr,4)}, v21, s[32:35], s36 offen offset:{h*32}")
                        for j in range(4):
                            first = (nt == 0 and h == 0 and j == 0)
                            e(f"v_dot2_f32_bf16 v16, v{xr+j}, s5, " + ("0" if first else "v16"))
                            e(f"v_dot2_f32_bf16 v17, v{xr+j}, v{xr+j}, " + ("0" if first else "v17"))
            if epi == 'oproj':
                e("s_nop 4")
                e("v_mov_b32 v18, v16"); e("v_mov_b32 v19, v17")
                e("s_nop 1")
                e("v_permlane32_swap_b32 v16, v18")
                e("v_permlane32_swap_b32 v17, v19")
                e("s_nop 1")
                e("v_add_f32 v16, v16, v18"); e("v_add_f32 v17, v17, v19")
                e(f"s_mov_b32 s4, {mt*32*128}")
                e("buffer_store_dwordx2 v[16:17], v20, s[28:31], s4 offen")
        nvx = X0 + MT*NT*8
    elif epi == 'sp':
        bl, bh = kaptr('bsp')
        srd(20, bl, bh, 2048*2)
        srd_off(24, wsl, wsh, WS['z'], 2048*1376*2)
        srd_off(16, wsl, wsh, WS['u'], 2048*704*2)
        e("v_lshlrev_b32 v5, 3, v5")
        e("v_add_u32 v5, s6, v5")
        e("s_mov_b32 s4, 2752")
        e("v_mul_lo_u32 v6, v4, s4")
        e("v_lshl_add_u32 v6, v5, 1, v6")
        e("s_mov_b32 s4, 1408")
        e("v_mul_lo_u32 v7, v4, s4")
        e("v_lshl_add_u32 v7, v5, 1, v7")
        e("v_lshlrev_b32 v8, 1, v4")
        for mt in range(MT):
            e(f"buffer_load_ushort v{16+mt}, v8, s[20:23], 0 offen offset:{mt*64}")
        X0 = ACC + MT*NT*16
        for mt in range(MT):
            e(f"s_mov_b32 s7, {mt*32*2752}")
            for nt in range(NT):
                for h in range(2):
                    e(f"buffer_load_dwordx4 {vr(X0+((mt*NT+nt)*2+h)*4,4)}, v6, s[24:27], s7 offen offset:{(nt*32+h*16)*2}")
        e("s_waitcnt vmcnt(0)")
        for mt in range(MT):
            e(f"v_lshlrev_b32 v{16+mt}, 16, v{16+mt}")
        for nt in range(NT):
            for h in range(2):
                lbl = f"{L}_sk{nt}{h}"
                colvalid_begin(nt, h, lbl)
                for mt in range(MT):
                    a = acc(mt, nt) + h*8
                    xr = X0 + ((mt*NT+nt)*2+h)*4
                    unpack8(8, xr)
                    for j in range(8):
                        e(f"v_add_f32 v{a+j}, v{a+j}, v{16+mt}")
                        e(f"v_mul_f32 v{8+j}, v{8+j}, v{a+j}")
                    pack8(xr, 8)
                    e(f"s_mov_b32 s7, {mt*32*1408}")
                    e(f"buffer_store_dwordx4 {vr(xr,4)}, v7, s[16:19], s7 offen offset:{(nt*32+h*16)*2}")
                if N % BN:
                    e(f"s_branch {lbl}_d")
                    lab(lbl)
                    for j in range(4): e(f"v_mov_b32 v{8+j}, 0")
                    for mt in range(MT):
                        e(f"s_mov_b32 s7, {mt*32*1408}")
                        e(f"buffer_store_dwordx4 v[8:11], v7, s[16:19], s7 offen offset:{(nt*32+h*16)*2}")
                    lab(f"{lbl}_d")
        nvx = X0 + MT*NT*8
    if epi == 'kv': e("s_waitcnt vmcnt(0)")
    lab(f"{L}_end")
    e("s_endpgm")
    nv = ACC + MT*NT*16 + (4 if PF else 0)
    if epi in ('oproj', 'final', 'sp'): nv = max(nv, nvx)
    lds = S * BUF + (512 if withmod else 0)
    end(name, (ntile,1,1), (64*NW,1,1), lds, nv)
```

```python
import sys, os
sys.path.insert(0, os.path.dirname(os.path.abspath(__file__)))
from v2_common import *
from v2_attn import *
import v2_common

def gen_win():
    name = "win_kernel"
    L = "L_win"
    lg = LG()
    begin(name)
    e("s_cmp_ge_u32 s2, 240")
    e(f"s_cbranch_scc1 {L}_end")
    load_kargs()
    e("s_and_b32 s4, s2, 7")
    e("s_lshr_b32 s5, s2, 3")
    e("s_mul_i32 s4, s4, 30")
    e("s_add_u32 s4, s4, s5")
    sdiv(17, 4, 15, 5)
    e("s_mul_i32 s5, s17, 15")
    e("s_sub_u32 s16, s4, s5")
    e("v_mov_b32 v9, v0")
    e("v_lshrrev_b32 v1, 6, v0")
    e("v_and_b32 v0, 63, v0")
    e("s_nop 0")
    e("v_readfirstlane_b32 s20, v1")
    e("s_waitcnt lgkmcnt(0)")
    wsl, wsh = kaptr('ws')
    srd_off(12, wsl, wsh, WS['z'], 2048*1376*2)
    srd_off(32, wsl, wsh, WS['x1t'], 2048*512*2)
    ql, qh = kaptr('win'); srd(36, ql, qh, 512*1376*2)
    srd_off(56, wsl, wsh, WS['mod'], 3072*4)
    srd_off(40, wsl, wsh, WS['st'], 2048*128)
    VW, AV, MT0 = 12, 16, 240
    QA, R0, VX, AX = 32, 112, 13, 14
    MODL = 65536
    e("v_and_b32 v2, 31, v0")
    e("v_lshrrev_b32 v3, 5, v0")
    e("s_lshl_b32 s22, s17, 7")
    e("s_lshl_b32 s23, s20, 5")
    e("s_add_u32 s22, s22, s23")
    e("v_add_u32 v4, s22, v2")
    e("v_lshlrev_b32 v6, 3, v9")
    e(f"s_mov_b32 s4, {4*2048}")
    e(f"s_mov_b32 s5, {3*2048}")
    e(f"buffer_load_dwordx2 v[{MT0}:{MT0+1}], v6, s[56:59], s4 offen")
    e(f"buffer_load_dwordx2 v[{MT0+2}:{MT0+3}], v6, s[56:59], s5 offen")
    e("v_lshlrev_b32 v5, 7, v4")
    e("v_lshl_add_u32 v5, v3, 6, v5")
    for i in range(4):
        e(f"buffer_load_dwordx4 {vr(200+4*i,4)}, v5, s[40:43], 0 offen offset:{16*i}")
    e("v_lshrrev_b32 v6, 4, v0")
    e("v_bfe_u32 v7, v0, 2, 2")
    e("v_xor_b32 v7, v7, v6")
    e("v_and_b32 v8, 3, v0")
    e("v_lshlrev_b32 v7, 6, v7")
    e("v_lshl_add_u32 v7, v8, 4, v7")
    e("s_mov_b32 s4, 2752")
    e("v_mul_lo_u32 v1, v6, s4")
    e(f"v_add_u32 v{VW}, v7, v1")
    e("v_xor_b32 v7, v8, v6")
    e("v_lshrrev_b32 v1, 2, v0")
    e("v_lshlrev_b32 v1, 6, v1")
    e(f"v_lshl_add_u32 v{VX}, v7, 4, v1")
    e("s_lshl_b32 s25, s20, 10")
    e("s_lshl_b32 s44, s20, 11")
    e("s_mul_i32 s45, s16, 192")
    e(f"s_mul_i32 s4, s20, {4*2752}")
    e("s_add_u32 s45, s45, s4")
    e("s_lshl_b32 s48, s22, 10")
    def dma_slot(j):
        b = (j % 4) * 16384
        for i in range(2):
            e(f"s_add_u32 m0, s44, {b + i*1024}")
            e(f"s_add_u32 s4, s48, {i*16384 + j*1024}")
            e(f"buffer_load_dwordx4 v{VX}, s[32:35], s4 offen lds")
        for i in range(2):
            e(f"s_add_u32 m0, s25, {b + 8192 + i*4096}")
            e(f"s_add_u32 s4, s45, {(j*32 + i*16)*2752}")
            e(f"buffer_load_dwordx4 v{VW}, s[36:39], s4 offen lds")
    for j in range(3): dma_slot(j)
    e("v_bfe_u32 v6, v0, 2, 2")
    e("v_bfe_u32 v8, v0, 4, 1")
    e("v_lshlrev_b32 v8, 5, v8")
    e("v_and_b32 v7, 1, v0")
    e("v_lshl_add_u32 v8, v7, 4, v8")
    e("v_bfe_u32 v7, v0, 1, 1")
    e("v_lshl_add_u32 v8, v7, 3, v8")
    e("v_lshl_add_u32 v7, v3, 3, v6")
    e("v_lshl_add_u32 v7, v7, 8, v8")
    for db in range(4):
        e(f"v_xor_b32 v1, {db}, v6")
        e(f"v_lshl_add_u32 v{AV+db}, v1, 6, v7")
    e("v_xor_b32 v7, v6, v3")
    e("v_lshlrev_b32 v1, 6, v2")
    e("v_add_u32 v1, s44, v1")
    e(f"v_lshl_add_u32 v{AX}, v7, 4, v1")
    e("v_xor_b32 v7, 2, v7")
    e(f"v_lshl_add_u32 v{AX+1}, v7, 4, v1")
    e("v_lshlrev_b32 v30, 5, v3")
    e(f"v_add_u32 v30, {MODL}, v30")
    e("s_waitcnt vmcnt(12)")
    e(f"v_add_f32 v{MT0}, 1.0, v{MT0}")
    e(f"v_add_f32 v{MT0+1}, 1.0, v{MT0+1}")
    e(f"v_cvt_pk_bf16_f32 v{MT0}, v{MT0}, v{MT0+1}")
    e(f"v_and_b32 v{MT0+1}, 0xffff0000, v{MT0}")
    e(f"v_lshlrev_b32 v{MT0}, 16, v{MT0}")
    e("v_lshlrev_b32 v6, 3, v9")
    e(f"v_add_u32 v6, {MODL}, v6")
    e(f"ds_write_b64 v6, v[{MT0}:{MT0+1}]")
    e(f"ds_write_b64 v6, v[{MT0+2}:{MT0+3}] offset:2048")
    e("v_add_f32 v28, v200, v202"); e("v_add_f32 v29, v201, v203")
    for i in range(2, 8):
        e(f"v_add_f32 v28, v28, v{200+2*i}"); e(f"v_add_f32 v29, v29, v{201+2*i}")
    e("v_mov_b32 v26, v28"); e("v_mov_b32 v27, v29")
    e("s_nop 1")
    e("v_permlane32_swap_b32 v28, v26")
    e("v_permlane32_swap_b32 v29, v27")
    e("s_nop 1")
    e("v_add_f32 v28, v28, v26")
    e("v_add_f32 v29, v29, v27")
    e(f"v_mul_f32 v28, 0x{f2u(1/512):08x}, v28")
    e(f"v_mul_f32 v29, 0x{f2u(1/512):08x}, v29")
    e("v_fma_f32 v29, -v28, v28, v29")
    e("v_max_f32 v29, 0, v29")
    e(f"v_add_f32 v29, 0x{f2u(1e-5):08x}, v29")
    e("v_rsq_f32 v29, v29")
    e("s_nop 0")
    e("v_mul_f32 v28, v28, v29")
    e("v_sub_f32 v28, 0, v28")
    lnproj2(L, QA, R0, AX, AV, lg, True, dma_slot, 0, 0, 3)
    e("s_nop 15")
    c1 = -2.0 * 0.7978845608028654 * 1.4426950408889634
    e(f"s_mov_b32 s20, 0x{f2u(c1):08x}")
    e(f"s_mov_b32 s21, 0x{f2u(c1*0.044715):08x}")
    e("s_mov_b32 s4, 2752")
    e("v_mul_lo_u32 v5, v4, s4")
    e("v_lshl_add_u32 v5, v3, 4, v5")
    e("s_mul_i32 s23, s16, 192")
    for db in range(3):
        if db == 1:
            e("s_cmp_eq_u32 s16, 14")
            e(f"s_cbranch_scc1 {L}_end")
        for h in range(2):
            a = QA + db*16 + h*8
            gelu8(a, 112)
            for j in range(4):
                e(f"v_cvt_pk_bf16_f32 v{a+j}, v{a+2*j}, v{a+2*j+1}")
            e(f"buffer_store_dwordx4 {vr(a,4)}, v5, s[12:15], s23 offen offset:{(db*32+h*16)*2}")
    lab(f"{L}_end")
    e("s_endpgm")
    end(name, (240,1,1), (256,1,1), 65536 + 4096, 256)

def gen_lnz():
    name = "lnz_kernel"
    begin(name)
    L = "L_lnz_end"
    e("s_cmp_ge_u32 s2, 512")
    e(f"s_cbranch_scc1 {L}")
    e(f"s_load_dwordx2 s[6:7], s[0:1], {KA['ws']}")
    e("s_waitcnt lgkmcnt(0)")
    srd_off(8, 6, 7, WS['z'] + 688*2, 2048*1376*2 - 688*2); srd_off(12, 6, 7, WS['z2n'], 2048*704*2)
    e("v_lshrrev_b32 v1, 6, v0")
    e("v_and_b32 v2, 63, v0")
    e("s_lshl_b32 s3, s2, 2")
    e("v_add_u32 v1, s3, v1")
    e("s_mov_b32 s20, 2752")
    e("v_mul_lo_u32 v3, v1, s20")
    e("v_lshl_add_u32 v3, v2, 4, v3")
    e("s_mov_b32 s20, 1408")
    e("v_mul_lo_u32 v4, v1, s20")
    e("v_lshl_add_u32 v4, v2, 4, v4")
    e("buffer_load_dwordx4 v[8:11], v3, s[8:11], 0 offen")
    for i in range(4): e(f"v_mov_b32 v{12+i}, 0")
    e("v_cmp_gt_u32 vcc, 22, v2")
    e("s_and_saveexec_b64 s[22:23], vcc")
    e("buffer_load_dwordx4 v[12:15], v3, s[8:11], 0 offen offset:1024")
    e("s_mov_b64 exec, s[22:23]")
    e("s_waitcnt vmcnt(0)")
    for ch in range(2):
        for i in range(4):
            e(f"v_lshlrev_b32 v{16+8*ch+2*i}, 16, v{8+4*ch+i}")
            e(f"v_and_b32 v{17+8*ch+2*i}, 0xffff0000, v{8+4*ch+i}")
    def wsum(r, t):
        for dpp in ("row_shr:1", "row_shr:2", "row_shr:4", "row_shr:8", "row_bcast:15 row_mask:0xa", "row_bcast:31 row_mask:0xc"):
            e("s_nop 1")
            e(f"v_add_f32_dpp v{r}, v{r}, v{r} {dpp}" + (" bound_ctrl:0" if "shr" in dpp else ""))
        e("s_nop 1")
        e(f"v_readlane_b32 s24, v{r}, 63")
        e("s_nop 1")
        e(f"v_mov_b32 v{r}, s24")
    e("v_mov_b32 v6, v16")
    for i in range(1, 16): e(f"v_add_f32 v6, v6, v{16+i}")
    wsum(6, 7)
    e(f"s_mov_b32 s20, 0x{f2u(1.0/688):08x}")
    e("v_mul_f32 v6, s20, v6")
    e("v_cmp_gt_u32 vcc, 22, v2")
    for i in range(16):
        e(f"v_sub_f32 v{16+i}, v{16+i}, v6")
        if i >= 8: e(f"v_cndmask_b32 v{16+i}, 0, v{16+i}, vcc")
    e("v_mul_f32 v6, v16, v16")
    for i in range(1, 16): e(f"v_fmac_f32 v6, v{16+i}, v{16+i}")
    wsum(6, 7)
    e("v_mul_f32 v6, s20, v6")
    e(f"v_add_f32 v6, 0x{f2u(1e-5):08x}, v6")
    e("v_rsq_f32 v6, v6")
    e("s_nop 0")
    for i in range(16): e(f"v_mul_f32 v{16+i}, v{16+i}, v6")
    for ch in range(2):
        for i in range(4):
            e(f"v_cvt_pk_bf16_f32 v{8+4*ch+i}, v{16+8*ch+2*i}, v{17+8*ch+2*i}")
    e("buffer_store_dwordx4 v[8:11], v4, s[12:15], 0 offen")
    e("v_cmp_gt_u32 vcc, 24, v2")
    e("s_and_saveexec_b64 s[22:23], vcc")
    e("buffer_store_dwordx4 v[12:15], v4, s[12:15], 0 offen offset:1024")
    lab(L)
    e("s_endpgm")
    end(name, (512,1,1), (256,1,1), 0, 48)

def main():
    cfg = dict(kv=(256,256,32,2,4,4,0), op=(64,64,64,2,2,4,1), sp=(128,64,64,2,2,4,1), wo=(64,64,64,2,2,4,1))
    for a in sys.argv[2:]:
        k, v = a.split("=")
        cfg[k] = tuple(int(x) for x in v.split(","))
    raw('.amdgcn_target "amdgcn-amd-amdhsa--gfx950"')
    raw(".text")
    W = 512*4096*2
    BM, BN, BK, GM, GN, S, DP = cfg['kv']
    gen_gemm("kv_kernel", 2048, 8192, 512, BM, BN, BK, GM, GN, S,
             (('ka','ckv'), 1024, 2048*512*2), ([('ka','wuk'), ('ka','wuv')], 8192, W, 4096), 'kv', order=os.environ.get('KVORD','nm'), withmod=True, deep=DP)
    gen_attn()
    BM, BN, BK, GM, GN, S, DP = cfg['op']
    gen_gemm("oproj_kernel", 2048, 512, 4096, BM, BN, BK, GM, GN, S,
             (('ws','ctx'), 8192, 2048*4096*2), ([('ka','wo')], 1024, 4096*512*2, 512), 'oproj', order='mn', deep=DP)
    gen_win()
    gen_lnz()
    BM, BN, BK, GM, GN, S, DP = cfg['sp']
    gen_gemm("wsp_kernel", 2048, 688, 2048, BM, BN, BK, GM, GN, S,
             (('ka','wsp'), 4096, 2048*2048*2), ([('ws','z2n')], 1408, 2048*704*2, 1024), 'sp', order='mn', deep=DP)
    BM, BN, BK, GM, GN, S, DP = cfg['wo']
    gen_gemm("wout_kernel", 2048, 512, 704, BM, BN, BK, GM, GN, S,
             (('ws','u'), 1408, 2048*704*2), ([('ka','wout')], 1024, 688*512*2, 512), 'final', order='mn', deep=DP)
    hdr = open("adaLN_cond__compressed_kv_cla__mixer_gmlp__prompt.s.ref").read().split("\n")
    hdr = [h for h in hdr if h.startswith(";") and "@launch" not in h and "Override" not in h and "grid=ceil" not in h]
    txt = "\n".join(hdr) + "\n"
    for (n, g, b, lds, nv, ns) in kernels:
        txt += f"; @launch kernel={n} grid=({g[0]},{g[1]},{g[2]}) block=({b[0]},{b[1]},{b[2]}) lds={lds}\n"
    txt += "\n".join(out) + "\n"
    txt += '.section .rodata,"a"\n'
    for (n, g, b, lds, nv, ns) in kernels:
        nv8 = (nv + 7) // 8 * 8
        txt += f""".p2align 6
.amdhsa_kernel {n}
  .amdhsa_next_free_vgpr {nv8}
  .amdhsa_next_free_sgpr {ns}
  .amdhsa_accum_offset {min(nv8,256)}
  .amdhsa_group_segment_fixed_size 0
  .amdhsa_kernarg_size 128
  .amdhsa_user_sgpr_count 2
  .amdhsa_user_sgpr_kernarg_segment_ptr 1
  .amdhsa_system_sgpr_workgroup_id_x 1
.end_amdhsa_kernel
"""
    open(sys.argv[1], "w").write(txt)
    for k in kernels: print(k)

main()
```

```python
from v2_common import *

class LG:
    def __init__(self): self.n = 0
    def issue(self, k=1):
        self.n += k; return self.n
    def wait(self, ticket):
        left = self.n - ticket
        e(f"s_waitcnt lgkmcnt({min(left, 15)})")
    def waitall(self):
        e("s_waitcnt lgkmcnt(0)")

def lnproj_prologue(L, X, QA, WF, MT0, AW, xs_srd, xrow_v, lg, mod_lds, wchunk_dma, after_chunk, nchunks=4):
    T = 20
    e("v_mov_b32 v28, 0"); e("v_mov_b32 v29, 0")
    e("s_mov_b32 s44, 0x3f803f80")
    for i in range(128):
        e(f"v_dot2_f32_bf16 v28, v{X+i}, s44, v28")
        e(f"v_dot2_f32_bf16 v29, v{X+i}, v{X+i}, v29")
    e("v_mov_b32 v30, v28"); e("v_mov_b32 v31, v29")
    e("s_nop 1")
    e("v_permlane32_swap_b32 v28, v30")
    e("v_permlane32_swap_b32 v29, v31")
    e("s_nop 1")
    e("v_add_f32 v28, v28, v30")
    e("v_add_f32 v29, v29, v31")
    e(f"v_mul_f32 v28, 0x{f2u(1/512):08x}, v28")
    e(f"v_mul_f32 v29, 0x{f2u(1/512):08x}, v29")
    e("v_fma_f32 v29, -v28, v28, v29")
    e("v_max_f32 v29, 0, v29")
    e(f"v_add_f32 v29, 0x{f2u(1e-5):08x}, v29")
    e("v_rsq_f32 v29, v29")
    e("s_nop 0")
    e("v_mul_f32 v28, v28, v29")
    e("v_sub_f32 v28, 0, v28")
    import os
    if os.environ.get('ATT_EXIT') == '2': e("s_endpgm")
    e("v_lshlrev_b32 v30, 5, v3")
    e(f"v_add_u32 v30, {mod_lds}, v30")
    mod_lds = 0
    def modreads(s):
        e(f"ds_read_b128 {vr(MT0,4)}, v30 offset:{mod_lds + s*64}")
        e(f"ds_read_b128 {vr(MT0+4,4)}, v30 offset:{mod_lds + s*64 + 16}")
        e(f"ds_read_b128 {vr(MT0+8,4)}, v30 offset:{mod_lds + 2048 + s*64}")
        e(f"ds_read_b128 {vr(MT0+12,4)}, v30 offset:{mod_lds + 2048 + s*64 + 16}")
        return lg.issue(4)
    def hpart(s, half):
        for j in range(2):
            r = X + 4*s + 2*half + j
            a = T + 4*half + 2*j
            m = 4*half + 2*j
            e(f"v_lshlrev_b32 v{a}, 16, v{r}")
            e(f"v_and_b32 v{a+1}, 0xffff0000, v{r}")
            e(f"v_fma_f32 v{a}, v{a}, v29, v28")
            e(f"v_fma_f32 v{a+1}, v{a+1}, v29, v28")
            e(f"v_fma_f32 v{a}, v{a}, v{MT0+m}, v{MT0+8+m}")
            e(f"v_fma_f32 v{a+1}, v{a+1}, v{MT0+m+1}, v{MT0+8+m+1}")
            e(f"v_cvt_pk_bf16_f32 v{r}, v{a}, v{a+1}")
    def wreads(s, dbs):
        base = ((s // 8) % 2) * 32768 + (s % 8) * 4096
        for db in dbs:
            e(f"ds_read_b64_tr_b16 {vr(WF+db*4,2)}, v{AW+db} offset:{base}")
            e(f"ds_read_b64_tr_b16 {vr(WF+db*4+2,2)}, v{AW+db} offset:{base + 1024}")
        return lg.issue(2*len(dbs))
    def mf(s, db):
        c = "0" if s == 0 else vr(QA+db*16,16)
        e(f"v_mfma_f32_32x32x16_bf16 {vr(QA+db*16,16)}, {vr(WF+db*4,4)}, {vr(X+4*s,4)}, {c}")
    after_chunk(-1)
    tm = modreads(0)
    tw01 = wreads(0, [0, 1]); tw23 = wreads(0, [2, 3])
    lg.wait(tm)
    hpart(0, 0); hpart(0, 1)
    tm = modreads(1)
    NS = nchunks * 8
    for s in range(NS):
        lastc = (s % 8 == 7)
        lg.wait(tw01)
        mf(s, 0); mf(s, 1)
        if not lastc: tw01n = wreads(s+1, [0, 1])
        if s + 1 < NS:
            lg.wait(tm)
            hpart(s+1, 0)
        lg.wait(tw23)
        mf(s, 2); mf(s, 3)
        if not lastc: tw23n = wreads(s+1, [2, 3])
        if s + 1 < NS:
            hpart(s+1, 1)
            if s + 2 < NS: tm = modreads(s+2)
        if lastc:
            lg.waitall()
            after_chunk(s // 8)
            if s + 1 < NS:
                tw01n = wreads(s+1, [0, 1]); tw23n = wreads(s+1, [2, 3])
        if s + 1 < NS:
            tw01, tw23 = tw01n, tw23n

def gen_attn():
    name = "attn_kernel"
    L = "L_attn"
    lg = LG()
    begin(name)
    e("s_cmp_ge_u32 s2, 512")
    e(f"s_cbranch_scc1 {L}_end")
    load_kargs()
    e("s_and_b32 s4, s2, 7")
    e("s_lshr_b32 s5, s2, 3")
    e("s_and_b32 s6, s5, 1")
    e("s_lshr_b32 s7, s5, 5")
    e("s_bfe_u32 s16, s5, 0x40001")
    e("s_lshl_b32 s17, s7, 4")
    e("s_or_b32 s16, s16, s17")
    e("s_xor_b32 s6, s6, s7")
    e("s_and_b32 s17, s16, 7")
    e("s_sub_u32 s18, 15, s17")
    e("s_cmp_eq_u32 s6, 0")
    e("s_cselect_b32 s17, s18, s17")
    e("s_lshr_b32 s16, s16, 3")
    e("s_lshl_b32 s16, s16, 3")
    e("s_add_u32 s16, s16, s4")
    e("v_mov_b32 v9, v0")
    e("v_lshrrev_b32 v1, 6, v0")
    e("v_and_b32 v0, 63, v0")
    e("s_nop 0")
    e("v_readfirstlane_b32 s20, v1")
    e("s_waitcnt lgkmcnt(0)")
    wsl, wsh = kaptr('ws')
    srd_off(8, wsl, wsh, WS['k'], 32*MB)
    srd_off(12, wsl, wsh, WS['ctx'], 16*MB)
    xl, xh = kaptr('x'); srd(32, xl, xh, 2048*512*2)
    ql, qh = kaptr('wq'); srd(36, ql, qh, 512*4096*2)
    srd_off(56, wsl, wsh, WS['mod'], 3072*4)
    VK, VV, VW, VM, VL, VREL = 10, 11, 12, 13, 14, 15
    AV, AK, VMC, T = 16, 20, 28, 29
    Q, P, KF, O, S0, S1, MT0 = 32, 64, 80, 112, 176, 208, 240
    X, QA, WF = 112, 32, 96
    MODL = 65536
    e("v_and_b32 v2, 31, v0")
    e("v_lshrrev_b32 v3, 5, v0")
    e("s_lshl_b32 s22, s17, 7")
    e("s_lshl_b32 s23, s20, 5")
    e("s_add_u32 s22, s22, s23")
    e("v_add_u32 v4, s22, v2")
    e("v_lshlrev_b32 v5, 10, v4")
    e("v_lshl_add_u32 v5, v3, 4, v5")
    for s in range(32):
        e(f"buffer_load_dwordx4 {vr(X+4*s,4)}, v5, s[32:35], 0 offen offset:{s*32}")
    e("v_lshlrev_b32 v6, 3, v9")
    e("s_mov_b32 s4, 2048")
    e(f"buffer_load_dwordx2 v[{MT0}:{MT0+1}], v6, s[56:59], s4 offen")
    e(f"buffer_load_dwordx2 v[{MT0+2}:{MT0+3}], v6, s[56:59], 0 offen")
    e("v_lshrrev_b32 v6, 4, v0")
    e("s_lshl_b32 s23, s20, 2")
    e("v_add_u32 v7, s23, v6")
    e("v_and_b32 v8, 15, v0")
    e("v_xor_b32 v7, v7, v8")
    e("v_lshlrev_b32 v1, 8, v6")
    e(f"v_lshl_add_u32 v{VK}, v7, 4, v1")
    e("v_bfe_u32 v7, v0, 2, 2")
    e("v_xor_b32 v7, v7, v6")
    e("v_and_b32 v8, 3, v0")
    e("v_lshlrev_b32 v7, 6, v7")
    e("v_lshl_add_u32 v7, v8, 4, v7")
    e(f"v_add_u32 v{VV}, v7, v1")
    e("v_lshlrev_b32 v1, 13, v6")
    e(f"v_add_u32 v{VW}, v7, v1")
    e("s_lshl_b32 s25, s20, 10")
    e("s_lshl_b32 s45, s16, 8")
    e("s_lshl_b32 s4, s20, 15")
    e("s_add_u32 s45, s45, s4")
    def wdma(c):
        for i in range(8):
            e(f"s_add_u32 m0, s25, {(c%2)*32768 + i*4096}")
            e(f"s_add_u32 s4, s45, {(c*128 + i*16)*8192}")
            e(f"buffer_load_dwordx4 v{VW}, s[36:39], s4 offen lds")
    wdma(0); wdma(1)
    e("v_bfe_u32 v6, v0, 2, 2")
    e("v_bfe_u32 v8, v0, 4, 1")
    e("v_lshlrev_b32 v8, 5, v8")
    e("v_and_b32 v7, 1, v0")
    e("v_lshl_add_u32 v8, v7, 4, v8")
    e("v_bfe_u32 v7, v0, 1, 1")
    e("v_lshl_add_u32 v8, v7, 3, v8")
    e("v_lshl_add_u32 v7, v3, 3, v6")
    e("v_lshl_add_u32 v7, v7, 8, v8")
    for db in range(4):
        e(f"v_xor_b32 v1, {db}, v6")
        e(f"v_lshl_add_u32 v{AV+db}, v1, 6, v7")
    e("s_lshl_b32 s21, s16, 19")
    e("s_lshl_b32 s23, s20, 10")
    e("s_add_u32 s24, s21, s23")
    e(f"s_add_u32 s26, s24, 0x{16*MB:x}")
    e("s_lshl_b32 s27, s17, 1")
    e("s_add_u32 s27, s27, 2")
    import os
    if os.environ.get('ATT_FLAT'): e(f"s_mov_b32 s27, {os.environ.get('ATT_FLAT')}")
    e("s_mov_b32 s46, 0")
    e("s_mov_b32 s47, 0")
    import os
    NODMA = os.environ.get('ATT_NODMA')
    def kdma(buf):
        e("s_cmp_lt_u32 s46, s27")
        e("s_cselect_b32 s5, s24, 0x7f000000")
        if NODMA: e("s_mov_b32 s5, 0x7f000000")
        for i in range(4):
            e(f"s_add_u32 m0, s25, {buf*16384 + i*4096}")
            e(f"s_add_u32 s4, s5, {i*4096}")
            e(f"buffer_load_dwordx4 v{VK}, s[8:11], s4 offen lds")
        e("s_add_u32 s24, s24, 16384")
        e("s_add_u32 s46, s46, 1")
    def vdma(buf):
        e("s_cmp_lt_u32 s47, s27")
        e("s_cselect_b32 s5, s26, 0x7f000000")
        if NODMA: e("s_mov_b32 s5, 0x7f000000")
        for i in range(4):
            e(f"s_add_u32 m0, s25, {32768 + buf*16384 + i*4096}")
            e(f"s_add_u32 s4, s5, {i*4096}")
            e(f"buffer_load_dwordx4 v{VV}, s[8:11], s4 offen lds")
        e("s_add_u32 s26, s26, 16384")
        e("s_add_u32 s47, s47, 1")
    e("s_waitcnt vmcnt(16)")
    if os.environ.get('ATT_EXIT') == '1': e("s_endpgm")
    e(f"v_add_f32 v{MT0}, 1.0, v{MT0}")
    e(f"v_add_f32 v{MT0+1}, 1.0, v{MT0+1}")
    e(f"v_cvt_pk_bf16_f32 v{MT0}, v{MT0}, v{MT0+1}")
    e(f"v_and_b32 v{MT0+1}, 0xffff0000, v{MT0}")
    e(f"v_lshlrev_b32 v{MT0}, 16, v{MT0}")
    e("v_lshlrev_b32 v6, 3, v9")
    e(f"v_add_u32 v6, {MODL}, v6")
    e(f"ds_write_b64 v6, v[{MT0}:{MT0+1}]")
    e(f"ds_write_b64 v6, v[{MT0+2}:{MT0+3}] offset:2048")
    def after_chunk(c):
        if c == -1:
            e("s_waitcnt vmcnt(8) lgkmcnt(0)"); e("s_barrier")
        elif c == 0:
            e("s_waitcnt vmcnt(0)"); e("s_barrier"); wdma(2)
        elif c == 1:
            e("s_waitcnt vmcnt(0)"); e("s_barrier"); wdma(3)
        elif c == 2:
            e("s_waitcnt vmcnt(0)"); e("s_barrier"); kdma(0); kdma(1)
        elif c == 3:
            e("s_barrier"); vdma(0)
    lnproj_prologue(L, X, QA, WF, MT0, AV, None, None, lg, MODL, None, after_chunk)
    e("s_nop 15")
    if os.environ.get('ATT_EXIT') == '3': e("s_endpgm")
    for i in range(32):
        e(f"v_cvt_pk_bf16_f32 v{Q+i}, v{QA+2*i}, v{QA+2*i+1}")
    e("v_lshlrev_b32 v6, 2, v3")
    e(f"v_sub_u32 v{VREL}, v4, v6")
    e("v_and_b32 v6, 15, v0")
    e("v_xor_b32 v6, v6, v3")
    e("v_lshlrev_b32 v7, 8, v2")
    for ds in range(8):
        e(f"v_xor_b32 v1, {2*ds}, v6")
        e(f"v_lshl_add_u32 v{AK+ds}, v1, 4, v7")
    e("v_bfe_u32 v6, v0, 2, 2")
    e("v_lshl_add_u32 v7, v3, 2, v6")
    e("v_lshl_add_u32 v7, v7, 8, v8")
    e("v_add_u32 v7, 32768, v7")
    for db in range(4):
        e(f"v_xor_b32 v1, {db}, v6")
        e(f"v_lshl_add_u32 v{AV+db}, v1, 6, v7")
    for i in range(64):
        e(f"v_mov_b32 v{O+i}, 0")
    e(f"v_mov_b32 v{VM}, 0xf149f2ca")
    e(f"v_mov_b32 v{VL}, 0")
    e(f"v_mov_b32 v{VMC}, 0")
    csc = (128 ** -0.5) * 1.4426950408889634
    e(f"s_mov_b32 s28, 0x{f2u(csc):08x}")
    e(f"s_mov_b32 s31, 0x{f2u(8.0/csc):08x}")
    e("s_mov_b32 s29, 0")
    e("s_sub_u32 s30, s27, 2")
    e("s_mov_b32 s43, 0")
    SB = [S0, S1]
    def kread(buf, g):
        if os.environ.get('ATT_NOLDS'): return lg.issue(0)
        f = KF + (g & 1) * 16
        for j in range(4):
            ds = (g % 2) * 4 + j
            e(f"ds_read_b128 {vr(f+j*4,4)}, v{AK+ds} offset:{buf*16384 + (g//2)*8192}")
        return lg.issue(4)
    def vread(buf, t):
        if os.environ.get('ATT_NOLDS'): return lg.issue(0)
        f = KF + (t & 1) * 16
        for db in range(4):
            e(f"ds_read_b64_tr_b16 {vr(f+db*4,2)}, v{AV+db} offset:{buf*16384 + t*4096}")
            e(f"ds_read_b64_tr_b16 {vr(f+db*4+2,2)}, v{AV+db} offset:{buf*16384 + t*4096 + 2048}")
        return lg.issue(8)
    def qk_mfma(S, g, j):
        ds = (g % 2) * 4 + j; kb = g // 2
        c = "0" if ds == 0 else vr(S+kb*16,16)
        return f"v_mfma_f32_32x32x16_bf16 {vr(S+kb*16,16)}, {vr(KF+(g&1)*16+j*4,4)}, {vr(Q+4*ds,4)}, {c}"
    def pv_mfma(t, db):
        return f"v_mfma_f32_32x32x16_bf16 {vr(O+db*16,16)}, {vr(KF+(t&1)*16+db*4,4)}, {vr(P+4*t,4)}, {vr(O+db*16,16)}"
    uid = [0]
    def mask_max(S):
        uid[0] += 1
        lb = f"{L}_nm{uid[0]}"
        o = []
        o.append(("blk", [
            "s_cmp_lt_u32 s43, s30",
            f"s_cbranch_scc1 {lb}",
            f"v_subrev_u32 v{T}, s29, v{VREL}",
            f"v_mov_b32 v{T+1}, 0xf149f2ca"] +
            sum([[f"v_cmp_gt_i32 vcc, {kb*32 + (i//4)*8 + i%4}, v{T}", "s_nop 1",
                  f"v_cndmask_b32 v{S+kb*16+i}, v{S+kb*16+i}, v{T+1}, vcc"] for kb in range(2) for i in range(16)], []) +
            [f"{lb}:", "s_add_u32 s29, s29, 64", "s_add_u32 s43, s43, 1"]))
        o.append(f"v_max3_f32 v{T}, v{S}, v{S+1}, v{S+2}")
        o.append(f"v_max3_f32 v{T+1}, v{S+3}, v{S+4}, v{S+5}")
        for i in range(6, 30, 4):
            o.append(f"v_max3_f32 v{T}, v{T}, v{S+i}, v{S+i+1}")
            o.append(f"v_max3_f32 v{T+1}, v{T+1}, v{S+i+2}, v{S+i+3}")
        o.append(f"v_max3_f32 v{T}, v{T}, v{S+30}, v{S+31}")
        o.append(f"v_max_f32 v{T}, v{T}, v{T+1}")
        o.append(("blk", [f"v_mov_b32 v{T+1}, v{T}", "s_nop 1", f"v_permlane32_swap_b32 v{T}, v{T+1}", "s_nop 1",
                          f"v_max_f32 v{T}, v{T}, v{T+1}",
                          f"v_add_f32 v{T+1}, s31, v{VM}",
                          f"v_cmp_gt_f32 s[40:41], v{T}, v{T+1}"]))
        return o
    def slowpath():
        uid[0] += 1
        lb = f"{L}_sp{uid[0]}"
        e("s_cmp_eq_u64 s[40:41], 0")
        e(f"s_cbranch_scc1 {lb}")
        e("s_nop 15")
        e(f"v_max_f32 v{T}, v{T}, v{VM}")
        e(f"v_sub_f32 v{T+1}, v{VM}, v{T}")
        e(f"v_mul_f32 v{T+1}, s28, v{T+1}")
        e(f"v_exp_f32 v{T+1}, v{T+1}")
        e(f"v_mov_b32 v{VM}, v{T}")
        e(f"v_mul_f32 v{VMC}, s28, v{T}")
        e(f"v_mul_f32 v{VL}, v{VL}, v{T+1}")
        for i in range(64):
            e(f"v_mul_f32 v{O+i}, v{O+i}, v{T+1}")
        lab(lb)
    def exps(S, t):
        b = S + t*8
        o = []
        for i in range(8): o.append(f"v_fma_f32 v{b+i}, v{b+i}, s28, -v{VMC}")
        for i in range(8): o.append(f"v_exp_f32 v{b+i}, v{b+i}")
        for j in range(4):
            o.append(f"v_add_f32 v{VL}, v{VL}, v{b+2*j}")
            o.append(f"v_cvt_pk_bf16_f32 v{P+t*4+j}, v{b+2*j}, v{b+2*j+1}")
            o.append(f"v_add_f32 v{VL}, v{VL}, v{b+2*j+1}")
        return o
    def emit(x):
        if isinstance(x, tuple):
            for s in x[1]:
                if s.endswith(":"): lab(s[:-1])
                else: e(s)
        else: e(x)
    e("s_waitcnt vmcnt(8)")
    e("s_barrier")
    tk = kread(0, 0)
    for g in range(4):
        if g < 3: tkn = kread(0, g+1)
        lg.wait(tk)
        for j in range(4): e(qk_mfma(S0, g, j))
        if g < 3: tk = tkn
    e("s_barrier")
    kdma(0)
    e("s_nop 7")
    for x in mask_max(S0): emit(x)
    e("s_waitcnt vmcnt(8)")
    e("s_barrier")
    vdma(1)
    tk = kread(1, 0)
    e("s_lshr_b32 s42, s27, 1")
    if os.environ.get('ATT_NOLOOP'): e(f"s_branch {L}_fin")
    lab(f"{L}_loop")
    for u in range(2):
        cur, nxt = SB[u], SB[u ^ 1]
        kb_, vb_ = u ^ 1, u
        fill = exps(cur, 0) + exps(cur, 1) + exps(cur, 2) + exps(cur, 3)
        mm = mask_max(nxt)
        slowpath()
        if os.environ.get('ATT_NOVALU'): fill = []; mm = []
        quota = [4, 5, 4, 5]
        slot = 0
        def fillers(n):
            for _ in range(n):
                if fill: emit(fill.pop(0))
        for g in range(4):
            lg.wait(tk)
            e(qk_mfma(nxt, g, 0))
            if g < 3:
                tkn = kread(kb_, g+1)
            else:
                e("s_waitcnt vmcnt(8)")
                if not os.environ.get('ATT_NOBAR'): e("s_barrier")
                kdma(kb_)
                tkn = vread(vb_, 0)
            fillers(3)
            for j in range(1, 4):
                e(qk_mfma(nxt, g, j))
                fillers(quota[(slot + j) % 4])
            tk = tkn
        for t in range(4):
            need = 28 * (3 - t)
            while len(fill) > need: emit(fill.pop(0))
            lg.wait(tk)
            e("s_nop 0")
            e(pv_mfma(t, 0))
            if t < 3:
                tkn = vread(vb_, t+1)
            else:
                e("s_waitcnt vmcnt(8)")
                if not os.environ.get('ATT_NOBAR'): e("s_barrier")
                vdma(vb_)
                tkn = kread(u, 0)
            if t >= 1 and not fill:
                src = mm
            else:
                src = fill
            for db in range(1, 4):
                for _ in range(4 if db > 1 else 3):
                    if fill: emit(fill.pop(0))
                    elif t >= 1 and mm: emit(mm.pop(0))
                e(pv_mfma(t, db))
            for _ in range(2):
                if fill: emit(fill.pop(0))
                elif t >= 1 and mm: emit(mm.pop(0))
            tk = tkn
        while mm: emit(mm.pop(0))
    e("s_sub_u32 s42, s42, 1")
    e("s_cmp_lg_u32 s42, 0")
    e(f"s_cbranch_scc1 {L}_loop")
    lab(f"{L}_fin")
    e("s_nop 15")
    e(f"v_mov_b32 v{T}, v{VL}")
    e("s_nop 1")
    e(f"v_permlane32_swap_b32 v{T}, v{VL}")
    e("s_nop 1")
    e(f"v_add_f32 v{T}, v{T}, v{VL}")
    e(f"v_rcp_f32 v{T}, v{T}")
    e("v_lshlrev_b32 v5, 13, v4")
    e("v_lshl_add_u32 v5, v3, 4, v5")
    e("s_lshl_b32 s23, s16, 8")
    for db in range(4):
        for h in range(2):
            a = O + db*16 + h*8
            for j in range(8):
                e(f"v_mul_f32 v{a+j}, v{a+j}, v{T}")
            for j in range(4):
                e(f"v_cvt_pk_bf16_f32 v{a+j}, v{a+2*j}, v{a+2*j+1}")
            e(f"buffer_store_dwordx4 {vr(a,4)}, v5, s[12:15], s23 offen offset:{(db*32+h*16)*2}")
    e("s_waitcnt vmcnt(0)")
    lab(f"{L}_end")
    e("s_endpgm")
    end(name, (512,1,1), (256,1,1), 65536 + 4096, 256)
```

```python
import sys, struct
KA = dict(x=0, ckv=8, wq=16, wuk=24, wuv=32, wo=40, bx=48, win=56, wsp=64, bsp=72, wout=80, c=88, wmod=96, out=104, dbg=112, ws=120)
MB = 1 << 20
WS = dict(mod=0, k=20*MB, v=36*MB, ctx=52*MB, x1=68*MB, z=74*MB, z2n=80*MB, u=84*MB, xh=88*MB, st=92*MB, x1t=96*MB)
out = []
def e(s): out.append("    " + s)
def lab(s): out.append(s + ":")
def raw(s): out.append(s)
kernels = []
def begin(name):
    raw(f".globl {name}"); raw(".p2align 8"); raw(f".type {name},@function"); lab(name)
def end(name, grid, block, lds, nv, ns=100):
    kernels.append((name, grid, block, lds, nv, ns))
def srd(d, lo, hi, nbytes):
    e(f"s_mov_b32 s{d}, s{lo}"); e(f"s_mov_b32 s{d+1}, s{hi}")
    e(f"s_mov_b32 s{d+2}, 0x{nbytes:x}"); e(f"s_mov_b32 s{d+3}, 0x00020000")
def srd_off(d, lo, hi, off, nbytes):
    e(f"s_add_u32 s{d}, s{lo}, 0x{off:x}"); e(f"s_addc_u32 s{d+1}, s{hi}, 0")
    e(f"s_mov_b32 s{d+2}, 0x{nbytes:x}"); e(f"s_mov_b32 s{d+3}, 0x00020000")
def vr(a, n): return f"v[{a}:{a+n-1}]"
def f2u(x): return struct.unpack("<I", struct.pack("<f", x))[0]
def kaptr(n):
    o = KA[n] // 4
    return 64 + o, 65 + o
def load_kargs():
    e("s_load_dwordx16 s[64:79], s[0:1], 0")
    e("s_load_dwordx16 s[80:95], s[0:1], 64")
def log2(x):
    assert x & (x - 1) == 0 and x > 0
    return x.bit_length() - 1
def sdiv(dst, src, d, tmp):
    if d & (d - 1) == 0:
        e(f"s_lshr_b32 s{dst}, s{src}, {log2(d)}")
    else:
        e(f"s_mov_b32 s{tmp}, 0x{(1 << 32) // d + 1:x}")
        e(f"s_mul_hi_u32 s{dst}, s{src}, s{tmp}")

def gelu8(a, t):
    for j in range(8):
        e(f"v_mul_f32 v{t+j}, v{a+j}, v{a+j}")
        e(f"v_fma_f32 v{t+j}, v{t+j}, s21, v1") if False else None
    for j in range(8):
        e(f"v_mul_f32 v{t+j}, s21, v{t+j}")
        e(f"v_add_f32 v{t+j}, s20, v{t+j}")
        e(f"v_mul_f32 v{t+j}, v{t+j}, v{a+j}")
        e(f"v_exp_f32 v{t+j}, v{t+j}")
    for j in range(8):
        e(f"v_add_f32 v{t+j}, 1.0, v{t+j}")
        e(f"v_rcp_f32 v{t+j}, v{t+j}")
    e("s_nop 0")
    for j in range(8):
        e(f"v_mul_f32 v{a+j}, v{t+j}, v{a+j}")

def gen_gemm(name, M, N, K, BM, BN, BK, GM, GN, S, A, B, epi, order='mn', withmod=False, deep=False):
    NW = GM * GN
    nk = (K + BK - 1) // BK
    ks = BK // 16
    nbm, nbn = M // BM, (N + BN - 1) // BN
    ntile = nbm * nbn
    assert ntile % 8 == 0
    WM, WN = BM // GM, BN // GN
    MT, NT = WM // 32, WN // 32
    SW = min(BN, 128)
    RB = SW * 2
    CPS = SW // 32
    AROW = BK * 2
    ABYTES = BM * AROW
    BBYTES = BK * BN * 2
    BUF = ABYTES + BBYTES
    rowsA = 1024 // AROW
    rowsB = 1024 // RB
    nA, nB = BM // rowsA, BBYTES // 1024
    assert nA % NW == 0 and nB % NW == 0, (nA, nB, NW)
    nAi, nBi = nA // NW, nB // NW
    nper = nAi + nBi
    nj = BK // rowsB
    (Aptr, As, Abytes) = A
    (Bptrs, Bs, Bbytes, segN) = B
    L = f"L_{name}"
    begin(name)
    e(f"s_cmp_ge_u32 s2, {ntile}")
    e(f"s_cbranch_scc1 {L}_end")
    load_kargs()
    import os
    if epi == 'kv' and os.environ.get('KVPRIO'):
        e("s_cmp_lt_u32 s2, 256")
        e(f"s_cbranch_scc0 {L}_np")
        e(f"s_setprio {os.environ.get('KVPRIO')}")
        lab(f"{L}_np")
    e("s_and_b32 s4, s2, 7")
    e("s_lshr_b32 s5, s2, 3")
    e(f"s_mul_i32 s4, s4, {ntile//8}")
    e("s_add_u32 s4, s4, s5")
    if order == 'mn':
        sdiv(28, 4, nbn, 5)
        e(f"s_mul_i32 s5, s28, {nbn}")
        e("s_sub_u32 s29, s4, s5")
    else:
        sdiv(29, 4, nbm, 5)
        e(f"s_mul_i32 s5, s29, {nbm}")
        e("s_sub_u32 s28, s4, s5")
    if os.environ.get('SAMEA') == name: e("s_mov_b32 s28, 0")
    if os.environ.get('SAMEB') == name: e("s_mov_b32 s29, 0")
    e(f"s_mul_i32 s28, s28, {BM}")
    e(f"s_mul_i32 s29, s29, {BN}")
    e("s_waitcnt lgkmcnt(0)")
    def ptr(spec):
        if spec[0] == 'ka':
            lo, hi = kaptr(spec[1]); return (lo, hi, 0)
        lo, hi = kaptr('ws'); return (lo, hi, WS[spec[1]])
    lo, hi, ex = ptr(Aptr)
    srd_off(8, lo, hi, ex, Abytes)
    if len(Bptrs) > 1:
        e(f"s_lshr_b32 s3, s29, {log2(segN)}")
        e(f"s_and_b32 s29, s29, {segN-1}")
    for si, sp in enumerate(Bptrs):
        lo, hi, ex = ptr(sp)
        if si == 0:
            e(f"s_add_u32 s12, s{lo}, 0x{ex:x}"); e(f"s_addc_u32 s13, s{hi}, 0")
        else:
            e(f"s_add_u32 s4, s{lo}, 0x{ex:x}"); e(f"s_addc_u32 s5, s{hi}, 0")
            e(f"s_cmp_eq_u32 s3, {si}")
            e("s_cselect_b32 s12, s4, s12"); e("s_cselect_b32 s13, s5, s13")
    e(f"s_mov_b32 s14, 0x{Bbytes:x}"); e("s_mov_b32 s15, 0x00020000")
    e("v_mov_b32 v9, v0")
    e("v_lshrrev_b32 v1, 6, v0")
    e("v_and_b32 v0, 63, v0")
    e("s_nop 0")
    e("v_readfirstlane_b32 s30, v1")
    if BK == 32:
        e("v_lshrrev_b32 v2, 2, v0"); e("v_and_b32 v3, 3, v0"); e("v_lshrrev_b32 v4, 4, v0"); e("v_xor_b32 v3, v3, v4")
    else:
        e("v_lshrrev_b32 v2, 3, v0"); e("v_and_b32 v3, 7, v0"); e("v_lshrrev_b32 v4, 4, v0")
        e("s_and_b32 s4, s30, 1"); e("s_lshl_b32 s4, s4, 2"); e("v_or_b32 v4, s4, v4"); e("v_xor_b32 v3, v3, v4")
    e(f"s_mov_b32 s4, {As}")
    e("v_mul_lo_u32 v2, v2, s4")
    e("v_lshl_add_u32 v2, v3, 4, v2")
    if RB == 256:
        e("v_lshrrev_b32 v3, 4, v0"); e("v_bfe_u32 v4, v0, 2, 2"); e("v_xor_b32 v4, v4, v3"); e("v_and_b32 v5, 3, v0")
    else:
        e("v_lshrrev_b32 v3, 3, v0"); e("v_bfe_u32 v4, v0, 2, 1"); e("v_bfe_u32 v5, v0, 4, 1"); e("v_xor_b32 v4, v4, v5"); e("v_and_b32 v5, 3, v0")
    e(f"s_mov_b32 s4, {Bs}")
    e("v_mul_lo_u32 v3, v3, s4")
    e("v_lshl_add_u32 v3, v4, 6, v3")
    e("v_lshl_add_u32 v3, v5, 4, v3")
    SA, SB = 32, 40
    e(f"s_mul_i32 s4, s30, {rowsA}")
    e("s_add_u32 s4, s4, s28")
    e(f"s_mul_i32 s4, s4, {As}")
    for t in range(nAi):
        e(f"s_add_u32 s{SA+t}, s4, {t*NW*rowsA*As}")
    for t in range(nBi):
        e(f"s_add_u32 s4, s30, {NW*t}")
        e(f"s_and_b32 s5, s4, {nj-1}")
        e(f"s_lshr_b32 s4, s4, {log2(nj)}")
        e(f"s_mul_i32 s5, s5, {rowsB*Bs}")
        e(f"s_mul_i32 s4, s4, {SW*2}")
        e("s_add_u32 s4, s4, s5")
        e("s_lshl_b32 s5, s29, 1")
        e(f"s_add_u32 s{SB+t}, s4, s5")
    e("s_lshl_b32 s48, s30, 10")
    sdiv(49, 30, GN, 4)
    e(f"s_mul_i32 s4, s49, {GN}")
    e("s_sub_u32 s50, s30, s4")
    e("v_and_b32 v4, 31, v0")
    e("v_lshrrev_b32 v5, 5, v0")
    if BK == 32: e("v_bfe_u32 v6, v0, 2, 2")
    else: e("v_bfe_u32 v6, v0, 1, 3")
    e("v_xor_b32 v6, v6, v5")
    e(f"s_mul_i32 s4, s49, {WM*AROW}")
    e(f"v_lshlrev_b32 v7, {log2(AROW)}, v4")
    e("v_add_u32 v7, s4, v7")
    for s in range(ks):
        e(f"v_xor_b32 v8, {2*s}, v6")
        e(f"v_lshl_add_u32 v{10+s}, v8, 4, v7")
    e("v_bfe_u32 v4, v0, 2, 2")
    e("v_lshl_add_u32 v8, v5, 3, v4")
    e(f"v_lshlrev_b32 v8, {log2(RB)}, v8")
    e("v_bfe_u32 v6, v0, 4, 1")
    e("v_lshl_add_u32 v8, v6, 5, v8")
    e("v_and_b32 v6, 1, v0")
    e("v_lshl_add_u32 v8, v6, 4, v8")
    e("v_bfe_u32 v6, v0, 1, 1")
    e("v_lshl_add_u32 v8, v6, 3, v8")
    e(f"v_add_u32 v8, {ABYTES}, v8")
    if RB == 256: e("v_mov_b32 v6, v4")
    else: e("v_lshrrev_b32 v6, 1, v4")
    for nt in range(NT):
        e(f"s_mul_i32 s4, s50, {NT}")
        e(f"s_add_u32 s4, s4, {nt}")
        e(f"s_and_b32 s5, s4, {CPS-1}")
        e(f"s_lshr_b32 s4, s4, {log2(CPS)}")
        e(f"s_mul_i32 s4, s4, {BK*RB}")
        e("v_xor_b32 v7, s5, v6")
        e(f"v_lshl_add_u32 v{14+nt}, v7, 6, v8")
        e(f"v_add_u32 v{14+nt}, s4, v{14+nt}")
    NBANK = (S*BUF + 65535) // 65536
    for b in range(1, NBANK):
        for i in range(8):
            if (i < 4 and i < ks) or (i >= 4 and i - 4 < NT):
                e(f"v_add_u32 v{10+8*b+i}, {65536*b}, v{10+i}")
    def ad(reg, off):
        return f"v{reg + 8*(off >> 16)} offset:{off & 65535}"
    FSZ = (MT + NT) * 4
    FB = 10 + 8*NBANK
    ACC = FB + 2 * FSZ * (ks if deep else 1)
    def acc(mt, nt): return ACC + (mt*NT + nt) * 16
    def fa(st, mt): return FB + st*FSZ + mt*4
    def fb(st, nt): return FB + st*FSZ + MT*4 + nt*4
    PF = []
    import os
    if epi == 'kv' and os.environ.get('PF', '1') == '1':
        for (nm, nb) in (('wq', 4096*512*2),):
            for r_ in range((nb + 2*MB - 1) // (2*MB)):
                PF.append((nm, nb, r_*2*MB))
        assert len(PF) <= nk - S
    PFV = ACC + MT*NT*16
    PF0 = nk - len(PF)
    PFS = []
    if PF and os.environ.get('PFS', '0') == '1':
        for (nm, nb) in (('ckv', 2048*512*2), ('wuk', 4096*512*2), ('wuv', 4096*512*2)):
            for r_ in range((nb + 2*MB - 1) // (2*MB)):
                PFS.append((nm, nb, r_*2*MB))
    def extl(j):
        if PF0 <= j < nk: return [PF[j - PF0]]
        if j == S - 1: return PFS
        return []
    def extra(j): return len(extl(j))
    ROT = (K & (K-1)) == 0 and name in os.environ.get('ROT', 'oproj_kernel,wsp_kernel').split(',')
    def dma_pieces(buf, j=-1):
        ps = []
        if ROT:
            assert nBi <= 4
            for t in range(nAi):
                ps.append(([f"s_add_u32 s44, s44, {BK*2}", f"s_and_b32 s44, s44, {K*2-1}", f"s_mul_i32 s45, s44, {Bs//2}"] if t == 0 else []) +
                          [f"s_add_u32 m0, s48, {buf*BUF + t*NW*1024}",
                           f"s_add_u32 s46, s{SA+t}, s44",
                           f"buffer_load_dwordx4 v2, s[8:11], s46 offen lds"])
            for t in range(nBi):
                ps.append([f"s_add_u32 m0, s48, {buf*BUF + ABYTES + t*NW*1024}",
                           f"s_add_u32 s46, s{SB+t}, s45",
                           f"buffer_load_dwordx4 v3, s[12:15], s46 offen lds"])
        for t in range(nAi if not ROT else 0):
            ps.append([f"s_add_u32 m0, s48, {buf*BUF + t*NW*1024}",
                       f"s_add_u32 s{SA+t}, s{SA+t}, {BK*2}" if os.environ.get('NOA') != name else f"s_mov_b32 s{SA+t}, 0x7f000000",
                       f"buffer_load_dwordx4 v2, s[8:11], s{SA+t} offen lds"])
        for t in range(nBi if not ROT else 0):
            ps.append([f"s_add_u32 m0, s48, {buf*BUF + ABYTES + t*NW*1024}",
                       f"s_add_u32 s{SB+t}, s{SB+t}, {BK*Bs}" if os.environ.get('NOB') != name else f"s_mov_b32 s{SB+t}, 0x7f000000",
                       f"buffer_load_dwordx4 v3, s[12:15], s{SB+t} offen lds"])
        for (nm, nb, off) in extl(j):
            pl, ph = kaptr(nm)
            ps.append([f"s_mov_b32 s60, s{pl}", f"s_mov_b32 s61, s{ph}", f"s_mov_b32 s62, 0x{nb:x}", "s_mov_b32 s63, 0x00020000",
                       f"s_mov_b32 s7, 0x{off:x}",
                       f"buffer_load_dwordx4 {vr(PFV,4)}, v7, s[60:63], s7 offen"])
        return ps
    def dma(buf):
        for pc in dma_pieces(buf, buf if PF else -1):
            for x in pc: e(x)
    pend = []
    cnt = [0, nper]
    NMF = ks * MT * NT
    def tick():
        cnt[0] += 1
        while pend and cnt[0] >= 1 + (cnt[1] - len(pend)) * (NMF - 1) // cnt[1]:
            for x in pend.pop(0): e(x)
    def reads(buf, s, st):
        for mt in range(MT):
            e(f"ds_read_b128 {vr(fa(st,mt),4)}, {ad(10+s, buf*BUF + mt*32*AROW)}")
        for nt in range(NT):
            e(f"ds_read_b64_tr_b16 {vr(fb(st,nt),2)}, {ad(14+nt, buf*BUF + s*16*RB)}")
            e(f"ds_read_b64_tr_b16 {vr(fb(st,nt)+2,2)}, {ad(14+nt, buf*BUF + s*16*RB + 4*RB)}")
    nrd = MT + 2*NT
    import os
    def mf(st, mt, nt):
        if os.environ.get('NOMFMA') == name:
            tick(); return
        e(f"v_mfma_f32_32x32x16_bf16 {vr(acc(mt,nt),16)}, {vr(fb(st,nt),4)}, {vr(fa(st,mt),4)}, {vr(acc(mt,nt),16)}")
        tick()
    if ROT and os.environ.get('ROT_' + name):
        c0, c1, c2 = [int(x) for x in os.environ.get('ROT_' + name).split(',')]
        e("s_and_b32 s44, s2, 7")
        e(f"s_mul_i32 s44, s44, {c0}")
        e("s_bfe_u32 s45, s2, 0x30003")
        e(f"s_mul_i32 s45, s45, {c1}")
        e("s_add_u32 s44, s44, s45")
        e("s_lshr_b32 s45, s2, 6")
        e(f"s_mul_i32 s45, s45, {c2}")
        e("s_add_u32 s44, s44, s45")
        e(f"s_and_b32 s44, s44, {nk-1}")
        e(f"s_mul_i32 s44, s44, {BK*2}")
        e(f"s_sub_u32 s44, s44, {BK*2}")
    elif ROT:
        RM = os.environ.get('ROTM', '7')
        e(f"s_and_b32 s44, s2, {RM}")
        e(f"s_mul_i32 s44, s44, {K*2//(int(RM)+1)}")
        e(f"s_sub_u32 s44, s44, {BK*2}")
    else:
        for t in range(nAi): e(f"s_sub_u32 s{SA+t}, s{SA+t}, {BK*2}")
        for t in range(nBi): e(f"s_sub_u32 s{SB+t}, s{SB+t}, {BK*Bs}")
    SS = min(S, nk)
    if withmod:
        cl, ch = kaptr('c'); wl, wh = kaptr('wmod'); sl, sh = kaptr('ws')
        srd(16, cl, ch, 1024)
        srd(20, wl, wh, 512*3072*2)
        srd_off(24, sl, sh, WS['mod'], 3072*4)
        T = ACC
        RR = 512 // (64*NW)
        e(f"v_lshlrev_b32 v{T}, 1, v9")
        for r_ in range(RR):
            e(f"buffer_load_ushort v{T+1+48*r_}, v{T}, s[16:19], 0 offen offset:{r_*NW*128}")
        e("s_mov_b32 s4, 6144")
        e(f"v_mul_lo_u32 v{T}, v9, s4")
        e("s_and_b32 s4, s2, 255")
        e("s_mul_i32 s4, s4, 24")
        for r_ in range(RR):
            if r_: e(f"s_add_u32 s4, s4, {NW*64*6144}")
            e(f"buffer_load_dwordx4 {vr(T+2+48*r_,4)}, v{T}, s[20:23], s4 offen")
            e(f"buffer_load_dwordx2 {vr(T+6+48*r_,2)}, v{T}, s[20:23], s4 offen offset:16")
        xl, xh_ = kaptr('x'); srd(52, xl, xh_, 2048*512*2)
        srd_off(56, sl, sh, WS['xh'], 2048*512*2)
        e(f"s_lshl_b32 s51, s2, {log2(NW)}")
        e("s_add_u32 s51, s51, s30")
        e("s_lshl_b32 s51, s51, 10")
        e(f"v_lshlrev_b32 v{T+32}, 4, v0")
        e(f"buffer_load_dwordx4 {vr(T+36,4)}, v{T+32}, s[52:55], s51 offen")
    if PF:
        e("v_lshlrev_b32 v7, 4, v9")
        e(f"s_lshl_b32 s7, s2, {10+log2(NW)}")
        e("v_add_u32 v7, s7, v7")
    for t in range(SS):
        dma(t)
    if withmod:
        T = ACC
        e(f"s_waitcnt vmcnt({SS*nper + len(PFS)})")
        P = T + 8
        for r_ in range(RR):
            C1 = T + 1 + 48*r_
            e(f"v_lshlrev_b32 v{C1}, 16, v{C1}")
            e(f"v_mul_f32 v{T}, 0xbfb8aa3b, v{C1}")
            e(f"v_exp_f32 v{T}, v{T}")
            e("s_nop 0")
            e(f"v_add_f32 v{T}, 1.0, v{T}")
            e(f"v_rcp_f32 v{T}, v{T}")
            e("s_nop 0")
            e(f"v_mul_f32 v{C1}, v{C1}, v{T}")
            e(f"v_cvt_pk_bf16_f32 v{C1}, v{C1}, v{C1}")
            e(f"v_lshlrev_b32 v{C1}, 16, v{C1}")
            P2 = P + 48*r_
            for j in range(6):
                e(f"v_lshlrev_b32 v{P2+2*j}, 16, v{C1+1+j}")
                e(f"v_and_b32 v{P2+2*j+1}, 0xffff0000, v{C1+1+j}")
            for j in range(12):
                if r_ == 0: e(f"v_mul_f32 v{P+j}, v{P+j}, v{C1}")
                else: e(f"v_fmac_f32 v{P+j}, v{P2+j}, v{C1}")
        e("s_nop 1")
        for dpp in ("row_shr:1", "row_shr:2", "row_shr:4", "row_shr:8", "row_bcast:15 row_mask:0xa", "row_bcast:31 row_mask:0xc"):
            for j in range(12):
                e(f"v_add_f32_dpp v{P+j}, v{P+j}, v{P+j} {dpp}" + (" bound_ctrl:0" if "shr" in dpp else ""))
        e(f"v_mov_b32 v{T}, s48")
        e(f"v_lshrrev_b32 v{T}, 4, v{T}")
        e(f"v_add_u32 v{T}, {S*BUF}, v{T}")
        e("v_cmp_eq_u32 vcc, 63, v0")
        e("s_and_saveexec_b64 s[6:7], vcc")
        for j in range(3):
            e(f"ds_write_b128 v{T}, {vr(P+4*j,4)} offset:{16*j}")
        e("s_mov_b64 exec, s[6:7]")
        XA = T + 40
        def wsum(r):
            for dpp in ("row_shr:1", "row_shr:2", "row_shr:4", "row_shr:8", "row_bcast:15 row_mask:0xa", "row_bcast:31 row_mask:0xc"):
                e("s_nop 1")
                e(f"v_add_f32_dpp v{r}, v{r}, v{r} {dpp}" + (" bound_ctrl:0" if "shr" in dpp else ""))
            e("s_nop 1")
            e(f"v_readlane_b32 s4, v{r}, 63")
            e("s_nop 1")
            e(f"v_mov_b32 v{r}, s4")
        for i in range(4):
            e(f"v_lshlrev_b32 v{XA+2*i}, 16, v{T+36+i}")
            e(f"v_and_b32 v{XA+2*i+1}, 0xffff0000, v{T+36+i}")
        e(f"v_add_f32 v{T+33}, v{XA}, v{XA+1}")
        for i in range(2, 8): e(f"v_add_f32 v{T+33}, v{T+33}, v{XA+i}")
        wsum(T+33)
        e(f"v_mul_f32 v{T+33}, 0x{f2u(1/512):08x}, v{T+33}")
        for i in range(8): e(f"v_sub_f32 v{XA+i}, v{XA+i}, v{T+33}")
        e(f"v_mul_f32 v{T+33}, v{XA}, v{XA}")
        for i in range(1, 8): e(f"v_fmac_f32 v{T+33}, v{XA+i}, v{XA+i}")
        wsum(T+33)
        e(f"v_mul_f32 v{T+33}, 0x{f2u(1/512):08x}, v{T+33}")
        e(f"v_add_f32 v{T+33}, 0x{f2u(1e-5):08x}, v{T+33}")
        e(f"v_rsq_f32 v{T+33}, v{T+33}")
        e("s_nop 0")
        for i in range(8): e(f"v_mul_f32 v{XA+i}, v{XA+i}, v{T+33}")
        for i in range(4): e(f"v_cvt_pk_bf16_f32 v{T+36+i}, v{XA+2*i}, v{XA+2*i+1}")
        e("s_lshr_b32 s4, s51, 14")
        e("s_lshl_b32 s4, s4, 14")
        e("s_bfe_u32 s5, s51, 0x4000a")
        e("s_lshl_b32 s5, s5, 6")
        e("s_add_u32 s4, s4, s5")
        e(f"v_lshrrev_b32 v{T+32}, 2, v0")
        e(f"v_lshlrev_b32 v{T+32}, 10, v{T+32}")
        e(f"v_and_b32 v{T+33}, 3, v0")
        e(f"v_lshl_add_u32 v{T+32}, v{T+33}, 4, v{T+32}")
        e(f"buffer_store_dwordx4 {vr(T+36,4)}, v{T+32}, s[56:59], s4 offen")
        e("s_waitcnt lgkmcnt(0)")
    e(f"s_waitcnt vmcnt({(SS-1)*nper + (1 if withmod else 0) + len(PFS)})")
    e("s_barrier")
    GST = os.environ.get('GST') == name
    GSTD = int(os.environ.get('GSTD', '1'))
    if GST: e("s_memrealtime s[96:97]")
    if withmod:
        T = ACC
        e("s_cmp_lt_u32 s2, 256")
        e("s_cselect_b32 s4, 12, 0")
        e("v_cmp_gt_u32 vcc, s4, v9")
        e("s_and_saveexec_b64 s[6:7], vcc")
        e(f"s_cbranch_execz {L}_nomod")
        e(f"v_lshlrev_b32 v{T}, 2, v9")
        e(f"v_add_u32 v{T+9}, {S*BUF}, v{T}")
        for w in range(NW):
            e(f"ds_read_b32 v{T+1+w}, v{T+9} offset:{w*64}")
        e("s_waitcnt lgkmcnt(0)")
        for w in range(1, NW):
            e(f"v_add_f32 v{T+1}, v{T+1}, v{T+1+w}")
        e(f"v_cvt_pk_bf16_f32 v{T+1}, v{T+1}, v{T+1}")
        e(f"v_lshlrev_b32 v{T+1}, 16, v{T+1}")
        e("s_mul_i32 s4, s2, 48")
        e(f"buffer_store_dword v{T+1}, v{T}, s[24:27], s4 offen")
        lab(f"{L}_nomod")
        e("s_mov_b64 exec, s[6:7]")
    if deep:
        assert S % 2 == 0
        for s in range(ks): reads(0, s, s)
    else:
        reads(0, 0, 0)
    for i in range(MT*NT*16):
        e(f"v_mov_b32 v{ACC+i}, 0")
    def stage_deep(u, dodma, last, vm):
        buf = u % S
        p = (u & 1) * ks
        q = ((u & 1) ^ 1) * ks
        ops = [(mt, nt) for mt in range(MT) for nt in range(NT)]
        if last:
            e("s_waitcnt lgkmcnt(0)")
        else:
            e(f"s_waitcnt vmcnt({vm}) lgkmcnt(0)")
            e("s_barrier")
        if GST and u % GSTD == 0:
            e(f"v_writelane_b32 v250, s96, {u//GSTD+1}")
        if GST and u % GSTD == GSTD - 1:
            e("s_memrealtime s[96:97]")
        cnt[0] = 0
        if dodma:
            pend.extend(dma_pieces(buf, u + S if PF else -1)); cnt[1] = len(pend)
        for s in range(ks):
            if not last: reads((u+1) % S, s, q + s)
            for (mt, nt) in ops: mf(p + s, mt, nt)
        while pend:
            for x in pend.pop(0): e(x)
    def stage(u, dodma, last, vm):
        if deep: return stage_deep(u, dodma, last, vm)
        buf = u % S
        for s in range(ks):
            st = s & 1
            ops = [(mt, nt) for mt in range(MT) for nt in range(NT)]
            if s < ks - 1:
                reads(buf, s+1, st ^ 1)
                e(f"s_waitcnt lgkmcnt({nrd})")
                for (mt, nt) in ops: mf(st, mt, nt)
            else:
                e("s_waitcnt lgkmcnt(0)")
                if GST:
                    e(f"v_writelane_b32 v250, s{96 + 2*(u&1)}, {u+1}")
                if last:
                    for (mt, nt) in ops: mf(st, mt, nt)
                else:
                    mf(st, *ops[0])
                    while pend:
                        for x in pend.pop(0): e(x)
                    e(f"s_waitcnt vmcnt({vm})")
                    e("s_barrier")
                    if GST: e(f"s_memrealtime s[{96 + 2*((u+1)&1)}:{97 + 2*((u+1)&1)}]")
                    cnt[0] = 0
                    if dodma:
                        pend.extend(dma_pieces(buf, u + S if PF else -1)); cnt[1] = len(pend)
                    reads((u+1) % S, 0, st ^ 1)
                    for (mt, nt) in ops[1:]: mf(st, mt, nt)
    nmain = max(nk - S, 0)
    r = nmain % S
    if r == 0 and nmain > 0: r = S
    def vmx(u): return sum(nper + extra(j) for j in range(u+2, min(u+S-1, nk-1)+1)) + extra(u+1)
    if PF or GST:
        r = nmain
    for u in range(r):
        stage(u, True, False, vmx(u))
    if nmain - r > 0:
        e(f"s_mov_b32 s31, {(nmain - r)//S}")
        lab(f"{L}_loop")
        for u in range(r, r + S):
            stage(u, True, False, (S-2)*nper)
        e("s_sub_u32 s31, s31, 1")
        e("s_cmp_lg_u32 s31, 0")
        e(f"s_cbranch_scc1 {L}_loop")
    for u in range(nmain, nk):
        stage(u, False, u == nk-1, vmx(u))
    e("s_nop 15")
    if GST:
        e("s_memrealtime s[96:97]"); e("s_waitcnt lgkmcnt(0)")
        e(f"v_writelane_b32 v250, s96, {(nk+GSTD-1)//GSTD+1}")
        e(f"v_writelane_b32 v250, s100, 0")
        dl, dh = kaptr('ws')
        srd_off(96, dl, dh, 200*MB, 1 << 20)
        e("s_lshl_b32 s4, s2, 11"); e("s_lshl_b32 s5, s30, 8"); e("s_add_u32 s4, s4, s5")
        e("v_lshlrev_b32 v251, 2, v0")
        e("buffer_store_dword v250, v251, s[96:99], s4 offen")
    e("v_and_b32 v4, 31, v0")
    e(f"s_mul_i32 s4, s49, {WM}")
    e("s_add_u32 s4, s4, s28")
    e("v_add_u32 v4, s4, v4")
    e(f"s_mul_i32 s5, s50, {WN}")
    e("v_lshrrev_b32 v5, 5, v0")
    e("s_add_u32 s6, s5, s29")
    wsl, wsh = kaptr('ws')
    def colvalid_begin(nt, h, lbl):
        if N % BN == 0: return
        e(f"s_add_u32 s7, s6, {nt*32+h*16+16}")
        e(f"s_cmp_gt_u32 s7, {N}")
        e(f"s_cbranch_scc1 {lbl}")
    def pack8(dst, a):
        for j in range(4):
            e(f"v_cvt_pk_bf16_f32 v{dst+j}, v{a+2*j}, v{a+2*j+1}")
    def unpack8(dst, src):
        for j in range(4):
            e(f"v_lshlrev_b32 v{dst+2*j}, 16, v{src+j}")
            e(f"v_and_b32 v{dst+2*j+1}, 0xffff0000, v{src+j}")
    import os
    if os.environ.get('NOEPI') == name:
        e(f"s_branch {L}_end")
    if epi == 'kv':
        srd_off(16, wsl, wsh, WS['k'], 32*MB)
        e("s_lshl_b32 s7, s3, 24")
        e("s_lshr_b32 s4, s6, 7")
        e("s_lshl_b32 s4, s4, 19")
        e("s_add_u32 s7, s7, s4")
        e("s_and_b32 s4, s6, 127")
        e("s_lshl_b32 s4, s4, 1")
        e("s_add_u32 s7, s7, s4")
        e("v_lshlrev_b32 v6, 8, v4")
        e("v_lshl_add_u32 v6, v5, 4, v6")
        e("v_add_u32 v6, s7, v6")
        assert WN <= 128
        k = 0
        for mt in range(MT):
            e(f"s_mov_b32 s7, {mt*32*256}")
            for nt in range(NT):
                for h in range(2):
                    t = 8 + (k % 2) * 4; k += 1
                    pack8(t, acc(mt, nt) + h*8)
                    e(f"buffer_store_dwordx4 {vr(t,4)}, v6, s[16:19], s7 offen offset:{(nt*32+h*16)*2} {os.environ.get('KVST','')}")
    elif epi in ('oproj', 'final'):
        gi = 2 if epi == 'oproj' else 5
        srd_off(20, wsl, wsh, WS['mod'], 3072*4)
        if epi == 'oproj':
            xl, xh = kaptr('x'); srd(24, xl, xh, 2048*512*2)
            srd_off(16, wsl, wsh, WS['x1'], 2048*512*2)
        else:
            srd_off(24, wsl, wsh, WS['x1'], 2048*512*2)
            ol, oh = kaptr('out'); srd(16, ol, oh, 2048*512*2)
        e("v_lshlrev_b32 v5, 3, v5")
        e("v_add_u32 v5, s6, v5")
        e("v_lshlrev_b32 v7, 2, v5")
        e("v_lshlrev_b32 v6, 9, v4")
        e("v_add_u32 v6, v6, v5")
        e("v_lshlrev_b32 v6, 1, v6")
        e(f"s_mov_b32 s7, {gi*2048}")
        G0 = ACC + MT*NT*16
        X0 = G0 + NT*16
        for nt in range(NT):
            for h in range(2):
                e(f"buffer_load_dwordx4 {vr(G0+(nt*2+h)*8,4)}, v7, s[20:23], s7 offen offset:{(nt*32+h*16)*4}")
                e(f"buffer_load_dwordx4 {vr(G0+(nt*2+h)*8+4,4)}, v7, s[20:23], s7 offen offset:{(nt*32+h*16)*4+16}")
        for mt in range(MT):
            e(f"s_mov_b32 s4, {mt*32*1024}")
            for nt in range(NT):
                for h in range(2):
                    e(f"buffer_load_dwordx4 {vr(X0+((mt*NT+nt)*2+h)*4,4)}, v6, s[24:27], s4 offen offset:{(nt*32+h*16)*2}")
        if epi == 'oproj':
            assert WN == 32
            srd_off(28, wsl, wsh, WS['st'], 2048*128)
            e("s_mov_b32 s5, 0x3f803f80")
            e("s_lshr_b32 s4, s6, 2")
            e("v_lshlrev_b32 v20, 7, v4")
            e("v_add_u32 v20, s4, v20")
            assert MT == 1
            srd_off(32, wsl, wsh, WS['x1t'], 2048*512*2)
            e("v_lshrrev_b32 v21, 4, v4")
            e("v_lshlrev_b32 v21, 14, v21")
            e("v_and_b32 v22, 15, v4")
            e("v_lshl_add_u32 v21, v22, 6, v21")
            e("v_lshrrev_b32 v22, 5, v0")
            e("v_lshl_add_u32 v21, v22, 4, v21")
            e("s_lshl_b32 s36, s6, 5")
        e("s_waitcnt vmcnt(0)")
        for mt in range(MT):
            e(f"s_mov_b32 s4, {mt*32*1024}")
            for nt in range(NT):
                for h in range(2):
                    a = acc(mt, nt) + h*8
                    xr = X0 + ((mt*NT+nt)*2+h)*4
                    g = G0 + (nt*2+h)*8
                    unpack8(8, xr)
                    for j in range(8):
                        e(f"v_fmac_f32 v{8+j}, v{g+j}, v{a+j}")
                    pack8(xr, 8)
                    e(f"buffer_store_dwordx4 {vr(xr,4)}, v6, s[16:19], s4 offen offset:{(nt*32+h*16)*2}")
                    if epi == 'oproj':
                        e(f"buffer_store_dwordx4 {vr(xr,4)}, v21, s[32:35], s36 offen offset:{h*32}")
                        for j in range(4):
                            first = (nt == 0 and h == 0 and j == 0)
                            e(f"v_dot2_f32_bf16 v16, v{xr+j}, s5, " + ("0" if first else "v16"))
                            e(f"v_dot2_f32_bf16 v17, v{xr+j}, v{xr+j}, " + ("0" if first else "v17"))
            if epi == 'oproj':
                e("s_nop 4")
                e("v_mov_b32 v18, v16"); e("v_mov_b32 v19, v17")
                e("s_nop 1")
                e("v_permlane32_swap_b32 v16, v18")
                e("v_permlane32_swap_b32 v17, v19")
                e("s_nop 1")
                e("v_add_f32 v16, v16, v18"); e("v_add_f32 v17, v17, v19")
                e(f"s_mov_b32 s4, {mt*32*128}")
                e("buffer_store_dwordx2 v[16:17], v20, s[28:31], s4 offen")
        nvx = X0 + MT*NT*8
    elif epi == 'sp':
        bl, bh = kaptr('bsp')
        srd(20, bl, bh, 2048*2)
        srd_off(24, wsl, wsh, WS['z'], 2048*1376*2)
        srd_off(16, wsl, wsh, WS['u'], 2048*704*2)
        e("v_lshlrev_b32 v5, 3, v5")
        e("v_add_u32 v5, s6, v5")
        e("s_mov_b32 s4, 2752")
        e("v_mul_lo_u32 v6, v4, s4")
        e("v_lshl_add_u32 v6, v5, 1, v6")
        e("s_mov_b32 s4, 1408")
        e("v_mul_lo_u32 v7, v4, s4")
        e("v_lshl_add_u32 v7, v5, 1, v7")
        e("v_lshlrev_b32 v8, 1, v4")
        for mt in range(MT):
            e(f"buffer_load_ushort v{16+mt}, v8, s[20:23], 0 offen offset:{mt*64}")
        X0 = ACC + MT*NT*16
        for mt in range(MT):
            e(f"s_mov_b32 s7, {mt*32*2752}")
            for nt in range(NT):
                for h in range(2):
                    e(f"buffer_load_dwordx4 {vr(X0+((mt*NT+nt)*2+h)*4,4)}, v6, s[24:27], s7 offen offset:{(nt*32+h*16)*2}")
        e("s_waitcnt vmcnt(0)")
        for mt in range(MT):
            e(f"v_lshlrev_b32 v{16+mt}, 16, v{16+mt}")
        for nt in range(NT):
            for h in range(2):
                lbl = f"{L}_sk{nt}{h}"
                colvalid_begin(nt, h, lbl)
                for mt in range(MT):
                    a = acc(mt, nt) + h*8
                    xr = X0 + ((mt*NT+nt)*2+h)*4
                    unpack8(8, xr)
                    for j in range(8):
                        e(f"v_add_f32 v{a+j}, v{a+j}, v{16+mt}")
                        e(f"v_mul_f32 v{8+j}, v{8+j}, v{a+j}")
                    pack8(xr, 8)
                    e(f"s_mov_b32 s7, {mt*32*1408}")
                    e(f"buffer_store_dwordx4 {vr(xr,4)}, v7, s[16:19], s7 offen offset:{(nt*32+h*16)*2}")
                if N % BN:
                    e(f"s_branch {lbl}_d")
                    lab(lbl)
                    for j in range(4): e(f"v_mov_b32 v{8+j}, 0")
                    for mt in range(MT):
                        e(f"s_mov_b32 s7, {mt*32*1408}")
                        e(f"buffer_store_dwordx4 v[8:11], v7, s[16:19], s7 offen offset:{(nt*32+h*16)*2}")
                    lab(f"{lbl}_d")
        nvx = X0 + MT*NT*8
    if epi == 'kv': e("s_waitcnt vmcnt(0)")
    lab(f"{L}_end")
    e("s_endpgm")
    nv = ACC + MT*NT*16 + (4 if PF else 0)
    if GST: nv = 256
    if epi in ('oproj', 'final', 'sp'): nv = max(nv, nvx)
    lds = S * BUF + (512 if withmod else 0)
    end(name, (ntile,1,1), (64*NW,1,1), lds, nv)
```

```python
from v2_common import *
from v2_attn import LG
import os

class VM:
    def __init__(self): self.ops = []
    def issue(self, tag, k=1): self.ops += [tag] * k
    def after(self, tag):
        idx = max(i for i, t in enumerate(self.ops) if t == tag)
        return len(self.ops) - 1 - idx
    def wait(self, tag, extra=""):
        e(f"s_waitcnt vmcnt({min(self.after(tag), 63)}){extra}")

def lnproj3(QA, R0, AX, AW, lg, vm, dma_slot, SLOT, WOFF, extras=None, ND=4):
    XR = [R0, R0+4]; XH = [R0+8, R0+12]; WF = [R0+16, R0+32]; MT = [R0+48, R0+64]
    T = 20
    def xread(s):
        e(f"ds_read_b128 {vr(XR[s%2],4)}, v{AX+(s%2)+2*((((s//2)%4)*SLOT)>>16)} offset:{(((s//2)%4)*SLOT) & 65535}")
        return lg.issue(1)
    def modreads(s):
        m = MT[s%2]
        e(f"ds_read_b128 {vr(m,4)}, v30 offset:{s*64}")
        e(f"ds_read_b128 {vr(m+4,4)}, v30 offset:{s*64 + 16}")
        e(f"ds_read_b128 {vr(m+8,4)}, v30 offset:{2048 + s*64}")
        e(f"ds_read_b128 {vr(m+12,4)}, v30 offset:{2048 + s*64 + 16}")
        return lg.issue(4)
    def wreads(s):
        base = ((s//2)%4)*SLOT + WOFF + (s%2)*4096
        bk = base >> 16; base &= 65535
        assert base + 1024 + 4096 <= 65536
        for db in range(ND):
            e(f"ds_read_b64_tr_b16 {vr(WF[s%2]+db*4,2)}, v{AW+db+4*bk} offset:{base}")
            e(f"ds_read_b64_tr_b16 {vr(WF[s%2]+db*4+2,2)}, v{AW+db+4*bk} offset:{base + 1024}")
        return lg.issue(2*ND)
    def trans(s):
        o = []
        for j in range(4):
            r = XR[s%2] + j; a = T + 2*j; m = MT[s%2] + 2*j
            o.append(f"v_lshlrev_b32 v{a}, 16, v{r}")
            o.append(f"v_and_b32 v{a+1}, 0xffff0000, v{r}")
            o.append(f"v_fma_f32 v{a}, v{a}, v{m}, v{m+8}")
            o.append(f"v_fma_f32 v{a+1}, v{a+1}, v{m+1}, v{m+9}")
            o.append(f"v_cvt_pk_bf16_f32 v{XH[s%2]+j}, v{a}, v{a+1}")
        return o
    def mf(s, db):
        c = "0" if s == 0 else vr(QA+db*16,16)
        e(f"v_mfma_f32_32x32x16_bf16 {vr(QA+db*16,16)}, {vr(WF[s%2]+db*4,4)}, {vr(XH[s%2],4)}, {c}")
    vm.wait(('slot', 1), " lgkmcnt(0)")
    e("s_barrier")
    dma_slot(3)
    xread(0); t0 = modreads(0)
    xread(1); modreads(1)
    wreads(0)
    lg.wait(t0)
    for x in trans(0): e(x)
    for s in range(32):
        t = s // 2
        if s % 2 == 0 and t >= 1 and t + 1 <= 15:
            vm.wait(('slot', t + 1))
            e("s_barrier")
            if t + 3 <= 15: dma_slot(t + 3)
        n = 0
        if s + 2 < 32:
            xread(s+2); modreads(s+2); n += 5
        if s + 1 < 32:
            wreads(s+1); n += 2*ND
        e(f"s_waitcnt lgkmcnt({n})")
        fl = trans(s+1) if s + 1 < 32 else []
        ex = extras(s) if extras else []
        per = (len(fl) + ND - 1) // ND
        for db in range(ND):
            mf(s, db)
            for _ in range(per):
                if fl: e(fl.pop(0))
            if ex and db >= 1:
                for x in ex.pop(0): e(x)
        for p in ex:
            for x in p: e(x)

STS = [53, 54, 55, 62, 63, 96, 97, 98]
def stamp(i, ph=None):
    if not os.environ.get('A8ST'): return
    e("s_memrealtime s[60:61]"); e("s_waitcnt lgkmcnt(0)")
    if ph:
        e("s_cmp_eq_u32 s47, 0")
        e(f"s_cselect_b32 s{STS[i]}, s60, s{STS[i]}")
        e(f"s_cselect_b32 s{STS[i+2]}, s{STS[i+2]}, s60")
    else:
        e(f"s_mov_b32 s{STS[i]}, s60")
def stamp_out():
    if not os.environ.get('A8ST'): return
    dl, dh = kaptr('ws')
    srd_off(32, dl, dh, 200*MB, 1 << 20)
    for i in range(8): e(f"v_mov_b32 v{32+i}, s{STS[i]}")
    e("s_lshl_b32 s4, s2, 8"); e("s_lshl_b32 s5, s20, 5"); e("s_add_u32 s4, s4, s5")
    e("v_mov_b32 v24, 0")
    e("buffer_store_dwordx4 v[32:35], v24, s[32:35], s4 offen")
    e("buffer_store_dwordx4 v[36:39], v24, s[32:35], s4 offen offset:16")

VV, VW, VL, VREL = 11, 12, 14, 15
AV, AK, T = 16, 20, 29
Q, KF, O, S0, S1, MT0 = 32, 80, 112, 176, 208, 240
QA, R0, VX = 32, 112, 13
AX, AV2 = 96, 100
VK4, NEGM, VFL = 248, 64, 28
VQ, VMG = 252, 253
SLOT, WOFF, MODL, STASH = 24576, 16384, 131072, 131072

def attn_ids():
    e("s_and_b32 s4, s2, 7")
    e("s_lshr_b32 s5, s2, 3")
    e("s_and_b32 s16, s5, 3")
    e("s_lshl_b32 s4, s4, 2")
    e("s_add_u32 s16, s16, s4")
    e("s_lshr_b32 s17, s5, 2")
    e("s_lshr_b32 s46, s20, 2")
    e("s_and_b32 s50, s20, 3")

def attn_setup(vm):
    wsl, wsh = kaptr('ws')
    srd_off(8, wsl, wsh, WS['k'], 32*MB)
    srd_off(12, wsl, wsh, WS['ctx'], 16*MB)
    srd_off(32, wsl, wsh, WS['xh'], 2048*512*2)
    ql, qh = kaptr('wq'); srd(36, ql, qh, 512*4096*2)
    srd_off(56, wsl, wsh, WS['mod'], 3072*4)
    e("v_and_b32 v2, 31, v0")
    e("v_lshrrev_b32 v3, 5, v0")
    e("v_lshlrev_b32 v6, 2, v9")
    e("s_mov_b32 s4, 2048")
    e(f"buffer_load_dword v{MT0}, v6, s[56:59], s4 offen")
    e(f"buffer_load_dword v{MT0+1}, v6, s[56:59], 0 offen")
    vm.issue('mod', 2)
    e("s_sub_u32 s4, 15, s17")
    e("s_cmp_eq_u32 s46, 0")
    e("s_cselect_b32 s22, s4, s17")
    e("s_lshl_b32 s22, s22, 7")
    e("s_lshl_b32 s23, s50, 5")
    e("s_add_u32 s22, s22, s23")
    e("v_lshrrev_b32 v6, 4, v0")
    e("v_and_b32 v8, 15, v0")
    e("v_xor_b32 v7, v6, v8")
    e("v_lshlrev_b32 v1, 8, v6")
    for i in range(4):
        e(f"v_xor_b32 v8, {4*i}, v7")
        e(f"v_lshl_add_u32 v{VK4+i}, v8, 4, v1")
    e("v_bfe_u32 v7, v0, 2, 2")
    e("v_xor_b32 v7, v7, v6")
    e("v_and_b32 v8, 3, v0")
    e("v_lshlrev_b32 v7, 6, v7")
    e("v_lshl_add_u32 v7, v8, 4, v7")
    e(f"v_add_u32 v{VV}, v7, v1")
    e("v_lshlrev_b32 v1, 13, v6")
    e(f"v_add_u32 v{VW}, v7, v1")
    e("v_xor_b32 v7, v8, v6")
    e("v_lshrrev_b32 v1, 2, v0")
    e("v_lshlrev_b32 v1, 6, v1")
    e(f"v_lshl_add_u32 v{VX}, v7, 4, v1")
    e("s_lshl_b32 s25, s20, 10")
    e("s_lshl_b32 s44, s20, 11")
    e("s_lshl_b32 s45, s16, 8")
    e("s_lshl_b32 s4, s20, 15")
    e("s_add_u32 s45, s45, s4")
    e("s_lshl_b32 s48, s22, 10")
    def dma_slot(j):
        b = (j % 4) * SLOT
        for i in range(2):
            e(f"s_add_u32 m0, s44, {b + i*1024}")
            e(f"s_add_u32 s4, s48, {i*16384 + j*1024}")
            e(f"buffer_load_dwordx4 v{VX}, s[32:35], s4 offen lds")
        e(f"s_add_u32 m0, s25, {b + WOFF}")
        e(f"s_add_u32 s4, s45, {j*32*8192}")
        e(f"buffer_load_dwordx4 v{VW}, s[36:39], s4 offen lds")
        vm.issue(('slot', j), 3)
    for j in range(3): dma_slot(j)
    e("s_lshl_b32 s21, s16, 19")
    e("s_lshl_b32 s23, s50, 12")
    e("s_add_u32 s21, s21, s23")
    e("s_lshl_b32 s23, s46, 14")
    e("s_add_u32 s21, s21, s23")
    e("s_lshl_b32 s49, s50, 12")
    e("s_lshl_b32 s23, s46, 16")
    e("s_add_u32 s49, s49, s23")
    e("v_bfe_u32 v6, v0, 2, 2")
    e("v_bfe_u32 v8, v0, 4, 1")
    e("v_lshlrev_b32 v8, 5, v8")
    e("v_and_b32 v7, 1, v0")
    e("v_lshl_add_u32 v8, v7, 4, v8")
    e("v_bfe_u32 v7, v0, 1, 1")
    e("v_lshl_add_u32 v8, v7, 3, v8")
    e("v_lshl_add_u32 v7, v3, 3, v6")
    e("v_lshl_add_u32 v7, v7, 8, v8")
    for db in range(4):
        e(f"v_xor_b32 v1, {db}, v6")
        e(f"v_lshl_add_u32 v{AV2+db}, v1, 6, v7")
        e(f"v_add_u32 v{AV2+4+db}, 0x10000, v{AV2+db}")
    e("v_xor_b32 v7, v6, v3")
    e("v_lshlrev_b32 v1, 6, v2")
    e("v_add_u32 v1, s44, v1")
    e(f"v_lshl_add_u32 v{AX}, v7, 4, v1")
    e("v_xor_b32 v7, 2, v7")
    e(f"v_lshl_add_u32 v{AX+1}, v7, 4, v1")
    e(f"v_add_u32 v{AX+2}, 0x10000, v{AX}")
    e(f"v_add_u32 v{AX+3}, 0x10000, v{AX+1}")
    e("v_lshlrev_b32 v30, 5, v3")
    e(f"v_add_u32 v30, 0x{MODL:x}, v30")
    vm.wait('mod')
    e(f"v_add_f32 v{MT0}, 1.0, v{MT0}")
    e(f"v_cvt_pk_bf16_f32 v{MT0}, v{MT0}, v{MT0}")
    e(f"v_lshlrev_b32 v{MT0}, 16, v{MT0}")
    e("v_lshlrev_b32 v6, 2, v9")
    e(f"v_add_u32 v6, 0x{MODL:x}, v6")
    e(f"ds_write_b32 v6, v{MT0}")
    e(f"ds_write_b32 v6, v{MT0+1} offset:2048")
    return dma_slot

def attn_main(L, lg, pre_kv=None):
    def kdma_l(buf):
        o = [[f"s_add_u32 m0, s49, {buf*16384}", "s_nop 0", f"buffer_load_dwordx4 v{VK4}, s[8:11], s24 offen lds"]]
        for i in range(1, 4):
            o.append([f"buffer_load_dwordx4 v{VK4+i}, s[8:11], s24 offen offset:{i*1024} lds"])
        o[-1].append("s_add_u32 s24, s24, 32768")
        return o
    def vdma_l(buf):
        o = [[f"s_add_u32 m0, s49, {32768 + buf*16384}", "s_nop 0", f"buffer_load_dwordx4 v{VV}, s[8:11], s26 offen lds"]]
        for i in range(1, 4):
            o.append([f"buffer_load_dwordx4 v{VV}, s[8:11], s26 offen offset:{i*1024} lds"])
        o[-1].append("s_add_u32 s26, s26, 32768")
        return o
    def kdma(buf):
        for p in kdma_l(buf):
            for x in p: e(x)
    def vdma(buf):
        for p in vdma_l(buf):
            for x in p: e(x)
    e("s_waitcnt lgkmcnt(0)")
    stamp(1)
    if pre_kv: pre_kv()
    e("s_barrier")
    e("s_mov_b32 s24, s21")
    e(f"s_add_u32 s26, s21, 0x{16*MB:x}")
    kdma(0); kdma(1); vdma(0)
    e("s_lshl_b32 s4, s50, 13")
    e(f"s_add_u32 s5, s4, {STASH}")
    e("s_add_u32 s6, s4, 49152")
    e(f"s_add_u32 s7, s4, {114688 - 16384}")
    e("s_cmp_lt_u32 s50, 2")
    e("s_cselect_b32 s6, s6, s7")
    e("s_cmp_eq_u32 s46, 0")
    e("s_cselect_b32 s7, s6, s5")
    e("v_lshlrev_b32 v1, 4, v0")
    e(f"v_add_u32 v{VQ}, s6, v1")
    e("v_add_u32 v5, s7, v1")
    e("s_add_u32 s6, s4, 16384")
    e(f"s_add_u32 s7, s4, {49152 - 16384}")
    e("s_cmp_lt_u32 s50, 2")
    e("s_cselect_b32 s6, s6, s7")
    e("s_lshl_b32 s7, s46, 16")
    e("s_add_u32 s6, s6, s7")
    e(f"v_add_u32 v{VMG}, s6, v1")
    csc = (128 ** -0.5) * 1.4426950408889634
    e(f"s_mov_b32 s28, 0x{f2u(csc):08x}")
    e("s_nop 7")
    for i in range(32):
        e(f"v_mul_f32 v{QA+2*i}, s28, v{QA+2*i}")
        e(f"v_mul_f32 v{QA+2*i+1}, s28, v{QA+2*i+1}")
        e(f"v_cvt_pk_bf16_f32 v{Q+i}, v{QA+2*i}, v{QA+2*i+1}")
        if i % 4 == 3:
            e(f"ds_write_b128 v5, {vr(Q+i-3,4)} offset:{(i//4)*1024}")
    e("v_and_b32 v6, 15, v0")
    e("v_xor_b32 v6, v6, v3")
    e("v_lshlrev_b32 v7, 8, v2")
    e("s_lshl_b32 s7, s46, 16")
    e("v_add_u32 v7, s7, v7")
    for ds in range(8):
        e(f"v_xor_b32 v1, {2*ds}, v6")
        e(f"v_lshl_add_u32 v{AK+ds}, v1, 4, v7")
    e("v_bfe_u32 v6, v0, 2, 2")
    e("v_lshl_add_u32 v7, v3, 2, v6")
    e("v_lshl_add_u32 v7, v7, 8, v8")
    e("s_add_u32 s7, s7, 32768")
    e("v_add_u32 v7, s7, v7")
    e("s_lshl_b32 s7, s46, 1")
    e("v_xor_b32 v6, s7, v6")
    for db in range(4):
        e(f"v_xor_b32 v1, {db}, v6")
        e(f"v_lshl_add_u32 v{AV+db}, v1, 6, v7")
    e(f"s_mov_b32 s31, 0x{f2u(8.0):08x}")
    e("s_mov_b32 s52, 0x42c80000")
    e("s_mov_b32 s47, 0")
    e("s_sub_u32 s51, 15, s17")
    e("s_waitcnt vmcnt(8) lgkmcnt(0)")
    e("s_barrier")
    lab(f"{L}_phase")
    for i in range(8):
        e(f"ds_read_b128 {vr(Q+4*i,4)}, v{VQ} offset:{i*1024}")
    e("s_add_u32 s27, s51, 1")
    e("s_lshl_b32 s22, s51, 7")
    e("s_lshl_b32 s23, s50, 5")
    e("s_add_u32 s22, s22, s23")
    e("v_add_u32 v4, s22, v2")
    e("v_lshlrev_b32 v6, 2, v3")
    e(f"v_sub_u32 v{VREL}, v4, v6")
    for i in range(64):
        e(f"v_mov_b32 v{O+i}, 0")
    for i in range(16):
        e(f"v_mov_b32 v{NEGM+i}, 0")
    e(f"v_mov_b32 v{VL}, 0")
    e(f"v_mov_b32 v{VFL}, 0xf149f2ca")
    e("s_lshl_b32 s29, s46, 6")
    e("s_sub_u32 s30, s27, 1")
    e("s_mov_b32 s43, 0")
    SB = [S0, S1]
    def kitem(buf, q):
        g = q // 4; ds = (g % 2) * 4 + q % 4
        e(f"ds_read_b128 {vr(KF+(q%8)*4,4)}, v{AK+ds} offset:{buf*16384 + (g//2)*8192}")
        return lg.issue(1)
    def vitem(buf, p):
        t = p // 4; db = p % 4
        e(f"ds_read_b64_tr_b16 {vr(KF+(p%8)*4,2)}, v{AV+db} offset:{buf*16384 + t*4096}")
        e(f"ds_read_b64_tr_b16 {vr(KF+(p%8)*4+2,2)}, v{AV+db} offset:{buf*16384 + t*4096 + 2048}")
        return lg.issue(2)
    def qk_mfma(S, q):
        g = q // 4; ds = (g % 2) * 4 + q % 4; kb = g // 2
        c = vr(NEGM,16) if ds == 0 else vr(S+kb*16,16)
        return f"v_mfma_f32_32x32x16_bf16 {vr(S+kb*16,16)}, {vr(KF+(q%8)*4,4)}, {vr(Q+4*ds,4)}, {c}"
    def pv_mfma(S, p):
        t = p // 4; db = p % 4
        return f"v_mfma_f32_32x32x16_bf16 {vr(O+db*16,16)}, {vr(KF+(p%8)*4,4)}, {vr(S+8*t,4)}, {vr(O+db*16,16)}"
    uid = [0]
    def mask_max(S):
        uid[0] += 1
        lb = f"{L}_nm{uid[0]}"
        o = []
        o.append(("blk", [
            "s_cmp_lt_u32 s43, s30",
            f"s_cbranch_scc1 {lb}",
            f"v_subrev_u32 v{T}, s29, v{VREL}",
            f"v_mov_b32 v{T+1}, 0xff800000"] +
            sum([[f"v_cmp_gt_i32 vcc, {kb*32 + (i//4)*8 + i%4}, v{T}", "s_nop 1",
                  f"v_cndmask_b32 v{S+kb*16+i}, v{S+kb*16+i}, v{T+1}, vcc"] for kb in range(2) for i in range(16)], []) +
            [f"{lb}:", "s_add_u32 s29, s29, 128", "s_add_u32 s43, s43, 1"]))
        o.append(f"v_max3_f32 v{T}, v{S}, v{S+1}, v{S+2}")
        o.append(f"v_max3_f32 v{T+1}, v{S+3}, v{S+4}, v{S+5}")
        for i in range(6, 30, 4):
            o.append(f"v_max3_f32 v{T}, v{T}, v{S+i}, v{S+i+1}")
            o.append(f"v_max3_f32 v{T+1}, v{T+1}, v{S+i+2}, v{S+i+3}")
        o.append(f"v_max3_f32 v{T}, v{T}, v{S+30}, v{S+31}")
        o.append(f"v_max_f32 v{T}, v{T}, v{T+1}")
        o.append(f"v_mov_b32 v{T+1}, v{T}")
        o.append("PAD")
        o.append("PAD")
        o.append(f"v_permlane32_swap_b32 v{T}, v{T+1}")
        o.append("PAD")
        o.append("PAD")
        o.append(f"v_max_f32 v{T}, v{T}, v{T+1}")
        o.append(f"v_cmp_lt_f32 s[40:41], s31, v{T}")
        return o
    def slowpath(S):
        uid[0] += 1
        lb = f"{L}_sp{uid[0]}"
        e("s_cmp_eq_u64 s[40:41], 0")
        e(f"s_cbranch_scc1 {lb}")
        e("s_nop 15")
        e(f"v_max_f32 v{T}, v{T}, v{VFL}")
        e(f"v_min_f32 v{T+1}, s52, -v{T}")
        e(f"v_exp_f32 v{T+1}, v{T+1}")
        e(f"v_mov_b32 v{VFL}, 0")
        e(f"v_mul_f32 v{VL}, v{VL}, v{T+1}")
        for i in range(64):
            e(f"v_mul_f32 v{O+i}, v{O+i}, v{T+1}")
        for i in range(32):
            e(f"v_sub_f32 v{S+i}, v{S+i}, v{T}")
        for i in range(16):
            e(f"v_sub_f32 v{NEGM+i}, v{NEGM+i}, v{T}")
        e("s_nop 1")
        lab(lb)
    def exps(S):
        o = []
        for t in range(4):
            b = S + t*8
            o.append(f"v_exp_f32 v{b}, v{b}")
            for i in range(1, 8):
                o.append(f"v_exp_f32 v{b+i}, v{b+i}")
                o.append(f"v_add_f32 v{VL}, v{VL}, v{b+i-1}")
                if i % 2 == 0:
                    o.append(f"v_cvt_pk_bf16_f32 v{b+(i-2)//2}, v{b+i-2}, v{b+i-1}")
            o.append("PAD")
            o.append(f"v_add_f32 v{VL}, v{VL}, v{b+7}")
            o.append(f"v_cvt_pk_bf16_f32 v{b+3}, v{b+6}, v{b+7}")
        return o
    def emit(x):
        if isinstance(x, tuple):
            for s_ in x[1]:
                if s_.endswith(":"): lab(s_[:-1])
                else: e(s_)
        elif x == "PAD": e("s_nop 0")
        else: e(x)
    def popf(lst, n):
        k = 0
        first = True
        while lst and k < n:
            x = lst.pop(0)
            if x == "PAD" and first:
                first = False
                continue
            first = False
            emit(x); k += 1
    def need(lst, t, S):
        for x in lst:
            if isinstance(x, str) and x.startswith("v_cvt_pk") and f"v{S+8*t+3}," in x: return True
        return False
    lg.issue(8)
    tk = [kitem(0, q) for q in range(8)]
    for q in range(16):
        lg.wait(tk[q])
        e(qk_mfma(S0, q))
        if q < 8: tk.append(kitem(0, q+8))
    e("s_cmp_eq_u32 s47, 0")
    e(f"s_cbranch_scc1 {L}_w0")
    e("s_waitcnt vmcnt(4)")
    e(f"s_branch {L}_w1")
    lab(f"{L}_w0")
    e("s_waitcnt vmcnt(0)")
    lab(f"{L}_w1")
    e("s_barrier")
    kdma(0)
    vdma(1)
    if os.environ.get('PFQ', '1') != '0':
        e("s_cmp_eq_u32 s47, 0")
        e(f"s_cbranch_scc1 {L}_nopf")
        e("s_lshl_b32 s4, s2, 3")
        e("s_add_u32 s4, s4, s20")
        e("s_lshl_b32 s4, s4, 10")
        e("v_lshlrev_b32 v5, 4, v0")
        e("v_add_u32 v5, s4, v5")
        e(f"s_add_u32 m0, s25, {STASH}")
        RND = 2*MB
        for (nm, nb) in (('wo', 4096*512*2), ('win', 512*1376*2), ('wsp', 2048*2048*2), ('wout', 688*512*2)):
            pl, ph = kaptr(nm)
            srd(32, pl, ph, nb)
            for r_ in range((nb + RND - 1) // RND):
                e(f"s_mov_b32 s4, 0x{r_*RND:x}")
                e(f"buffer_load_dwordx4 v5, s[32:35], s4 offen lds")
        lab(f"{L}_nopf")
    tk = [kitem(1, q) for q in range(8)]
    for x in mask_max(S0): emit(x)
    e("s_mov_b64 s[40:41], -1")
    e("s_mov_b32 s42, s27")
    if os.environ.get('A8ST'):
        e("s_waitcnt lgkmcnt(0)"); stamp(2, True)
    lab(f"{L}_loop")
    for u in range(2):
        cur, nxt = SB[u], SB[u ^ 1]
        fill = exps(cur)
        mm = mask_max(nxt)
        slowpath(cur)
        for q in range(16):
            lg.wait(tk[q])
            e(qk_mfma(nxt, q))
            if q < 8: tk.append(kitem(u ^ 1, q+8))
            else: tk.append(vitem(u, q-8))
            popf(fill, 3)
        tk = tk[16:]
        dm = []
        for p in range(16):
            if p % 4 == 0:
                while len(fill) > 0 and need(fill, p // 4, cur): emit(fill.pop(0))
                if any("v_cvt_pk" in y for y in out[-2:]): e("s_nop 1")
            lg.wait(tk[p])
            e(pv_mfma(cur, p))
            if p < 8: tk.append(vitem(u, p+8))
            elif p == 9:
                e(f"s_waitcnt vmcnt(0) lgkmcnt(0)")
                e("s_barrier")
                tk.append(kitem(u, 0)); tk.append(kitem(u, 1))
                dm = kdma_l(u ^ 1) + vdma_l(u)
            elif p > 9:
                tk.append(kitem(u, p-8))
                for _ in range(2 if p < 12 else 1):
                    for x in dm.pop(0): e(x)
            if fill: popf(fill, 3)
            if p >= 2 and (not fill or p >= 8): popf(mm, 3 if p < 9 else 2)
        while fill: emit(fill.pop(0))
        while mm: emit(mm.pop(0))
        tk = tk[16:]
        e("s_sub_u32 s42, s42, 1")
        if u == 0:
            e("s_cmp_eq_u32 s42, 0")
            e(f"s_cbranch_scc1 {L}_fin")
        else:
            e("s_cmp_lg_u32 s42, 0")
            e(f"s_cbranch_scc1 {L}_loop")
    lab(f"{L}_fin")
    e("s_waitcnt vmcnt(0) lgkmcnt(0)")
    stamp(3, True)
    e("s_barrier")
    e("s_mov_b32 s24, s21")
    e(f"s_add_u32 s26, s21, 0x{16*MB:x}")
    e("s_cmp_lg_u32 s47, 0")
    e(f"s_cbranch_scc1 {L}_m1")
    kdma(0)
    lab(f"{L}_m1")
    e("s_nop 15")
    for i in range(8):
        e(f"ds_write_b128 v{VMG}, {vr(O+32+4*i,4)} offset:{i*1024}")
    e("s_lshl_b32 s4, s46, 16")
    e("s_lshl_b32 s5, s50, 9")
    e("s_add_u32 s4, s4, s5")
    e("s_add_u32 s4, s4, 32768")
    e("v_lshlrev_b32 v5, 3, v0")
    e("v_add_u32 v5, s4, v5")
    e(f"v_mov_b32 v{S1+4}, v{NEGM}")
    e(f"v_mov_b32 v{S1+5}, v{VL}")
    e(f"ds_write_b64 v5, v[{S1+4}:{S1+5}]")
    e(f"v_xor_b32 v6, 0x10000, v{VMG}")
    e("v_xor_b32 v5, 0x10000, v5")
    e("s_waitcnt lgkmcnt(0)")
    e("s_barrier")
    e(f"ds_read_b64 v[{S1}:{S1+1}], v5")
    for i in range(8):
        e(f"ds_read_b128 {vr(S0+4*i,4)}, v6 offset:{i*1024}")
    e("s_waitcnt vmcnt(0) lgkmcnt(0)")
    e("s_cmp_lg_u32 s47, 0")
    e(f"s_cbranch_scc1 {L}_m2")
    e("s_barrier")
    kdma(1); vdma(0)
    lab(f"{L}_m2")
    A0, A1 = S1 + 2, S1 + 3
    e(f"v_min_f32 v{T}, v{NEGM}, v{S1}")
    e(f"v_sub_f32 v{A0}, v{T}, v{NEGM}")
    e(f"v_sub_f32 v{A1}, v{T}, v{S1}")
    e(f"v_exp_f32 v{A0}, v{A0}")
    e(f"v_exp_f32 v{A1}, v{A1}")
    e("s_nop 0")
    e(f"v_mul_f32 v{T}, v{VL}, v{A0}")
    e(f"v_fmac_f32 v{T}, v{S1+1}, v{A1}")
    e(f"v_mov_b32 v{T+1}, v{T}")
    e("s_nop 1")
    e(f"v_permlane32_swap_b32 v{T}, v{T+1}")
    e("s_nop 1")
    e(f"v_add_f32 v{T}, v{T}, v{T+1}")
    e(f"v_rcp_f32 v{T}, v{T}")
    e("v_lshlrev_b32 v5, 13, v4")
    e("v_lshl_add_u32 v5, v3, 4, v5")
    e(f"v_mul_f32 v{A0}, v{A0}, v{T}")
    e(f"v_mul_f32 v{A1}, v{A1}, v{T}")
    e("s_lshl_b32 s23, s16, 8")
    e("s_lshl_b32 s4, s46, 7")
    e("s_add_u32 s23, s23, s4")
    for db in range(2):
        for h in range(2):
            a = O + db*16 + h*8
            b = S0 + db*16 + h*8
            for j in range(8):
                e(f"v_mul_f32 v{a+j}, v{a+j}, v{A0}")
                e(f"v_fmac_f32 v{a+j}, v{b+j}, v{A1}")
            for j in range(4):
                e(f"v_cvt_pk_bf16_f32 v{a+j}, v{a+2*j}, v{a+2*j+1}")
            e(f"buffer_store_dwordx4 {vr(a,4)}, v5, s[12:15], s23 offen offset:{(db*32+h*16)*2}")
    e("s_cmp_lg_u32 s47, 0")
    e(f"s_cbranch_scc1 {L}_done")
    e("s_mov_b32 s47, 1")
    e("s_mov_b32 s51, s17")
    e("s_lshl_b32 s4, s50, 13")
    e(f"s_add_u32 s4, s4, {STASH}")
    e("v_lshlrev_b32 v1, 4, v0")
    e(f"v_add_u32 v{VQ}, s4, v1")
    e("s_nop 3")
    e(f"s_branch {L}_phase")
    lab(f"{L}_done")

def gen_attn8():
    name = "attn_kernel"
    L = "L_attn"
    lg = LG(); vm = VM()
    begin(name)
    e("s_cmp_ge_u32 s2, 256")
    e(f"s_cbranch_scc1 {L}_end")
    load_kargs()
    e("v_mov_b32 v9, v0")
    e("v_lshrrev_b32 v1, 6, v0")
    e("v_and_b32 v0, 63, v0")
    e("s_nop 0")
    e("v_readfirstlane_b32 s20, v1")
    attn_ids()
    e("s_waitcnt lgkmcnt(0)")
    stamp(0)
    dma_slot = attn_setup(vm)
    lnproj3(QA, R0, AX, AV2, lg, vm, dma_slot, SLOT, WOFF)
    attn_main(L, lg)
    e("s_waitcnt vmcnt(0)")
    stamp(6); stamp_out()
    lab(f"{L}_end")
    e("s_endpgm")
    end(name, (256,1,1), (512,1,1), 163840, 256)
```

```python
from v2_common import *
from v2_attn import LG
import os

class VM:
    def __init__(self): self.ops = []
    def issue(self, tag, k=1, cond=False): self.ops += [(tag, cond)] * k
    def after(self, tag):
        idx = max(i for i, t in enumerate(self.ops) if t[0] == tag)
        return sum(1 for t in self.ops[idx+1:] if not t[1])
    def wait(self, tag, extra=""):
        if isinstance(tag, list): n = min(self.after(t) for t in tag)
        else: n = self.after(tag)
        e(f"s_waitcnt vmcnt({min(n, 63)}){extra}")

ST = os.environ.get('KST')
VST = 27
stc = [0]
def stamp(ph=False):
    if not ST: return
    i = stc[0]; stc[0] += 1
    if ph == 2: stc[0] += 2
    e("s_memrealtime s[96:97]"); e("s_waitcnt lgkmcnt(0)")
    if ph:
        e("s_lshl_b32 s97, s47, 1"); e(f"s_add_u32 s97, s97, {i}")
        e("s_mov_b32 s98, m0"); e("s_mov_b32 m0, s97"); e("s_nop 0")
        e(f"v_writelane_b32 v{VST}, s96, m0"); e("s_mov_b32 m0, s98")
    else:
        e(f"v_writelane_b32 v{VST}, s96, {i}")
def stamp_out():
    if not ST: return
    dl, dh = kaptr('ws')
    srd_off(96, dl, dh, 200*MB, 1 << 20)
    e("s_lshl_b32 s4, s2, 11"); e("s_lshl_b32 s5, s20, 8"); e("s_add_u32 s4, s4, s5")
    e("v_lshlrev_b32 v26, 2, v0")
    e(f"buffer_store_dword v{VST}, v26, s[96:99], s4 offen")

VA, VB, VL16 = 10, 11, 12
VL, VREL = 14, 15
AV, AK, T = 16, 20, 29
VFL, NEGM = 28, 64
Q, KF, O, S0, S1 = 32, 80, 112, 176, 208
VQ, VMG = 252, 253
ACA, ACB, FR, TMP, HR = 32, 96, 160, 192, 208
HD = 12
RA, RB_ = 16, 20
BUF = 49152
SCR = 147456
LV0, LV1, LK0, LK1, STASH = 0, 32768, 65536, 98304, 131072
BIG = 0x7f000000
FL0 = 65536
DMAX = os.environ.get('DMAX', '')

def gen_kva():
    name = "kva_kernel"
    L = "L_kva"
    lg = LG(); vm = VM()
    begin(name)
    e("s_cmp_ge_u32 s2, 256")
    e(f"s_cbranch_scc1 {L}_end")
    load_kargs()
    e("v_mov_b32 v9, v0")
    e("v_lshrrev_b32 v1, 6, v0")
    e("v_and_b32 v0, 63, v0")
    e("s_nop 0")
    e("v_readfirstlane_b32 s20, v1")
    e("s_and_b32 s4, s2, 7")
    e("s_lshr_b32 s5, s2, 3")
    e("s_and_b32 s6, s5, 3")
    e("s_lshl_b32 s4, s4, 2")
    e("s_add_u32 s16, s6, s4")
    e("s_lshr_b32 s17, s5, 2")
    e("s_lshr_b32 s46, s20, 2")
    e("s_and_b32 s50, s20, 3")
    e("s_lshr_b32 s18, s20, 1")
    e("s_and_b32 s19, s20, 1")
    RA_ = [int(x) for x in os.environ.get('KROT', '0,0,2,1').split(',')]
    def rot(dst, a, b):
        o = [f"s_mul_i32 s{dst}, s6, {a}", f"s_mul_i32 s4, s17, {b}", f"s_add_u32 s{dst}, s{dst}, s4", f"s_and_b32 s{dst}, s{dst}, 7",
             f"s_lshl_b32 s{dst}, s{dst}, 7", f"s_sub_u32 s{dst}, s{dst}, 128"]
        for x in o: e(x)
    rot(45, RA_[0], RA_[1]); rot(47, RA_[2], RA_[3])
    e("s_lshr_b32 s4, s2, 5"); e("s_lshl_b32 s4, s4, 3"); e("s_and_b32 s5, s2, 7"); e("s_add_u32 s4, s4, s5")
    e("s_lshl_b32 s4, s4, 2"); e("s_add_u32 s43, s4, s6")
    if os.environ.get('MODLIN'): e("s_mov_b32 s43, s2")
    e("s_lshl_b32 s41, s16, 3"); e("s_add_u32 s41, s41, s17")
    e("s_lshl_b32 s3, s20, 10")
    e("s_lshl_b32 s44, s17, 18")
    e("s_lshl_b32 s4, s20, 13")
    e("s_add_u32 s44, s44, s4")
    e("s_lshl_b32 s48, s20, 15")
    e("s_lshl_b32 s4, s16, 8")
    e("s_add_u32 s48, s48, s4")
    e("v_and_b32 v2, 31, v0")
    e("v_lshrrev_b32 v3, 5, v0")
    e("v_lshrrev_b32 v4, 3, v0"); e("v_and_b32 v5, 7, v0"); e("v_lshrrev_b32 v6, 4, v0")
    e("s_lshl_b32 s4, s19, 2"); e("v_or_b32 v7, s4, v6"); e("v_xor_b32 v5, v5, v7")
    e("v_lshlrev_b32 v4, 10, v4")
    e(f"v_lshl_add_u32 v{VA}, v5, 4, v4")
    e("v_bfe_u32 v7, v0, 2, 2"); e("v_xor_b32 v7, v7, v6"); e("v_and_b32 v5, 3, v0")
    e("v_lshlrev_b32 v4, 13, v6")
    e("v_lshl_add_u32 v4, v7, 6, v4")
    e(f"v_lshl_add_u32 v{VB}, v5, 4, v4")
    e(f"v_lshlrev_b32 v{VL16}, 4, v0")
    e("s_waitcnt lgkmcnt(0)")
    stamp()
    wsl, wsh = kaptr('ws')
    srd_off(56, wsl, wsh, WS['mod'], FL0 + 256*128)
    e("s_lshl_b32 s40, s41, 7"); e(f"s_add_u32 s40, s40, 0x{FL0:x}")
    e("v_lshlrev_b32 v4, 7, v9"); e("v_mov_b32 v5, 0")
    e("s_cmp_eq_u32 s2, 0"); e(f"s_cselect_b32 s4, 0, 0x{BIG:x}"); e(f"s_add_u32 s4, s4, 0x{FL0:x}")
    e("buffer_store_dword v5, v4, s[56:59], s4 offen sc1")
    cl_, ch_ = kaptr('ckv'); srd(32, cl_, ch_, 2048*512*2)
    kl, kh = kaptr('wuk'); srd(36, kl, kh, 512*4096*2)
    def pieces(u):
        b = (u % 3) * BUF
        ps = []
        if u < 16:
            pre = ["s_add_u32 s45, s45, 128", "s_and_b32 s45, s45, 1023", "s_add_u32 s49, s44, s45", "s_lshl_b32 s4, s45, 12", "s_add_u32 s51, s48, s4"]
            if u == 8:
                l_, h_ = kaptr('wuv'); pre = ["s_mov_b32 s45, s47"] + pre + [f"s_mov_b32 s36, s{l_}", f"s_mov_b32 s37, s{h_}"]
            for t in range(4):
                ps.append((pre if t == 0 else []) + [f"s_add_u32 m0, s3, {b + t*8192}", f"s_add_u32 s4, s49, {t*65536}",
                           f"buffer_load_dwordx4 v{VA}, s[32:35], s4 offen lds"])
            for t in range(2):
                ps.append([f"s_add_u32 m0, s3, {b + 32768 + t*8192}", f"s_add_u32 s4, s51, {t*262144}",
                           f"buffer_load_dwordx4 v{VB}, s[36:39], s4 offen lds"])
        else:
            c = u - 16
            pre = []
            if c == 0:
                l_, h_ = kaptr('wq'); pre = [f"s_mov_b32 s36, s{l_}", f"s_mov_b32 s37, s{h_}"]
            for t in range(6 if c < 2 else 4):
                ps.append((pre if t == 0 else []) + [f"s_add_u32 m0, s3, {b + t*8192}", f"s_add_u32 s4, s48, {(c*192 + t*32)*8192}",
                           f"buffer_load_dwordx4 v{VB}, s[36:39], s4 offen lds"])
        return [(p, ('st', u)) for p in ps]
    def emit(it):
        if callable(it): it(); return
        if isinstance(it, str): e(it); return
        ins, tag = it[0], it[1]
        for x in ins:
            if x.endswith(":"): lab(x[:-1])
            else: e(x)
        if tag is not None: vm.issue(tag)
    for p in pieces(0):
        emit(p)
        if os.environ.get('KST2'): stamp()
    M0 = HR
    C1, WM_, P, XR, XA, S1_ = M0, M0+2, M0+10, M0+26, M0+30, M0+38
    MA = P
    cl2, ch2 = kaptr('c'); srd(24, cl2, ch2, 1024)
    wl, wh = kaptr('wmod'); srd(28, wl, wh, 512*3072*2)
    xl, xh_ = kaptr('x'); srd(60, xl, xh_, 2048*512*2)
    e("v_lshlrev_b32 v4, 1, v9")
    e(f"buffer_load_ushort v{C1}, v4, s[24:27], 0 offen")
    e("s_mov_b32 s4, 6144")
    e("v_mul_lo_u32 v4, v9, s4")
    e("s_lshl_b32 s4, s43, 5")
    e(f"buffer_load_dwordx4 {vr(WM_,4)}, v4, s[28:31], s4 offen")
    e(f"buffer_load_dwordx4 {vr(WM_+4,4)}, v4, s[28:31], s4 offen offset:16")
    e("v_and_b32 v5, 7, v0")
    e("v_lshrrev_b32 v6, 3, v0")
    e("v_lshlrev_b32 v4, 10, v5")
    e("v_lshl_add_u32 v4, v6, 4, v4")
    e("s_lshl_b32 s4, s41, 13")
    e("s_lshl_b32 s5, s20, 7")
    e("s_add_u32 s4, s4, s5")
    e(f"buffer_load_dwordx4 {vr(XR,4)}, v4, s[60:63], s4 offen")
    vm.issue('modld', 4)
    if os.environ.get('KST2'): stamp()
    for u in (1, 2):
        for p in pieces(u): emit(p)
        if os.environ.get('KST2'): stamp()
    srd_off(8, wsl, wsh, WS['k'], 32*MB)
    srd_off(12, wsl, wsh, WS['ctx'], 16*MB)
    srd_off(52, wsl, wsh, WS['xh'], 2048*512*2)
    dl, dh = kaptr('dbg'); srd(60, dl, dh, 256)
    e("v_bfe_u32 v6, v0, 1, 3")
    e("v_xor_b32 v6, v6, v3")
    e("s_lshl_b32 s4, s18, 13")
    e("v_lshlrev_b32 v7, 7, v2")
    e("v_add_u32 v7, s4, v7")
    for s in range(4):
        e(f"v_xor_b32 v8, {2*s}, v6")
        e(f"v_lshl_add_u32 v{RA+s}, v8, 4, v7")
    e("v_bfe_u32 v6, v0, 2, 2")
    e("v_lshl_add_u32 v8, v3, 3, v6")
    e("v_lshlrev_b32 v8, 8, v8")
    e("v_bfe_u32 v7, v0, 4, 1")
    e("v_lshl_add_u32 v8, v7, 5, v8")
    e("v_and_b32 v7, 1, v0")
    e("v_lshl_add_u32 v8, v7, 4, v8")
    e("v_bfe_u32 v7, v0, 1, 1")
    e("v_lshl_add_u32 v8, v7, 3, v8")
    e("s_lshl_b32 s4, s19, 1")
    for nt in range(2):
        e(f"s_add_u32 s5, s4, {nt}")
        e("v_xor_b32 v7, s5, v6")
        e(f"v_lshl_add_u32 v{RB_+nt}, v7, 6, v8")
    def fa(st, mt): return FR + st*16 + mt*4
    def fb(st, nt): return FR + st*16 + 8 + nt*4
    def reads(s, st):
        for mt in range(2):
            e(f"ds_read_b128 {vr(fa(st,mt),4)}, v{RA+s} offset:{mt*4096}")
        for nt in range(2):
            e(f"ds_read_b64_tr_b16 {vr(fb(st,nt),2)}, v{RB_+nt} offset:{32768 + s*4096}")
            e(f"ds_read_b64_tr_b16 {vr(fb(st,nt)+2,2)}, v{RB_+nt} offset:{32768 + s*4096 + 1024}")
    def wreads(s):
        sl = s % 12
        for db in range(4):
            e(f"ds_read_b64_tr_b16 {vr(FR+(s%2)*16+db*4,2)}, v{RB_+db} offset:{sl*4096}")
            e(f"ds_read_b64_tr_b16 {vr(FR+(s%2)*16+db*4+2,2)}, v{RB_+db} offset:{sl*4096 + 1024}")
    sched = {}
    def add(key, items): sched.setdefault(key, []).extend(items)
    def spread(keys, items):
        n = (len(items) + len(keys) - 1) // len(keys)
        for i, k in enumerate(keys): add(k, items[i*n:(i+1)*n])
    uid = [0]
    VP2 = 24
    def poll_issue(sel, thr, tag, srd_=56, so='s42'):
        return [(sel + [f"v_lshlrev_b32 v4, 7, v4", f"v_mov_b32 v{VP2+1}, 0x{BIG:x}", f"v_cndmask_b32 v{VP2+1}, v{VP2+1}, v4, vcc",
                        f"v_cndmask_b32 v{VP2+2}, 0, {thr}, vcc",
                        f"buffer_load_dword v{VP2}, v{VP2+1}, s[{srd_}:{srd_+3}], {so} offen sc1"], tag)]
    def poll_check(tag, srd_=56, so='s42'):
        uid[0] += 1
        lb = f"{L}_pl{uid[0]}"
        def f():
            e("s_cmp_lg_u32 s20, 0")
            e(f"s_cbranch_scc1 {lb}_b")
            vm.wait(tag)
            e(f"s_mov_b32 s7, {os.environ.get('SPIN', '0x40000')}")
            lab(f"{lb}_a")
            e(f"v_cmp_gt_u32 vcc, v{VP2+2}, v{VP2}")
            e("s_sub_u32 s7, s7, 1")
            e("s_nop 2")
            e(f"s_cbranch_vccz {lb}_b")
            e("s_cmp_eq_u32 s7, 0")
            e(f"s_cbranch_scc1 {lb}_b")
            e(f"s_sleep {os.environ.get('PSLEEP', '2')}")
            e(f"buffer_load_dword v{VP2}, v{VP2+1}, s[{srd_}:{srd_+3}], {so} offen sc1")
            e("s_waitcnt vmcnt(0)")
            e(f"s_branch {lb}_a")
            lab(f"{lb}_b")
        return f
    prebar = {}
    def signal(val):
        return [([f"v_mov_b32 v4, {val}", f"v_mov_b32 v5, 0x{BIG:x}", "v_cmp_eq_u32 vcc, 0, v9", "s_nop 1",
                  "v_cndmask_b32 v5, v5, 0, vcc", "buffer_store_dword v4, v5, s[56:59], s40 offen sc1"], 'sig')]
    it = [lambda: vm.wait('modld')]
    it += [f"v_lshlrev_b32 v{C1}, 16, v{C1}", f"v_mul_f32 v{C1+1}, 0xbfb8aa3b, v{C1}", f"v_exp_f32 v{C1+1}, v{C1+1}"]
    for j in range(8):
        it += [f"v_lshlrev_b32 v{P+2*j}, 16, v{WM_+j}", f"v_and_b32 v{P+2*j+1}, 0xffff0000, v{WM_+j}"]
        if j == 0: it += [f"v_add_f32 v{C1+1}, 1.0, v{C1+1}", f"v_rcp_f32 v{C1+1}, v{C1+1}"]
        if j == 1: it += [f"v_mul_f32 v{C1}, v{C1}, v{C1+1}", f"v_cvt_pk_bf16_f32 v{C1}, v{C1}, v{C1}", f"v_lshlrev_b32 v{C1}, 16, v{C1}"]
    for j in range(16): it.append(f"v_mul_f32 v{P+j}, v{P+j}, v{C1}")
    for dpp in ("row_shr:1", "row_shr:2", "row_shr:4", "row_shr:8", "row_bcast:15 row_mask:0xa", "row_bcast:31 row_mask:0xc"):
        for j in range(16):
            it.append(f"v_add_f32_dpp v{P+j}, v{P+j}, v{P+j} {dpp}" + (" bound_ctrl:0" if "shr" in dpp else ""))
    it.append((["s_lshl_b32 s4, s20, 6", f"s_add_u32 s4, s4, {SCR}", f"v_mov_b32 v4, {SCR + 2048}", "v_mov_b32 v5, s4", "v_cmp_eq_u32 vcc, 63, v0", "s_nop 1",
                "v_cndmask_b32 v4, v4, v5, vcc"] + [f"ds_write_b128 v4, {vr(P+4*j,4)} offset:{16*j}" for j in range(4)], None))
    for i in range(4):
        it += [f"v_lshlrev_b32 v{XA+2*i}, 16, v{XR+i}", f"v_and_b32 v{XA+2*i+1}, 0xffff0000, v{XR+i}"]
    it += [f"v_add_f32 v{S1_}, v{XA}, v{XA+1}", f"v_mul_f32 v{S1_+1}, v{XA}, v{XA}"]
    for i in range(1, 8):
        if i >= 2: it.append(f"v_add_f32 v{S1_}, v{S1_}, v{XA+i}")
        it.append(f"v_fmac_f32 v{S1_+1}, v{XA+i}, v{XA+i}")
    it.append((["s_nop 1", f"v_add_f32_dpp v{S1_}, v{S1_}, v{S1_} row_ror:8", f"v_add_f32_dpp v{S1_+1}, v{S1_+1}, v{S1_+1} row_ror:8", "s_nop 0",
                f"v_mov_b32 v{S1_+2}, v{S1_}", f"v_mov_b32 v{S1_+3}, v{S1_+1}", "s_nop 1",
                f"v_permlane16_swap_b32 v{S1_}, v{S1_+2}", f"v_permlane16_swap_b32 v{S1_+1}, v{S1_+3}", "s_nop 1",
                f"v_add_f32 v{S1_}, v{S1_}, v{S1_+2}", f"v_add_f32 v{S1_+1}, v{S1_+1}, v{S1_+3}",
                f"v_mov_b32 v{S1_+2}, v{S1_}", f"v_mov_b32 v{S1_+3}, v{S1_+1}", "s_nop 1",
                f"v_permlane32_swap_b32 v{S1_}, v{S1_+2}", f"v_permlane32_swap_b32 v{S1_+1}, v{S1_+3}", "s_nop 1",
                f"v_add_f32 v{S1_}, v{S1_}, v{S1_+2}", f"v_add_f32 v{S1_+1}, v{S1_+1}, v{S1_+3}",
                "v_and_b32 v4, 7, v0", "v_lshlrev_b32 v4, 6, v4", f"v_add_u32 v{S1_+4}, {SCR + 1024}, v4",
                "s_lshl_b32 s4, s20, 3", f"v_add_u32 v4, s4, v{S1_+4}", f"ds_write_b64 v4, v[{S1_}:{S1_+1}]"], None))
    spread([(u, s) for u in (1, 2) for s in range(4)][:7], it)
    it = [(["v_and_b32 v4, 15, v0", "v_lshlrev_b32 v4, 2, v4", f"v_add_u32 v5, {SCR}, v4"] +
           [f"ds_read_b32 v{WM_+w}, v5 offset:{w*64}" for w in range(8)] +
           [f"ds_read_b128 {vr(P+4*i,4)}, v{S1_+4} offset:{16*i}" for i in range(4)], None)]
    add((3, 0), it)
    it = []
    for w in range(1, 8): it.append(f"v_add_f32 v{WM_}, v{WM_}, v{WM_+w}")
    it += [f"v_cvt_pk_bf16_f32 v{WM_}, v{WM_}, v{WM_}", f"v_lshlrev_b32 v{WM_}, 16, v{WM_}"]
    it.append(([f"v_mov_b32 v5, 0x{BIG:x}", "v_lshlrev_b32 v4, 2, v9", "v_cmp_gt_u32 vcc, 16, v9", "s_lshl_b32 s4, s43, 6", "s_nop 0", "v_cndmask_b32 v5, v5, v4, vcc",
                f"buffer_store_dword v{WM_}, v5, s[56:59], s4 offen sc1"], 'modst'))
    for i in range(1, 8):
        it += [f"v_add_f32 v{P}, v{P}, v{P+2*i}", f"v_add_f32 v{P+1}, v{P+1}, v{P+2*i+1}"]
    it += [f"v_mul_f32 v{P}, 0x{f2u(1/512):08x}, v{P}", f"v_mul_f32 v{P+1}, 0x{f2u(1/512):08x}, v{P+1}",
           f"v_fma_f32 v{P+1}, -v{P}, v{P}, v{P+1}", f"v_max_f32 v{P+1}, 0, v{P+1}", f"v_add_f32 v{P+1}, 0x{f2u(1e-5):08x}, v{P+1}",
           f"v_rsq_f32 v{P+1}, v{P+1}"]
    for i in range(8): it.append(f"v_sub_f32 v{XA+i}, v{XA+i}, v{P}")
    for i in range(8): it.append(f"v_mul_f32 v{XA+i}, v{XA+i}, v{P+1}")
    spread([(3, 1), (3, 2), (3, 3)], it)
    MS = int(os.environ.get('K_MS', '4'))
    add((MS, 1), [lambda: vm.wait('modst')] + signal(1))
    MP = int(os.environ.get('K_MP', '8'))
    PL = int(os.environ.get('K_PL', '5'))
    def kb(u): return ((u*4 + 3 - PL) // 4, (u*4 + 3 - PL) % 4)
    add(kb(MP), poll_issue(["v_lshrrev_b32 v4, 1, v0", "v_and_b32 v5, 1, v0", "v_lshl_add_u32 v4, v4, 3, v5", "s_mov_b64 vcc, -1"], 1, 'pm'))
    ZS = int(os.environ.get('K_ZS', '3'))
    assert ZS < MS
    add((0, 0), [(["v_mov_b32 v4, 1", f"v_mov_b32 v5, 0x{BIG:x}", "v_cmp_eq_u32 vcc, 0, v9", "s_cmp_eq_u32 s2, 0", f"s_cselect_b32 s4, 0, 0x{BIG:x}",
                   "v_cndmask_b32 v5, v5, 0, vcc", "buffer_store_dword v4, v5, s[60:63], s4 offen sc1"], 'sig')])
    add(kb(ZS), poll_issue(["v_mov_b32 v4, 0", "v_cmp_eq_u32 vcc, 0, v9", "s_nop 0"], 1, 'pz', 60, '0'))
    prebar[ZS] = [poll_check('pz', 60, '0')]
    prebar[MP] = [poll_check('pm')]
    it = [(["v_lshrrev_b32 v4, 3, v0", "v_lshlrev_b32 v4, 5, v4", "s_lshl_b32 s4, s20, 8", "s_add_u32 s5, s4, 2048",
            f"buffer_load_dwordx4 {vr(MA,4)}, v4, s[56:59], s5 offen sc1"], 'ml'),
          ([f"buffer_load_dwordx4 {vr(MA+4,4)}, v4, s[56:59], s5 offen offset:16 sc1"], 'ml'),
          ([f"buffer_load_dwordx4 {vr(MA+8,4)}, v4, s[56:59], s4 offen sc1"], 'ml'),
          ([f"buffer_load_dwordx4 {vr(MA+12,4)}, v4, s[56:59], s4 offen offset:16 sc1"], 'ml')]
    postbar = {MP: [(sum([x[0] for x in it], []), None), lambda: vm.issue('ml', 4)]}
    it = [lambda: vm.wait('ml')]
    for i in range(8): it.append(f"v_add_f32 v{MA+i}, 1.0, v{MA+i}")
    for i in range(4):
        it += [f"v_cvt_pk_bf16_f32 v{MA+2*i}, v{MA+2*i}, v{MA+2*i+1}", f"v_and_b32 v{MA+2*i+1}, 0xffff0000, v{MA+2*i}", f"v_lshlrev_b32 v{MA+2*i}, 16, v{MA+2*i}"]
    for i in range(8): it.append(f"v_fma_f32 v{XA+i}, v{XA+i}, v{MA+i}, v{MA+8+i}")
    for i in range(4): it.append(f"v_cvt_pk_bf16_f32 v{XR+i}, v{XA+2*i}, v{XA+2*i+1}")
    it.append((["v_lshrrev_b32 v4, 4, v0", "v_lshlrev_b32 v4, 10, v4", "v_bfe_u32 v5, v0, 3, 1", "v_lshl_add_u32 v4, v5, 9, v4", "v_and_b32 v5, 7, v0", "v_lshl_add_u32 v4, v5, 4, v4",
                "s_lshr_b32 s4, s41, 2", "s_lshl_b32 s4, s4, 15", "s_and_b32 s5, s41, 3", "s_lshl_b32 s5, s5, 7", "s_add_u32 s4, s4, s5", "s_lshl_b32 s5, s20, 12", "s_add_u32 s4, s4, s5",
                f"buffer_store_dwordx4 {vr(XR,4)}, v4, s[52:55], s4 offen sc1"], 'hst'))
    HD_ = int(os.environ.get('K_HD', '1'))
    spread([(MP+HD_, 2), (MP+HD_, 3)], it)
    endwait = {MP+HD_+1: ['hst']}
    add((MP+HD_+1, 3), signal(2))
    PFS = int(os.environ.get('K_PF', '2'))
    if PFS >= 0:
        it = []
        for k_, nm in enumerate(('wuv', 'wq')):
            l_, h_ = kaptr(nm)
            for t in range(2):
                it.append(([f"s_mov_b32 s24, s{l_}", f"s_mov_b32 s25, s{h_}", f"s_mov_b32 s26, 0x{512*4096*2:x}", "s_lshl_b32 s4, s17, 19", "s_add_u32 s4, s4, s48",
                           f"s_add_u32 s4, s4, {t*262144}", f"buffer_load_dwordx4 {vr(TMP + (k_*2+t)*4, 4)}, v{VB}, s[24:27], s4 offen"], 'pf'))
        add((PFS, 1), it[:2]); add((PFS+1, 1), it[2:])
    def acc(ph, mt, nt): return (ACA if ph == 0 else ACB) + (mt*2 + nt) * 16
    def stores(ph):
        o = []; k = 0
        for mt in range(2):
            for nt in range(2):
                for h in range(2):
                    t = TMP + (k % 4) * 4; k += 1
                    a = acc(ph, mt, nt) + h*8
                    off = (mt*8 + 2*nt + h)*1024 if ph == 0 else 16*MB + ((2*mt + h)*4 + nt)*1024
                    o.append([f"v_cvt_pk_bf16_f32 v{t+j}, v{a+2*j}, v{a+2*j+1}" for j in range(4)] +
                             [([f"s_add_u32 s4, s{22+ph}, 0x{off:x}", f"buffer_store_dwordx4 {vr(t,4)}, v{VL16}, s[8:11], s4 offen {os.environ.get('KVSC', 'sc1')}"], ('kv', ph))])
        return o
    e("s_lshl_b32 s21, s16, 19")
    e("s_lshl_b32 s4, s17, 16")
    e("s_add_u32 s4, s4, s21")
    e("s_lshl_b32 s5, s18, 14")
    e("s_add_u32 s4, s4, s5")
    e("s_lshl_b32 s5, s19, 12")
    e("s_add_u32 s22, s4, s5")
    e("s_lshl_b32 s5, s19, 11")
    e("s_add_u32 s23, s4, s5")
    ks_keys = [(8, 1), (8, 2), (9, 0), (9, 1), (9, 2), (10, 0), (10, 1), (10, 2)]
    for k_, st_ in zip(ks_keys, stores(0)): add(k_, st_)
    endwait.setdefault(12, []).append(('kv', 0))
    assert MP + HD_ + 1 < 12
    add((12, 3), signal(3))
    e("s_sub_u32 s4, 15, s17")
    e("s_cmp_eq_u32 s46, 0")
    e("s_cselect_b32 s30, s4, s17")
    e("s_lshl_b32 s31, s30, 2")
    e("s_add_u32 s31, s31, s50")
    e("s_lshl_b32 s31, s31, 15")
    e("s_cmp_eq_u32 s20, 0")
    e(f"s_cselect_b32 s42, 0, 0x{BIG:x}"); e(f"s_add_u32 s42, s42, 0x{FL0:x}")
    hsel = ["s_lshl_b32 s4, s17, 4", "s_sub_u32 s5, 224, s4", "v_mov_b32 v4, s4", "v_mov_b32 v5, s5", "v_cmp_gt_u32 vcc, 16, v0", "s_nop 1",
            "v_cndmask_b32 v4, v5, v4, vcc", "v_add_u32 v4, v4, v0", "v_cmp_gt_u32 vcc, 32, v0", "s_nop 0"]
    ksel = ["s_lshl_b32 s4, s16, 3", "v_add_u32 v4, s4, v0", "v_cmp_gt_u32 vcc, 8, v0", "s_nop 0"]
    HP = int(os.environ.get('K_HP', '13'))
    assert HP > MP + HD_ + 1
    add(kb(HP), poll_issue(hsel, 2, 'ph'))
    prebar[HP] = [poll_check('ph')]
    HS = os.environ.get('HSC', 'sc1')
    def hload(s):
        return ([f"s_add_u32 s4, s31, {s*1024}", f"buffer_load_dwordx4 {vr(HR + (s % HD)*4, 4)}, v{VL16}, s[52:55], s4 offen {HS}"], ('h', s))
    hk = [(HP, 3)] + [(u, s) for u in range(HP+1, 16) for s in range(4)]
    spread(hk, [hload(s) for s in range(HD)])
    add(('q', 11 - PL), poll_issue(ksel, 3, 'pk'))
    prebar[('q', 11)] = [stamp, poll_check('pk')]
    for i, st_ in enumerate(stores(1)):
        add(('q', 1 + i), st_)
    for s in range(32 - HD): add(('q', s), [hload(s + HD)])
    VS = int(os.environ.get('K_VS', '23'))
    add(('q', VS), signal(4))
    add(('q', 32 - PL), poll_issue(ksel, 4, 'pv'))
    prebar['B1'] = [poll_check('pv')]
    e("s_lshl_b32 s21, s50, 12")
    e("s_lshl_b32 s4, s46, 14")
    e("s_add_u32 s21, s21, s4")
    def kdma_l(buf):
        o = [[f"s_add_u32 m0, s49, {LK0 + buf*32768}", "s_nop 0", f"buffer_load_dwordx4 v{VL16}, s[32:35], s24 offen {DMAX} lds"]]
        for i in range(1, 4):
            o.append([f"buffer_load_dwordx4 v{VL16}, s[32:35], s24 offen offset:{i*1024} {DMAX} lds"])
        o[-1].append("s_add_u32 s24, s24, 32768")
        return o
    def vdma_l(buf):
        o = [[f"s_add_u32 m0, s49, {LV0 + buf*32768}", "s_nop 0", f"buffer_load_dwordx4 v{VL16}, s[60:63], s26 offen {DMAX} lds"]]
        for i in range(1, 4):
            o.append([f"buffer_load_dwordx4 v{VL16}, s[60:63], s26 offen offset:{i*1024} {DMAX} lds"])
        o[-1].append("s_add_u32 s26, s26, 32768")
        return o
    stamp()
    vm.wait(('st', 0))
    e("s_barrier")
    stamp()
    reads(0, 0)
    pend = []
    def slot(key, i, n=4):
        if pend: emit(pend.pop(0))
        fl = sched.get(key, [])
        k = (len(fl) + (n - i) - 1) // (n - i)
        for _ in range(k): emit(fl.pop(0))
    for u in range(16):
        ph = u // 8
        for s in range(4):
            st = s & 1
            ops = [(mt, nt) for mt in range(2) for nt in range(2)]
            def mf(mt, nt):
                c = "0" if (u % 8 == 0 and s == 0) else vr(acc(ph,mt,nt),16)
                a_, b_ = (fb(st,nt), fa(st,mt)) if ph == 0 else (fa(st,mt), fb(st,nt))
                e(f"v_mfma_f32_32x32x16_bf16 {vr(acc(ph,mt,nt),16)}, {vr(a_,4)}, {vr(b_,4)}, {c}")
            if s < 3:
                reads(s+1, st ^ 1)
                e("s_waitcnt lgkmcnt(6)")
                for i, (mt, nt) in enumerate(ops):
                    mf(mt, nt); slot((u, s), i)
            else:
                e("s_waitcnt lgkmcnt(0)")
                mf(*ops[0])
                while pend: emit(pend.pop(0))
                for x in prebar.pop(u, []): x()
                vm.wait([('st', u+1)] + endwait.get(u, []))
                e("s_barrier")
                stamp()
                d = BUF if (u+1) % 3 else -2*BUF
                for x in postbar.pop(u, []): emit(x)
                pend.extend(pieces(u+3))
                if u < 15:
                    for r_ in list(range(RA, RA+4)) + [RB_, RB_+1]:
                        e(f"v_add_u32 v{r_}, 0x{d & 0xffffffff:x}, v{r_}")
                    reads(0, 0)
                else:
                    for db in range(4):
                        e(f"v_xor_b32 v7, {db}, v6")
                        e(f"v_lshl_add_u32 v{RB_+db}, v7, 6, v8")
                        e(f"v_add_u32 v{RB_+db}, {(16 % 3)*BUF}, v{RB_+db}")
                    wreads(0)
                for i, (mt, nt) in enumerate(ops[1:]):
                    mf(mt, nt); slot((u, s), i, 3)
    e("s_lshl_b32 s49, s50, 12")
    e("s_lshl_b32 s4, s46, 14")
    e("s_add_u32 s49, s49, s4")
    e("s_mov_b32 s24, s21")
    e("s_mov_b32 s26, s21")
    e("s_lshl_b32 s4, s16, 19")
    e("s_add_u32 s32, s8, s4"); e("s_addc_u32 s33, s9, 0"); e(f"s_mov_b32 s34, 0x{512*1024:x}")
    e(f"s_add_u32 s60, s32, 0x{16*MB:x}"); e("s_addc_u32 s61, s33, 0"); e(f"s_mov_b32 s62, 0x{512*1024:x}")
    QA = ACA
    for s in range(32):
        def mf(db):
            c = "0" if s == 0 else vr(QA+db*16,16)
            e(f"v_mfma_f32_32x32x16_bf16 {vr(QA+db*16,16)}, {vr(FR+(s%2)*16+db*4,4)}, {vr(HR+(s%HD)*4,4)}, {c}")
        hl = [x for x in sched.get(('q', s), []) if not callable(x) and not isinstance(x, str) and x[1] and x[1][0] == 'h']
        for x in hl: sched[('q', s)].remove(x)
        if s in (11, 23):
            vm.wait(('h', s), " lgkmcnt(0)")
            mf(0)
            while pend: emit(pend.pop(0))
            for x in prebar.pop(('q', s), []): x()
            vm.wait([('st', 17 if s == 11 else 18)] + ([('kv', 1)] if s == VS else []))
            e("s_barrier")
            stamp()
            pend.extend([(p, ('k', 0 if s == 11 else 1)) for p in kdma_l(0 if s == 11 else 1)])
            d = BUF if s == 11 else -2*BUF
            for db in range(4): e(f"v_add_u32 v{RB_+db}, 0x{d & 0xffffffff:x}, v{RB_+db}")
            wreads(s+1)
            for db in range(1, 4):
                mf(db)
                slot(('q', s), db - 1, 3)
            for x in hl: emit(x)
        else:
            if s < 31:
                wreads(s+1)
                vm.wait(('h', s), " lgkmcnt(8)")
            else:
                vm.wait(('h', s), " lgkmcnt(0)")
            for db in range(4):
                mf(db)
                if s == VS and db == 0:
                    vm.wait(('kv', 1)); e("s_barrier")
                slot(('q', s), db)
            for x in hl: emit(x)
    assert not pend
    for k_, v_ in sched.items(): assert not v_, k_
    stamp()
    for x in prebar.pop('B1'): x()
    assert not prebar and not postbar
    attn_main(L, lg, vm, kdma_l, vdma_l)
    e("s_waitcnt vmcnt(0)")
    stamp(); stamp_out()
    lab(f"{L}_end")
    e("s_endpgm")
    end(name, (256,1,1), (512,1,1), 163840, 256)

def attn_main(L, lg, vm, kdma_l, vdma_l):
    QA = ACA
    def kdma(buf):
        for p in kdma_l(buf):
            for x in p: e(x)
    def vdma(buf):
        for p in vdma_l(buf):
            for x in p: e(x)
    stamp()
    e("s_barrier")
    vdma(0)
    e("s_lshl_b32 s4, s50, 13")
    e(f"s_add_u32 s5, s4, {STASH}")
    e(f"s_add_u32 s6, s4, {LV1}")
    e("s_cmp_eq_u32 s46, 0")
    e("s_cselect_b32 s7, s6, s5")
    e(f"v_add_u32 v{VQ}, s6, v{VL16}")
    e(f"v_add_u32 v5, s7, v{VL16}")
    e(f"s_add_u32 s6, s4, {LK1}")
    e(f"s_add_u32 s7, s4, {LV1 - 16384}")
    e("s_cmp_lt_u32 s50, 2")
    e("s_cselect_b32 s6, s6, s7")
    e("s_lshl_b32 s7, s46, 14")
    e("s_add_u32 s6, s6, s7")
    e(f"v_add_u32 v{VMG}, s6, v{VL16}")
    csc = (128 ** -0.5) * 1.4426950408889634
    e(f"s_mov_b32 s28, 0x{f2u(csc):08x}")
    e("s_nop 7")
    for i in range(32):
        e(f"v_mul_f32 v{QA+2*i}, s28, v{QA+2*i}")
        e(f"v_mul_f32 v{QA+2*i+1}, s28, v{QA+2*i+1}")
        e(f"v_cvt_pk_bf16_f32 v{Q+i}, v{QA+2*i}, v{QA+2*i+1}")
        if i % 4 == 3:
            e(f"ds_write_b128 v5, {vr(Q+i-3,4)} offset:{(i//4)*1024}")
    e("s_lshl_b32 s7, s46, 14")
    e(f"s_add_u32 s6, s7, {LK0}")
    e(f"v_add_u32 v{AK}, s6, v{VL16}")
    e("s_lshl_b32 s6, s46, 11")
    e("s_add_u32 s5, s7, s6")
    e(f"v_add_u32 v{AV}, s5, v{VL16}")
    e("s_sub_u32 s5, s7, s6")
    e(f"v_add_u32 v{AV+1}, s5, v{VL16}")
    e(f"s_mov_b32 s31, 0x{f2u(8.0):08x}")
    e("s_mov_b32 s52, 0x42c80000")
    e("s_mov_b32 s47, 0")
    e("s_sub_u32 s51, 15, s17")
    e("s_lshl_b32 s25, s20, 10")
    e("s_waitcnt vmcnt(4) lgkmcnt(0)")
    e("s_barrier")
    lab(f"{L}_phase")
    for i in range(8):
        e(f"ds_read_b128 {vr(Q+4*i,4)}, v{VQ} offset:{i*1024}")
    e("s_add_u32 s27, s51, 1")
    e("s_lshl_b32 s22, s51, 7")
    e("s_lshl_b32 s23, s50, 5")
    e("s_add_u32 s22, s22, s23")
    e("v_add_u32 v4, s22, v2")
    e("v_lshlrev_b32 v6, 2, v3")
    e(f"v_sub_u32 v{VREL}, v4, v6")
    for i in range(64):
        e(f"v_mov_b32 v{O+i}, 0")
    for i in range(16):
        e(f"v_mov_b32 v{NEGM+i}, 0")
    e(f"v_mov_b32 v{VL}, 0")
    e(f"v_mov_b32 v{VFL}, 0xf149f2ca")
    e("s_lshl_b32 s29, s46, 6")
    e("s_sub_u32 s30, s27, 1")
    e("s_mov_b32 s43, 0")
    SB = [S0, S1]
    def kitem(buf, q):
        g = q // 4; ds = (g % 2) * 4 + q % 4
        e(f"ds_read_b128 {vr(KF+(q%8)*4,4)}, v{AK} offset:{buf*32768 + ((g//2)*8 + ds)*1024}")
        return lg.issue(1)
    def vitem(buf, p):
        t = p // 4; db = p % 4
        e(f"ds_read_b128 {vr(KF+(p%8)*4,4)}, v{AV + db//2} offset:{buf*32768 + (t*4 + db)*1024}")
        return lg.issue(1)
    def qk_mfma(S, q):
        g = q // 4; ds = (g % 2) * 4 + q % 4; kb = g // 2
        c = vr(NEGM,16) if ds == 0 else vr(S+kb*16,16)
        return f"v_mfma_f32_32x32x16_bf16 {vr(S+kb*16,16)}, {vr(KF+(q%8)*4,4)}, {vr(Q+4*ds,4)}, {c}"
    def pv_mfma(S, p):
        t = p // 4; db = p % 4
        return f"v_mfma_f32_32x32x16_bf16 {vr(O+db*16,16)}, {vr(KF+(p%8)*4,4)}, {vr(S+8*t,4)}, {vr(O+db*16,16)}"
    uid = [0]
    def mask_max(S):
        uid[0] += 1
        lb = f"{L}_nm{uid[0]}"
        o = []
        o.append(("blk", [
            "s_cmp_lt_u32 s43, s30",
            f"s_cbranch_scc1 {lb}",
            f"v_subrev_u32 v{T}, s29, v{VREL}",
            f"v_mov_b32 v{T+1}, 0xff800000"] +
            sum([[f"v_cmp_gt_i32 vcc, {kb*32 + (i//4)*8 + i%4}, v{T}", "s_nop 1",
                  f"v_cndmask_b32 v{S+kb*16+i}, v{S+kb*16+i}, v{T+1}, vcc"] for kb in range(2) for i in range(16)], []) +
            [f"{lb}:", "s_add_u32 s29, s29, 128", "s_add_u32 s43, s43, 1"]))
        o.append(f"v_max3_f32 v{T}, v{S}, v{S+1}, v{S+2}")
        o.append(f"v_max3_f32 v{T+1}, v{S+3}, v{S+4}, v{S+5}")
        for i in range(6, 30, 4):
            o.append(f"v_max3_f32 v{T}, v{T}, v{S+i}, v{S+i+1}")
            o.append(f"v_max3_f32 v{T+1}, v{T+1}, v{S+i+2}, v{S+i+3}")
        o.append(f"v_max3_f32 v{T}, v{T}, v{S+30}, v{S+31}")
        o.append(f"v_max_f32 v{T}, v{T}, v{T+1}")
        o.append(f"v_mov_b32 v{T+1}, v{T}")
        o.append("PAD")
        o.append("PAD")
        o.append(f"v_permlane32_swap_b32 v{T}, v{T+1}")
        o.append("PAD")
        o.append("PAD")
        o.append(f"v_max_f32 v{T}, v{T}, v{T+1}")
        o.append(f"v_cmp_lt_f32 s[40:41], s31, v{T}")
        return o
    def slowpath(S):
        uid[0] += 1
        lb = f"{L}_sp{uid[0]}"
        e("s_cmp_eq_u64 s[40:41], 0")
        e(f"s_cbranch_scc1 {lb}")
        e("s_nop 15")
        e(f"v_max_f32 v{T}, v{T}, v{VFL}")
        e(f"v_min_f32 v{T+1}, s52, -v{T}")
        e(f"v_exp_f32 v{T+1}, v{T+1}")
        e(f"v_mov_b32 v{VFL}, 0")
        e(f"v_mul_f32 v{VL}, v{VL}, v{T+1}")
        for i in range(64):
            e(f"v_mul_f32 v{O+i}, v{O+i}, v{T+1}")
        for i in range(32):
            e(f"v_sub_f32 v{S+i}, v{S+i}, v{T}")
        for i in range(16):
            e(f"v_sub_f32 v{NEGM+i}, v{NEGM+i}, v{T}")
        e("s_nop 1")
        lab(lb)
    def exps(S):
        o = []
        for t in range(4):
            b = S + t*8
            o.append(f"v_exp_f32 v{b}, v{b}")
            for i in range(1, 8):
                o.append(f"v_exp_f32 v{b+i}, v{b+i}")
                o.append(f"v_add_f32 v{VL}, v{VL}, v{b+i-1}")
                if i % 2 == 0:
                    o.append(f"v_cvt_pk_bf16_f32 v{b+(i-2)//2}, v{b+i-2}, v{b+i-1}")
            o.append("PAD")
            o.append(f"v_add_f32 v{VL}, v{VL}, v{b+7}")
            o.append(f"v_cvt_pk_bf16_f32 v{b+3}, v{b+6}, v{b+7}")
        return o
    def emit(x):
        if isinstance(x, tuple):
            for s_ in x[1]:
                if s_.endswith(":"): lab(s_[:-1])
                else: e(s_)
        elif x == "PAD": e("s_nop 0")
        else: e(x)
    def popf(lst, n):
        k = 0
        first = True
        while lst and k < n:
            x = lst.pop(0)
            if x == "PAD" and first:
                first = False
                continue
            first = False
            emit(x); k += 1
    def need(lst, t, S):
        for x in lst:
            if isinstance(x, str) and x.startswith("v_cvt_pk") and f"v{S+8*t+3}," in x: return True
        return False
    lg.issue(8)
    tk = [kitem(0, q) for q in range(8)]
    for q in range(16):
        lg.wait(tk[q])
        e(qk_mfma(S0, q))
        if q < 8: tk.append(kitem(0, q+8))
    e("s_cmp_eq_u32 s47, 0")
    e(f"s_cbranch_scc1 {L}_w0")
    e("s_waitcnt vmcnt(4)")
    e(f"s_branch {L}_w1")
    lab(f"{L}_w0")
    e("s_waitcnt vmcnt(0)")
    lab(f"{L}_w1")
    e("s_barrier")
    kdma(0)
    vdma(1)
    if os.environ.get('PFQ', '1') != '0':
        e("s_cmp_eq_u32 s47, 0")
        e(f"s_cbranch_scc1 {L}_nopf")
        e("s_lshl_b32 s4, s2, 3")
        e("s_add_u32 s4, s4, s20")
        e("s_lshl_b32 s4, s4, 10")
        e(f"v_add_u32 v5, s4, v{VL16}")
        e(f"s_add_u32 m0, s25, {STASH}")
        RND = 2*MB
        for (nm, nb) in (('wo', 4096*512*2), ('win', 512*1376*2), ('wsp', 2048*2048*2), ('wout', 688*512*2)):
            pl, ph = kaptr(nm)
            srd(36, pl, ph, nb)
            for r_ in range((nb + RND - 1) // RND):
                e(f"s_mov_b32 s4, 0x{r_*RND:x}")
                e(f"buffer_load_dwordx4 v5, s[36:39], s4 offen lds")
        lab(f"{L}_nopf")
    tk = [kitem(1, q) for q in range(8)]
    for x in mask_max(S0): emit(x)
    e("s_mov_b64 s[40:41], -1")
    e("s_mov_b32 s42, s27")
    if ST:
        stamp(True)
    lab(f"{L}_loop")
    for u in range(2):
        cur, nxt = SB[u], SB[u ^ 1]
        fill = exps(cur)
        mm = mask_max(nxt)
        slowpath(cur)
        for q in range(16):
            lg.wait(tk[q])
            e(qk_mfma(nxt, q))
            if q < 8: tk.append(kitem(u ^ 1, q+8))
            else: tk.append(vitem(u, q-8))
            popf(fill, 3)
        tk = tk[16:]
        dm = []
        for p in range(16):
            if p % 4 == 0:
                while len(fill) > 0 and need(fill, p // 4, cur): emit(fill.pop(0))
                if any("v_cvt_pk" in y for y in out[-2:]): e("s_nop 1")
            lg.wait(tk[p])
            e(pv_mfma(cur, p))
            if p < 8: tk.append(vitem(u, p+8))
            elif p == 9:
                e(f"s_waitcnt vmcnt(0) lgkmcnt(0)")
                e("s_barrier")
                tk.append(kitem(u, 0)); tk.append(kitem(u, 1))
                dm = kdma_l(u ^ 1) + vdma_l(u)
            elif p > 9:
                tk.append(kitem(u, p-8))
                for _ in range(2 if p < 12 else 1):
                    for x in dm.pop(0): e(x)
            if fill: popf(fill, 3)
            if p >= 2 and (not fill or p >= 8): popf(mm, 3 if p < 9 else 2)
        while fill: emit(fill.pop(0))
        while mm: emit(mm.pop(0))
        tk = tk[16:]
        e("s_sub_u32 s42, s42, 1")
        if u == 0:
            e("s_cmp_eq_u32 s42, 0")
            e(f"s_cbranch_scc1 {L}_fin")
        else:
            e("s_cmp_lg_u32 s42, 0")
            e(f"s_cbranch_scc1 {L}_loop")
    lab(f"{L}_fin")
    e("s_waitcnt vmcnt(0) lgkmcnt(0)")
    stamp(2)
    e("s_barrier")
    e("s_mov_b32 s24, s21")
    e("s_mov_b32 s26, s21")
    e("s_cmp_lg_u32 s47, 0")
    e(f"s_cbranch_scc1 {L}_m1")
    kdma(0)
    lab(f"{L}_m1")
    e("s_nop 15")
    for i in range(8):
        e(f"ds_write_b128 v{VMG}, {vr(O+32+4*i,4)} offset:{i*1024}")
    e("s_lshl_b32 s4, s46, 14")
    e("s_lshl_b32 s5, s50, 9")
    e("s_add_u32 s4, s4, s5")
    e(f"s_add_u32 s4, s4, {LV0}")
    e("v_lshlrev_b32 v5, 3, v0")
    e("v_add_u32 v5, s4, v5")
    e(f"v_mov_b32 v{S1+4}, v{NEGM}")
    e(f"v_mov_b32 v{S1+5}, v{VL}")
    e(f"ds_write_b64 v5, v[{S1+4}:{S1+5}]")
    e(f"v_xor_b32 v6, 0x4000, v{VMG}")
    e("v_xor_b32 v5, 0x4000, v5")
    e("s_waitcnt lgkmcnt(0)")
    e("s_barrier")
    e(f"ds_read_b64 v[{S1}:{S1+1}], v5")
    for i in range(8):
        e(f"ds_read_b128 {vr(S0+4*i,4)}, v6 offset:{i*1024}")
    e("s_waitcnt vmcnt(0) lgkmcnt(0)")
    e("s_cmp_lg_u32 s47, 0")
    e(f"s_cbranch_scc1 {L}_m2")
    e("s_barrier")
    kdma(1); vdma(0)
    lab(f"{L}_m2")
    A0, A1 = S1 + 2, S1 + 3
    e(f"v_min_f32 v{T}, v{NEGM}, v{S1}")
    e(f"v_sub_f32 v{A0}, v{T}, v{NEGM}")
    e(f"v_sub_f32 v{A1}, v{T}, v{S1}")
    e(f"v_exp_f32 v{A0}, v{A0}")
    e(f"v_exp_f32 v{A1}, v{A1}")
    e("s_nop 0")
    e(f"v_mul_f32 v{T}, v{VL}, v{A0}")
    e(f"v_fmac_f32 v{T}, v{S1+1}, v{A1}")
    e(f"v_mov_b32 v{T+1}, v{T}")
    e("s_nop 1")
    e(f"v_permlane32_swap_b32 v{T}, v{T+1}")
    e("s_nop 1")
    e(f"v_add_f32 v{T}, v{T}, v{T+1}")
    e(f"v_rcp_f32 v{T}, v{T}")
    e("v_lshlrev_b32 v5, 13, v4")
    e("v_lshl_add_u32 v5, v3, 4, v5")
    e(f"v_mul_f32 v{A0}, v{A0}, v{T}")
    e(f"v_mul_f32 v{A1}, v{A1}, v{T}")
    e("s_lshl_b32 s23, s16, 8")
    e("s_lshl_b32 s4, s46, 7")
    e("s_add_u32 s23, s23, s4")
    for db in range(2):
        for h in range(2):
            a = O + db*16 + h*8
            b = S0 + db*16 + h*8
            for j in range(8):
                e(f"v_mul_f32 v{a+j}, v{a+j}, v{A0}")
                e(f"v_fmac_f32 v{a+j}, v{b+j}, v{A1}")
            for j in range(4):
                e(f"v_cvt_pk_bf16_f32 v{a+j}, v{a+2*j}, v{a+2*j+1}")
            e(f"buffer_store_dwordx4 {vr(a,4)}, v5, s[12:15], s23 offen offset:{(db*32+h*16)*2}")
    e("s_cmp_lg_u32 s47, 0")
    e(f"s_cbranch_scc1 {L}_done")
    e("s_mov_b32 s47, 1")
    e("s_mov_b32 s51, s17")
    e("s_lshl_b32 s4, s50, 13")
    e(f"s_add_u32 s4, s4, {STASH}")
    e(f"v_add_u32 v{VQ}, s4, v{VL16}")
    e("s_nop 3")
    e(f"s_branch {L}_phase")
    lab(f"{L}_done")
```

```python
import sys, os
sys.path.insert(0, os.path.dirname(os.path.abspath(__file__)))
from v2_common import *
from v2_attn import *
from v3_attn import gen_attn8
import v2_common

def gen_win():
    name = "win_kernel"
    L = "L_win"
    lg = LG()
    begin(name)
    e("s_cmp_ge_u32 s2, 240")
    e(f"s_cbranch_scc1 {L}_end")
    load_kargs()
    e("s_and_b32 s4, s2, 7")
    e("s_lshr_b32 s5, s2, 3")
    e("s_mul_i32 s4, s4, 30")
    e("s_add_u32 s4, s4, s5")
    sdiv(17, 4, 15, 5)
    e("s_mul_i32 s5, s17, 15")
    e("s_sub_u32 s16, s4, s5")
    e("v_mov_b32 v9, v0")
    e("v_lshrrev_b32 v1, 6, v0")
    e("v_and_b32 v0, 63, v0")
    e("s_nop 0")
    e("v_readfirstlane_b32 s20, v1")
    e("s_waitcnt lgkmcnt(0)")
    wsl, wsh = kaptr('ws')
    srd_off(12, wsl, wsh, WS['z'], 2048*1376*2)
    srd_off(32, wsl, wsh, WS['x1t'], 2048*512*2)
    ql, qh = kaptr('win'); srd(36, ql, qh, 512*1376*2)
    srd_off(56, wsl, wsh, WS['mod'], 3072*4)
    srd_off(40, wsl, wsh, WS['st'], 2048*128)
    VW, AV, MT0 = 12, 16, 240
    QA, R0, VX, AX = 32, 112, 13, 14
    MODL = 65536
    e("v_and_b32 v2, 31, v0")
    e("v_lshrrev_b32 v3, 5, v0")
    e("s_lshl_b32 s22, s17, 7")
    e("s_lshl_b32 s23, s20, 5")
    e("s_add_u32 s22, s22, s23")
    e("v_add_u32 v4, s22, v2")
    e("v_lshlrev_b32 v6, 3, v9")
    e(f"s_mov_b32 s4, {4*2048}")
    e(f"s_mov_b32 s5, {3*2048}")
    e(f"buffer_load_dwordx2 v[{MT0}:{MT0+1}], v6, s[56:59], s4 offen")
    e(f"buffer_load_dwordx2 v[{MT0+2}:{MT0+3}], v6, s[56:59], s5 offen")
    e("v_lshlrev_b32 v5, 7, v4")
    e("v_lshl_add_u32 v5, v3, 6, v5")
    for i in range(4):
        e(f"buffer_load_dwordx4 {vr(200+4*i,4)}, v5, s[40:43], 0 offen offset:{16*i}")
    e("v_lshrrev_b32 v6, 4, v0")
    e("v_bfe_u32 v7, v0, 2, 2")
    e("v_xor_b32 v7, v7, v6")
    e("v_and_b32 v8, 3, v0")
    e("v_lshlrev_b32 v7, 6, v7")
    e("v_lshl_add_u32 v7, v8, 4, v7")
    e("s_mov_b32 s4, 2752")
    e("v_mul_lo_u32 v1, v6, s4")
    e(f"v_add_u32 v{VW}, v7, v1")
    e("v_xor_b32 v7, v8, v6")
    e("v_lshrrev_b32 v1, 2, v0")
    e("v_lshlrev_b32 v1, 6, v1")
    e(f"v_lshl_add_u32 v{VX}, v7, 4, v1")
    e("s_lshl_b32 s25, s20, 10")
    e("s_lshl_b32 s44, s20, 11")
    e("s_mul_i32 s45, s16, 192")
    e(f"s_mul_i32 s4, s20, {4*2752}")
    e("s_add_u32 s45, s45, s4")
    e("s_lshl_b32 s48, s22, 10")
    def dma_slot(j):
        b = (j % 4) * 16384
        for i in range(2):
            e(f"s_add_u32 m0, s44, {b + i*1024}")
            e(f"s_add_u32 s4, s48, {i*16384 + j*1024}")
            e(f"buffer_load_dwordx4 v{VX}, s[32:35], s4 offen lds")
        for i in range(2):
            e(f"s_add_u32 m0, s25, {b + 8192 + i*4096}")
            e(f"s_add_u32 s4, s45, {(j*32 + i*16)*2752}")
            e(f"buffer_load_dwordx4 v{VW}, s[36:39], s4 offen lds")
    for j in range(3): dma_slot(j)
    e("v_bfe_u32 v6, v0, 2, 2")
    e("v_bfe_u32 v8, v0, 4, 1")
    e("v_lshlrev_b32 v8, 5, v8")
    e("v_and_b32 v7, 1, v0")
    e("v_lshl_add_u32 v8, v7, 4, v8")
    e("v_bfe_u32 v7, v0, 1, 1")
    e("v_lshl_add_u32 v8, v7, 3, v8")
    e("v_lshl_add_u32 v7, v3, 3, v6")
    e("v_lshl_add_u32 v7, v7, 8, v8")
    for db in range(4):
        e(f"v_xor_b32 v1, {db}, v6")
        e(f"v_lshl_add_u32 v{AV+db}, v1, 6, v7")
    e("v_xor_b32 v7, v6, v3")
    e("v_lshlrev_b32 v1, 6, v2")
    e("v_add_u32 v1, s44, v1")
    e(f"v_lshl_add_u32 v{AX}, v7, 4, v1")
    e("v_xor_b32 v7, 2, v7")
    e(f"v_lshl_add_u32 v{AX+1}, v7, 4, v1")
    e("v_lshlrev_b32 v30, 5, v3")
    e(f"v_add_u32 v30, {MODL}, v30")
    e("s_waitcnt vmcnt(12)")
    e(f"v_add_f32 v{MT0}, 1.0, v{MT0}")
    e(f"v_add_f32 v{MT0+1}, 1.0, v{MT0+1}")
    e(f"v_cvt_pk_bf16_f32 v{MT0}, v{MT0}, v{MT0+1}")
    e(f"v_and_b32 v{MT0+1}, 0xffff0000, v{MT0}")
    e(f"v_lshlrev_b32 v{MT0}, 16, v{MT0}")
    e("v_lshlrev_b32 v6, 3, v9")
    e(f"v_add_u32 v6, {MODL}, v6")
    e(f"ds_write_b64 v6, v[{MT0}:{MT0+1}]")
    e(f"ds_write_b64 v6, v[{MT0+2}:{MT0+3}] offset:2048")
    e("v_add_f32 v28, v200, v202"); e("v_add_f32 v29, v201, v203")
    for i in range(2, 8):
        e(f"v_add_f32 v28, v28, v{200+2*i}"); e(f"v_add_f32 v29, v29, v{201+2*i}")
    e("v_mov_b32 v26, v28"); e("v_mov_b32 v27, v29")
    e("s_nop 1")
    e("v_permlane32_swap_b32 v28, v26")
    e("v_permlane32_swap_b32 v29, v27")
    e("s_nop 1")
    e("v_add_f32 v28, v28, v26")
    e("v_add_f32 v29, v29, v27")
    e(f"v_mul_f32 v28, 0x{f2u(1/512):08x}, v28")
    e(f"v_mul_f32 v29, 0x{f2u(1/512):08x}, v29")
    e("v_fma_f32 v29, -v28, v28, v29")
    e("v_max_f32 v29, 0, v29")
    e(f"v_add_f32 v29, 0x{f2u(1e-5):08x}, v29")
    e("v_rsq_f32 v29, v29")
    e("s_nop 0")
    e("v_mul_f32 v28, v28, v29")
    e("v_sub_f32 v28, 0, v28")
    lnproj2(L, QA, R0, AX, AV, lg, True, dma_slot, 0, 0, 3)
    e("s_nop 15")
    c1 = -2.0 * 0.7978845608028654 * 1.4426950408889634
    e(f"s_mov_b32 s20, 0x{f2u(c1):08x}")
    e(f"s_mov_b32 s21, 0x{f2u(c1*0.044715):08x}")
    e("s_mov_b32 s4, 2752")
    e("v_mul_lo_u32 v5, v4, s4")
    e("v_lshl_add_u32 v5, v3, 4, v5")
    e("s_mul_i32 s23, s16, 192")
    for db in range(3):
        if db == 1:
            e("s_cmp_eq_u32 s16, 14")
            e(f"s_cbranch_scc1 {L}_end")
        for h in range(2):
            a = QA + db*16 + h*8
            gelu8(a, 112)
            for j in range(4):
                e(f"v_cvt_pk_bf16_f32 v{a+j}, v{a+2*j}, v{a+2*j+1}")
            e(f"buffer_store_dwordx4 {vr(a,4)}, v5, s[12:15], s23 offen offset:{(db*32+h*16)*2}")
    lab(f"{L}_end")
    e("s_endpgm")
    end(name, (240,1,1), (256,1,1), 65536 + 4096, 256)

def gen_lnz():
    name = "lnz_kernel"
    begin(name)
    L = "L_lnz_end"
    e("s_cmp_ge_u32 s2, 512")
    e(f"s_cbranch_scc1 {L}")
    e(f"s_load_dwordx2 s[6:7], s[0:1], {KA['ws']}")
    e("s_waitcnt lgkmcnt(0)")
    srd_off(8, 6, 7, WS['z'] + 688*2, 2048*1376*2 - 688*2); srd_off(12, 6, 7, WS['z2n'], 2048*704*2)
    e("v_lshrrev_b32 v1, 6, v0")
    e("v_and_b32 v2, 63, v0")
    e("s_lshl_b32 s3, s2, 2")
    e("v_add_u32 v1, s3, v1")
    e("s_mov_b32 s20, 2752")
    e("v_mul_lo_u32 v3, v1, s20")
    e("v_lshl_add_u32 v3, v2, 4, v3")
    e("s_mov_b32 s20, 1408")
    e("v_mul_lo_u32 v4, v1, s20")
    e("v_lshl_add_u32 v4, v2, 4, v4")
    e("buffer_load_dwordx4 v[8:11], v3, s[8:11], 0 offen")
    for i in range(4): e(f"v_mov_b32 v{12+i}, 0")
    e("v_cmp_gt_u32 vcc, 22, v2")
    e("s_and_saveexec_b64 s[22:23], vcc")
    e("buffer_load_dwordx4 v[12:15], v3, s[8:11], 0 offen offset:1024")
    e("s_mov_b64 exec, s[22:23]")
    e("s_waitcnt vmcnt(0)")
    for ch in range(2):
        for i in range(4):
            e(f"v_lshlrev_b32 v{16+8*ch+2*i}, 16, v{8+4*ch+i}")
            e(f"v_and_b32 v{17+8*ch+2*i}, 0xffff0000, v{8+4*ch+i}")
    def wsum(r, t):
        for dpp in ("row_shr:1", "row_shr:2", "row_shr:4", "row_shr:8", "row_bcast:15 row_mask:0xa", "row_bcast:31 row_mask:0xc"):
            e("s_nop 1")
            e(f"v_add_f32_dpp v{r}, v{r}, v{r} {dpp}" + (" bound_ctrl:0" if "shr" in dpp else ""))
        e("s_nop 1")
        e(f"v_readlane_b32 s24, v{r}, 63")
        e("s_nop 1")
        e(f"v_mov_b32 v{r}, s24")
    e("v_mov_b32 v6, v16")
    for i in range(1, 16): e(f"v_add_f32 v6, v6, v{16+i}")
    wsum(6, 7)
    e(f"s_mov_b32 s20, 0x{f2u(1.0/688):08x}")
    e("v_mul_f32 v6, s20, v6")
    e("v_cmp_gt_u32 vcc, 22, v2")
    for i in range(16):
        e(f"v_sub_f32 v{16+i}, v{16+i}, v6")
        if i >= 8: e(f"v_cndmask_b32 v{16+i}, 0, v{16+i}, vcc")
    e("v_mul_f32 v6, v16, v16")
    for i in range(1, 16): e(f"v_fmac_f32 v6, v{16+i}, v{16+i}")
    wsum(6, 7)
    e("v_mul_f32 v6, s20, v6")
    e(f"v_add_f32 v6, 0x{f2u(1e-5):08x}, v6")
    e("v_rsq_f32 v6, v6")
    e("s_nop 0")
    for i in range(16): e(f"v_mul_f32 v{16+i}, v{16+i}, v6")
    for ch in range(2):
        for i in range(4):
            e(f"v_cvt_pk_bf16_f32 v{8+4*ch+i}, v{16+8*ch+2*i}, v{17+8*ch+2*i}")
    e("buffer_store_dwordx4 v[8:11], v4, s[12:15], 0 offen")
    e("v_cmp_gt_u32 vcc, 24, v2")
    e("s_and_saveexec_b64 s[22:23], vcc")
    e("buffer_store_dwordx4 v[12:15], v4, s[12:15], 0 offen offset:1024")
    lab(L)
    e("s_endpgm")
    end(name, (512,1,1), (256,1,1), 0, 48)

def main():
    cfg = dict(kv=(256,256,32,2,4,4,0), op=(64,64,64,2,2,4,1), sp=(128,64,64,2,2,4,1), wo=(64,64,64,2,2,4,1))
    for a in sys.argv[2:]:
        k, v = a.split("=")
        cfg[k] = tuple(int(x) for x in v.split(","))
    raw('.amdgcn_target "amdgcn-amd-amdhsa--gfx950"')
    raw(".text")
    W = 512*4096*2
    BM, BN, BK, GM, GN, S, DP = cfg['kv']
    if os.environ.get('KVA', '0') == '1':
        from v4_kva import gen_kva
        gen_kva()
    else:
        gen_gemm("kv_kernel", 2048, 8192, 512, BM, BN, BK, GM, GN, S,
             (('ka','ckv'), 1024, 2048*512*2), ([('ka','wuk'), ('ka','wuv')], 8192, W, 4096), 'kv', order=os.environ.get('KVORD','nm'), withmod=True, deep=DP)
        if os.environ.get('A8', '1') == '1': gen_attn8()
        else: gen_attn()
    BM, BN, BK, GM, GN, S, DP = cfg['op']
    gen_gemm("oproj_kernel", 2048, 512, 4096, BM, BN, BK, GM, GN, S,
             (('ws','ctx'), 8192, 2048*4096*2), ([('ka','wo')], 1024, 4096*512*2, 512), 'oproj', order='mn', deep=DP)
    gen_win()
    gen_lnz()
    BM, BN, BK, GM, GN, S, DP = cfg['sp']
    gen_gemm("wsp_kernel", 2048, 688, 2048, BM, BN, BK, GM, GN, S,
             (('ka','wsp'), 4096, 2048*2048*2), ([('ws','z2n')], 1408, 2048*704*2, 1024), 'sp', order='mn', deep=DP)
    BM, BN, BK, GM, GN, S, DP = cfg['wo']
    gen_gemm("wout_kernel", 2048, 512, 704, BM, BN, BK, GM, GN, S,
             (('ws','u'), 1408, 2048*704*2), ([('ka','wout')], 1024, 688*512*2, 512), 'final', order='mn', deep=DP)
    hdr = open("adaLN_cond__compressed_kv_cla__mixer_gmlp__prompt.s.ref").read().split("\n")
    hdr = [h for h in hdr if h.startswith(";") and "@launch" not in h and "Override" not in h and "grid=ceil" not in h]
    txt = "\n".join(hdr) + "\n"
    for (n, g, b, lds, nv, ns) in kernels:
        txt += f"; @launch kernel={n} grid=({g[0]},{g[1]},{g[2]}) block=({b[0]},{b[1]},{b[2]}) lds={lds}\n"
    txt += "\n".join(out) + "\n"
    txt += '.section .rodata,"a"\n'
    for (n, g, b, lds, nv, ns) in kernels:
        nv8 = (nv + 7) // 8 * 8
        txt += f""".p2align 6
.amdhsa_kernel {n}
  .amdhsa_next_free_vgpr {nv8}
  .amdhsa_next_free_sgpr {ns}
  .amdhsa_accum_offset {min(nv8,256)}
  .amdhsa_group_segment_fixed_size 0
  .amdhsa_kernarg_size 128
  .amdhsa_user_sgpr_count 2
  .amdhsa_user_sgpr_kernarg_segment_ptr 1
  .amdhsa_system_sgpr_workgroup_id_x 1
.end_amdhsa_kernel
"""
    open(sys.argv[1], "w").write(txt)
    for k in kernels: print(k)

main()
```

```python
import sys, struct
KA = dict(x=0, ckv=8, wq=16, wuk=24, wuv=32, wo=40, bx=48, win=56, wsp=64, bsp=72, wout=80, c=88, wmod=96, out=104, dbg=112, ws=120)
MB = 1 << 20
WS = dict(mod=0, k=20*MB, v=36*MB, ctx=52*MB, x1=68*MB, z=74*MB, z2n=80*MB, u=84*MB, xh=88*MB, st=92*MB, x1t=96*MB,
          wof=68*MB, wif=72*MB, wuf=74*MB, wsf=76*MB, h2f=92*MB, z2f=100*MB, uf=104*MB)
out = []
def e(s): out.append("    " + s)
def lab(s): out.append(s + ":")
def raw(s): out.append(s)
kernels = []
def begin(name):
    raw(f".globl {name}"); raw(".p2align 8"); raw(f".type {name},@function"); lab(name)
def end(name, grid, block, lds, nv, ns=100):
    kernels.append((name, grid, block, lds, nv, ns))
def srd(d, lo, hi, nbytes):
    e(f"s_mov_b32 s{d}, s{lo}"); e(f"s_mov_b32 s{d+1}, s{hi}")
    e(f"s_mov_b32 s{d+2}, 0x{nbytes:x}"); e(f"s_mov_b32 s{d+3}, 0x00020000")
def srd_off(d, lo, hi, off, nbytes):
    e(f"s_add_u32 s{d}, s{lo}, 0x{off:x}"); e(f"s_addc_u32 s{d+1}, s{hi}, 0")
    e(f"s_mov_b32 s{d+2}, 0x{nbytes:x}"); e(f"s_mov_b32 s{d+3}, 0x00020000")
def vr(a, n): return f"v[{a}:{a+n-1}]"
def f2u(x): return struct.unpack("<I", struct.pack("<f", x))[0]
def kaptr(n):
    o = KA[n] // 4
    return 64 + o, 65 + o
def load_kargs():
    e("s_load_dwordx16 s[64:79], s[0:1], 0")
    e("s_load_dwordx16 s[80:95], s[0:1], 64")
def log2(x):
    assert x & (x - 1) == 0 and x > 0
    return x.bit_length() - 1
def sdiv(dst, src, d, tmp):
    if d & (d - 1) == 0:
        e(f"s_lshr_b32 s{dst}, s{src}, {log2(d)}")
    else:
        e(f"s_mov_b32 s{tmp}, 0x{(1 << 32) // d + 1:x}")
        e(f"s_mul_hi_u32 s{dst}, s{src}, s{tmp}")

def gelu8(a, t):
    for j in range(8):
        e(f"v_mul_f32 v{t+j}, v{a+j}, v{a+j}")
        e(f"v_fma_f32 v{t+j}, v{t+j}, s21, v1") if False else None
    for j in range(8):
        e(f"v_mul_f32 v{t+j}, s21, v{t+j}")
        e(f"v_add_f32 v{t+j}, s20, v{t+j}")
        e(f"v_mul_f32 v{t+j}, v{t+j}, v{a+j}")
        e(f"v_exp_f32 v{t+j}, v{t+j}")
    for j in range(8):
        e(f"v_add_f32 v{t+j}, 1.0, v{t+j}")
        e(f"v_rcp_f32 v{t+j}, v{t+j}")
    e("s_nop 0")
    for j in range(8):
        e(f"v_mul_f32 v{a+j}, v{t+j}, v{a+j}")

def gen_gemm(name, M, N, K, BM, BN, BK, GM, GN, S, A, B, epi, order='mn', withmod=False, deep=False):
    NW = GM * GN
    nk = (K + BK - 1) // BK
    ks = BK // 16
    nbm, nbn = M // BM, (N + BN - 1) // BN
    ntile = nbm * nbn
    assert ntile % 8 == 0
    WM, WN = BM // GM, BN // GN
    MT, NT = WM // 32, WN // 32
    SW = min(BN, 128)
    RB = SW * 2
    CPS = SW // 32
    AROW = BK * 2
    ABYTES = BM * AROW
    BBYTES = BK * BN * 2
    BUF = ABYTES + BBYTES
    rowsA = 1024 // AROW
    rowsB = 1024 // RB
    nA, nB = BM // rowsA, BBYTES // 1024
    assert nA % NW == 0 and nB % NW == 0, (nA, nB, NW)
    nAi, nBi = nA // NW, nB // NW
    nper = nAi + nBi
    nj = BK // rowsB
    (Aptr, As, Abytes) = A
    (Bptrs, Bs, Bbytes, segN) = B
    L = f"L_{name}"
    begin(name)
    e(f"s_cmp_ge_u32 s2, {ntile}")
    e(f"s_cbranch_scc1 {L}_end")
    load_kargs()
    import os
    if epi == 'kv' and os.environ.get('KVPRIO'):
        e("s_cmp_lt_u32 s2, 256")
        e(f"s_cbranch_scc0 {L}_np")
        e(f"s_setprio {os.environ.get('KVPRIO')}")
        lab(f"{L}_np")
    e("s_and_b32 s4, s2, 7")
    e("s_lshr_b32 s5, s2, 3")
    e(f"s_mul_i32 s4, s4, {ntile//8}")
    e("s_add_u32 s4, s4, s5")
    if order == 'mn':
        sdiv(28, 4, nbn, 5)
        e(f"s_mul_i32 s5, s28, {nbn}")
        e("s_sub_u32 s29, s4, s5")
    else:
        sdiv(29, 4, nbm, 5)
        e(f"s_mul_i32 s5, s29, {nbm}")
        e("s_sub_u32 s28, s4, s5")
    if os.environ.get('SAMEA') == name: e("s_mov_b32 s28, 0")
    if os.environ.get('SAMEB') == name: e("s_mov_b32 s29, 0")
    e(f"s_mul_i32 s28, s28, {BM}")
    e(f"s_mul_i32 s29, s29, {BN}")
    e("s_waitcnt lgkmcnt(0)")
    def ptr(spec):
        if spec[0] == 'ka':
            lo, hi = kaptr(spec[1]); return (lo, hi, 0)
        lo, hi = kaptr('ws'); return (lo, hi, WS[spec[1]])
    lo, hi, ex = ptr(Aptr)
    srd_off(8, lo, hi, ex, Abytes)
    if len(Bptrs) > 1:
        e(f"s_lshr_b32 s3, s29, {log2(segN)}")
        e(f"s_and_b32 s29, s29, {segN-1}")
    for si, sp in enumerate(Bptrs):
        lo, hi, ex = ptr(sp)
        if si == 0:
            e(f"s_add_u32 s12, s{lo}, 0x{ex:x}"); e(f"s_addc_u32 s13, s{hi}, 0")
        else:
            e(f"s_add_u32 s4, s{lo}, 0x{ex:x}"); e(f"s_addc_u32 s5, s{hi}, 0")
            e(f"s_cmp_eq_u32 s3, {si}")
            e("s_cselect_b32 s12, s4, s12"); e("s_cselect_b32 s13, s5, s13")
    e(f"s_mov_b32 s14, 0x{Bbytes:x}"); e("s_mov_b32 s15, 0x00020000")
    e("v_mov_b32 v9, v0")
    e("v_lshrrev_b32 v1, 6, v0")
    e("v_and_b32 v0, 63, v0")
    e("s_nop 0")
    e("v_readfirstlane_b32 s30, v1")
    if BK == 32:
        e("v_lshrrev_b32 v2, 2, v0"); e("v_and_b32 v3, 3, v0"); e("v_lshrrev_b32 v4, 4, v0"); e("v_xor_b32 v3, v3, v4")
    else:
        e("v_lshrrev_b32 v2, 3, v0"); e("v_and_b32 v3, 7, v0"); e("v_lshrrev_b32 v4, 4, v0")
        e("s_and_b32 s4, s30, 1"); e("s_lshl_b32 s4, s4, 2"); e("v_or_b32 v4, s4, v4"); e("v_xor_b32 v3, v3, v4")
    e(f"s_mov_b32 s4, {As}")
    e("v_mul_lo_u32 v2, v2, s4")
    e("v_lshl_add_u32 v2, v3, 4, v2")
    if RB == 256:
        e("v_lshrrev_b32 v3, 4, v0"); e("v_bfe_u32 v4, v0, 2, 2"); e("v_xor_b32 v4, v4, v3"); e("v_and_b32 v5, 3, v0")
    else:
        e("v_lshrrev_b32 v3, 3, v0"); e("v_bfe_u32 v4, v0, 2, 1"); e("v_bfe_u32 v5, v0, 4, 1"); e("v_xor_b32 v4, v4, v5"); e("v_and_b32 v5, 3, v0")
    e(f"s_mov_b32 s4, {Bs}")
    e("v_mul_lo_u32 v3, v3, s4")
    e("v_lshl_add_u32 v3, v4, 6, v3")
    e("v_lshl_add_u32 v3, v5, 4, v3")
    SA, SB = 32, 40
    e(f"s_mul_i32 s4, s30, {rowsA}")
    e("s_add_u32 s4, s4, s28")
    e(f"s_mul_i32 s4, s4, {As}")
    for t in range(nAi):
        e(f"s_add_u32 s{SA+t}, s4, {t*NW*rowsA*As}")
    for t in range(nBi):
        e(f"s_add_u32 s4, s30, {NW*t}")
        e(f"s_and_b32 s5, s4, {nj-1}")
        e(f"s_lshr_b32 s4, s4, {log2(nj)}")
        e(f"s_mul_i32 s5, s5, {rowsB*Bs}")
        e(f"s_mul_i32 s4, s4, {SW*2}")
        e("s_add_u32 s4, s4, s5")
        e("s_lshl_b32 s5, s29, 1")
        e(f"s_add_u32 s{SB+t}, s4, s5")
    e("s_lshl_b32 s48, s30, 10")
    sdiv(49, 30, GN, 4)
    e(f"s_mul_i32 s4, s49, {GN}")
    e("s_sub_u32 s50, s30, s4")
    e("v_and_b32 v4, 31, v0")
    e("v_lshrrev_b32 v5, 5, v0")
    if BK == 32: e("v_bfe_u32 v6, v0, 2, 2")
    else: e("v_bfe_u32 v6, v0, 1, 3")
    e("v_xor_b32 v6, v6, v5")
    e(f"s_mul_i32 s4, s49, {WM*AROW}")
    e(f"v_lshlrev_b32 v7, {log2(AROW)}, v4")
    e("v_add_u32 v7, s4, v7")
    for s in range(ks):
        e(f"v_xor_b32 v8, {2*s}, v6")
        e(f"v_lshl_add_u32 v{10+s}, v8, 4, v7")
    e("v_bfe_u32 v4, v0, 2, 2")
    e("v_lshl_add_u32 v8, v5, 3, v4")
    e(f"v_lshlrev_b32 v8, {log2(RB)}, v8")
    e("v_bfe_u32 v6, v0, 4, 1")
    e("v_lshl_add_u32 v8, v6, 5, v8")
    e("v_and_b32 v6, 1, v0")
    e("v_lshl_add_u32 v8, v6, 4, v8")
    e("v_bfe_u32 v6, v0, 1, 1")
    e("v_lshl_add_u32 v8, v6, 3, v8")
    e(f"v_add_u32 v8, {ABYTES}, v8")
    if RB == 256: e("v_mov_b32 v6, v4")
    else: e("v_lshrrev_b32 v6, 1, v4")
    for nt in range(NT):
        e(f"s_mul_i32 s4, s50, {NT}")
        e(f"s_add_u32 s4, s4, {nt}")
        e(f"s_and_b32 s5, s4, {CPS-1}")
        e(f"s_lshr_b32 s4, s4, {log2(CPS)}")
        e(f"s_mul_i32 s4, s4, {BK*RB}")
        e("v_xor_b32 v7, s5, v6")
        e(f"v_lshl_add_u32 v{14+nt}, v7, 6, v8")
        e(f"v_add_u32 v{14+nt}, s4, v{14+nt}")
    NBANK = (S*BUF + 65535) // 65536
    for b in range(1, NBANK):
        for i in range(8):
            if (i < 4 and i < ks) or (i >= 4 and i - 4 < NT):
                e(f"v_add_u32 v{10+8*b+i}, {65536*b}, v{10+i}")
    def ad(reg, off):
        return f"v{reg + 8*(off >> 16)} offset:{off & 65535}"
    FSZ = (MT + NT) * 4
    FB = 10 + 8*NBANK
    ACC = FB + 2 * FSZ * (ks if deep else 1)
    def acc(mt, nt): return ACC + (mt*NT + nt) * 16
    def fa(st, mt): return FB + st*FSZ + mt*4
    def fb(st, nt): return FB + st*FSZ + MT*4 + nt*4
    PF = []
    import os
    if epi == 'kv' and os.environ.get('PF', '1') == '1':
        for (nm, nb) in (('wq', 4096*512*2),):
            for r_ in range((nb + 2*MB - 1) // (2*MB)):
                PF.append((nm, nb, r_*2*MB))
        assert len(PF) <= nk - S
    PFV = ACC + MT*NT*16
    PF0 = nk - len(PF)
    PFS = []
    if PF and os.environ.get('PFS', '0') == '1':
        for (nm, nb) in (('ckv', 2048*512*2), ('wuk', 4096*512*2), ('wuv', 4096*512*2)):
            for r_ in range((nb + 2*MB - 1) // (2*MB)):
                PFS.append((nm, nb, r_*2*MB))
    def extl(j):
        if PF0 <= j < nk: return [PF[j - PF0]]
        if j == S - 1: return PFS
        return []
    def extra(j): return len(extl(j))
    ROT = (K & (K-1)) == 0 and name in os.environ.get('ROT', 'oproj_kernel,wsp_kernel').split(',')
    def dma_pieces(buf, j=-1):
        ps = []
        if ROT:
            assert nBi <= 4
            for t in range(nAi):
                ps.append(([f"s_add_u32 s44, s44, {BK*2}", f"s_and_b32 s44, s44, {K*2-1}", f"s_mul_i32 s45, s44, {Bs//2}"] if t == 0 else []) +
                          [f"s_add_u32 m0, s48, {buf*BUF + t*NW*1024}",
                           f"s_add_u32 s46, s{SA+t}, s44" if os.environ.get('NOA') != name else "s_mov_b32 s46, 0x7f000000",
                           f"buffer_load_dwordx4 v2, s[8:11], s46 offen lds"])
            for t in range(nBi):
                ps.append([f"s_add_u32 m0, s48, {buf*BUF + ABYTES + t*NW*1024}",
                           f"s_add_u32 s46, s{SB+t}, s45" if os.environ.get('NOB') != name else "s_mov_b32 s46, 0x7f000000",
                           f"buffer_load_dwordx4 v3, s[12:15], s46 offen lds"])
        for t in range(nAi if not ROT else 0):
            ps.append([f"s_add_u32 m0, s48, {buf*BUF + t*NW*1024}",
                       f"s_add_u32 s{SA+t}, s{SA+t}, {BK*2}" if os.environ.get('NOA') != name else f"s_mov_b32 s{SA+t}, 0x7f000000",
                       f"buffer_load_dwordx4 v2, s[8:11], s{SA+t} offen lds"])
        for t in range(nBi if not ROT else 0):
            ps.append([f"s_add_u32 m0, s48, {buf*BUF + ABYTES + t*NW*1024}",
                       f"s_add_u32 s{SB+t}, s{SB+t}, {BK*Bs}" if os.environ.get('NOB') != name else f"s_mov_b32 s{SB+t}, 0x7f000000",
                       f"buffer_load_dwordx4 v3, s[12:15], s{SB+t} offen lds"])
        for (nm, nb, off) in extl(j):
            pl, ph = kaptr(nm)
            ps.append([f"s_mov_b32 s60, s{pl}", f"s_mov_b32 s61, s{ph}", f"s_mov_b32 s62, 0x{nb:x}", "s_mov_b32 s63, 0x00020000",
                       f"s_mov_b32 s7, 0x{off:x}",
                       f"buffer_load_dwordx4 {vr(PFV,4)}, v7, s[60:63], s7 offen"])
        return ps
    def dma(buf):
        for pc in dma_pieces(buf, buf if PF else -1):
            for x in pc: e(x)
    pend = []
    cnt = [0, nper]
    NMF = ks * MT * NT
    def tick():
        cnt[0] += 1
        while pend and cnt[0] >= 1 + (cnt[1] - len(pend)) * (NMF - 1) // cnt[1]:
            for x in pend.pop(0): e(x)
    def reads(buf, s, st):
        if os.environ.get('NORD') == name: return
        for mt in range(MT):
            e(f"ds_read_b128 {vr(fa(st,mt),4)}, {ad(10+s, buf*BUF + mt*32*AROW)}")
        for nt in range(NT):
            e(f"ds_read_b64_tr_b16 {vr(fb(st,nt),2)}, {ad(14+nt, buf*BUF + s*16*RB)}")
            e(f"ds_read_b64_tr_b16 {vr(fb(st,nt)+2,2)}, {ad(14+nt, buf*BUF + s*16*RB + 4*RB)}")
    nrd = MT + 2*NT
    import os
    def mf(st, mt, nt):
        if os.environ.get('NOMFMA') == name:
            tick(); return
        e(f"v_mfma_f32_32x32x16_bf16 {vr(acc(mt,nt),16)}, {vr(fb(st,nt),4)}, {vr(fa(st,mt),4)}, {vr(acc(mt,nt),16)}")
        tick()
    if ROT and os.environ.get('ROT_' + name):
        c0, c1, c2 = [int(x) for x in os.environ.get('ROT_' + name).split(',')]
        e("s_and_b32 s44, s2, 7")
        e(f"s_mul_i32 s44, s44, {c0}")
        e("s_bfe_u32 s45, s2, 0x30003")
        e(f"s_mul_i32 s45, s45, {c1}")
        e("s_add_u32 s44, s44, s45")
        e("s_lshr_b32 s45, s2, 6")
        e(f"s_mul_i32 s45, s45, {c2}")
        e("s_add_u32 s44, s44, s45")
        e(f"s_and_b32 s44, s44, {nk-1}")
        e(f"s_mul_i32 s44, s44, {BK*2}")
        e(f"s_sub_u32 s44, s44, {BK*2}")
    elif ROT:
        RM = os.environ.get('ROTM', '7')
        e(f"s_and_b32 s44, s2, {RM}")
        e(f"s_mul_i32 s44, s44, {K*2//(int(RM)+1)}")
        e(f"s_sub_u32 s44, s44, {BK*2}")
    else:
        for t in range(nAi): e(f"s_sub_u32 s{SA+t}, s{SA+t}, {BK*2}")
        for t in range(nBi): e(f"s_sub_u32 s{SB+t}, s{SB+t}, {BK*Bs}")
    SS = min(S, nk)
    if withmod:
        cl, ch = kaptr('c'); wl, wh = kaptr('wmod'); sl, sh = kaptr('ws')
        srd(16, cl, ch, 1024)
        srd(20, wl, wh, 512*3072*2)
        srd_off(24, sl, sh, WS['mod'], 3072*4)
        T = ACC
        RR = 512 // (64*NW)
        e(f"v_lshlrev_b32 v{T}, 1, v9")
        for r_ in range(RR):
            e(f"buffer_load_ushort v{T+1+48*r_}, v{T}, s[16:19], 0 offen offset:{r_*NW*128}")
        e("s_mov_b32 s4, 6144")
        e(f"v_mul_lo_u32 v{T}, v9, s4")
        e("s_and_b32 s4, s2, 255")
        e("s_mul_i32 s4, s4, 24")
        for r_ in range(RR):
            if r_: e(f"s_add_u32 s4, s4, {NW*64*6144}")
            e(f"buffer_load_dwordx4 {vr(T+2+48*r_,4)}, v{T}, s[20:23], s4 offen")
            e(f"buffer_load_dwordx2 {vr(T+6+48*r_,2)}, v{T}, s[20:23], s4 offen offset:16")
        xl, xh_ = kaptr('x'); srd(52, xl, xh_, 2048*512*2)
        srd_off(56, sl, sh, WS['xh'], 2048*512*2)
        e(f"s_lshl_b32 s51, s2, {log2(NW)}")
        e("s_add_u32 s51, s51, s30")
        e("s_lshl_b32 s51, s51, 10")
        e(f"v_lshlrev_b32 v{T+32}, 4, v0")
        e(f"buffer_load_dwordx4 {vr(T+36,4)}, v{T+32}, s[52:55], s51 offen")
    if PF:
        e("v_lshlrev_b32 v7, 4, v9")
        e(f"s_lshl_b32 s7, s2, {10+log2(NW)}")
        e("v_add_u32 v7, s7, v7")
    for t in range(SS):
        dma(t)
    if withmod:
        T = ACC
        e(f"s_waitcnt vmcnt({SS*nper + len(PFS)})")
        P = T + 8
        for r_ in range(RR):
            C1 = T + 1 + 48*r_
            e(f"v_lshlrev_b32 v{C1}, 16, v{C1}")
            e(f"v_mul_f32 v{T}, 0xbfb8aa3b, v{C1}")
            e(f"v_exp_f32 v{T}, v{T}")
            e("s_nop 0")
            e(f"v_add_f32 v{T}, 1.0, v{T}")
            e(f"v_rcp_f32 v{T}, v{T}")
            e("s_nop 0")
            e(f"v_mul_f32 v{C1}, v{C1}, v{T}")
            e(f"v_cvt_pk_bf16_f32 v{C1}, v{C1}, v{C1}")
            e(f"v_lshlrev_b32 v{C1}, 16, v{C1}")
            P2 = P + 48*r_
            for j in range(6):
                e(f"v_lshlrev_b32 v{P2+2*j}, 16, v{C1+1+j}")
                e(f"v_and_b32 v{P2+2*j+1}, 0xffff0000, v{C1+1+j}")
            for j in range(12):
                if r_ == 0: e(f"v_mul_f32 v{P+j}, v{P+j}, v{C1}")
                else: e(f"v_fmac_f32 v{P+j}, v{P2+j}, v{C1}")
        e("s_nop 1")
        for dpp in ("row_shr:1", "row_shr:2", "row_shr:4", "row_shr:8", "row_bcast:15 row_mask:0xa", "row_bcast:31 row_mask:0xc"):
            for j in range(12):
                e(f"v_add_f32_dpp v{P+j}, v{P+j}, v{P+j} {dpp}" + (" bound_ctrl:0" if "shr" in dpp else ""))
        e(f"v_mov_b32 v{T}, s48")
        e(f"v_lshrrev_b32 v{T}, 4, v{T}")
        e(f"v_add_u32 v{T}, {S*BUF}, v{T}")
        e("v_cmp_eq_u32 vcc, 63, v0")
        e("s_and_saveexec_b64 s[6:7], vcc")
        for j in range(3):
            e(f"ds_write_b128 v{T}, {vr(P+4*j,4)} offset:{16*j}")
        e("s_mov_b64 exec, s[6:7]")
        XA = T + 40
        def wsum(r):
            for dpp in ("row_shr:1", "row_shr:2", "row_shr:4", "row_shr:8", "row_bcast:15 row_mask:0xa", "row_bcast:31 row_mask:0xc"):
                e("s_nop 1")
                e(f"v_add_f32_dpp v{r}, v{r}, v{r} {dpp}" + (" bound_ctrl:0" if "shr" in dpp else ""))
            e("s_nop 1")
            e(f"v_readlane_b32 s4, v{r}, 63")
            e("s_nop 1")
            e(f"v_mov_b32 v{r}, s4")
        for i in range(4):
            e(f"v_lshlrev_b32 v{XA+2*i}, 16, v{T+36+i}")
            e(f"v_and_b32 v{XA+2*i+1}, 0xffff0000, v{T+36+i}")
        e(f"v_add_f32 v{T+33}, v{XA}, v{XA+1}")
        for i in range(2, 8): e(f"v_add_f32 v{T+33}, v{T+33}, v{XA+i}")
        wsum(T+33)
        e(f"v_mul_f32 v{T+33}, 0x{f2u(1/512):08x}, v{T+33}")
        for i in range(8): e(f"v_sub_f32 v{XA+i}, v{XA+i}, v{T+33}")
        e(f"v_mul_f32 v{T+33}, v{XA}, v{XA}")
        for i in range(1, 8): e(f"v_fmac_f32 v{T+33}, v{XA+i}, v{XA+i}")
        wsum(T+33)
        e(f"v_mul_f32 v{T+33}, 0x{f2u(1/512):08x}, v{T+33}")
        e(f"v_add_f32 v{T+33}, 0x{f2u(1e-5):08x}, v{T+33}")
        e(f"v_rsq_f32 v{T+33}, v{T+33}")
        e("s_nop 0")
        for i in range(8): e(f"v_mul_f32 v{XA+i}, v{XA+i}, v{T+33}")
        for i in range(4): e(f"v_cvt_pk_bf16_f32 v{T+36+i}, v{XA+2*i}, v{XA+2*i+1}")
        e("s_lshr_b32 s4, s51, 14")
        e("s_lshl_b32 s4, s4, 14")
        e("s_bfe_u32 s5, s51, 0x4000a")
        e("s_lshl_b32 s5, s5, 6")
        e("s_add_u32 s4, s4, s5")
        e(f"v_lshrrev_b32 v{T+32}, 2, v0")
        e(f"v_lshlrev_b32 v{T+32}, 10, v{T+32}")
        e(f"v_and_b32 v{T+33}, 3, v0")
        e(f"v_lshl_add_u32 v{T+32}, v{T+33}, 4, v{T+32}")
        e(f"buffer_store_dwordx4 {vr(T+36,4)}, v{T+32}, s[56:59], s4 offen")
        e("s_waitcnt lgkmcnt(0)")
    e(f"s_waitcnt vmcnt({(SS-1)*nper + (1 if withmod else 0) + len(PFS)})")
    e("s_barrier")
    GST = os.environ.get('GST') == name
    GSTD = int(os.environ.get('GSTD', '1'))
    if GST: e("s_memrealtime s[96:97]")
    if withmod:
        T = ACC
        e("s_cmp_lt_u32 s2, 256")
        e("s_cselect_b32 s4, 12, 0")
        e("v_cmp_gt_u32 vcc, s4, v9")
        e("s_and_saveexec_b64 s[6:7], vcc")
        e(f"s_cbranch_execz {L}_nomod")
        e(f"v_lshlrev_b32 v{T}, 2, v9")
        e(f"v_add_u32 v{T+9}, {S*BUF}, v{T}")
        for w in range(NW):
            e(f"ds_read_b32 v{T+1+w}, v{T+9} offset:{w*64}")
        e("s_waitcnt lgkmcnt(0)")
        for w in range(1, NW):
            e(f"v_add_f32 v{T+1}, v{T+1}, v{T+1+w}")
        e(f"v_cvt_pk_bf16_f32 v{T+1}, v{T+1}, v{T+1}")
        e(f"v_lshlrev_b32 v{T+1}, 16, v{T+1}")
        e("s_mul_i32 s4, s2, 48")
        e(f"buffer_store_dword v{T+1}, v{T}, s[24:27], s4 offen")
        lab(f"{L}_nomod")
        e("s_mov_b64 exec, s[6:7]")
    if deep:
        assert S % 2 == 0
        for s in range(ks): reads(0, s, s)
    else:
        reads(0, 0, 0)
    for i in range(MT*NT*16):
        e(f"v_mov_b32 v{ACC+i}, 0")
    def stage_deep(u, dodma, last, vm):
        buf = u % S
        p = (u & 1) * ks
        q = ((u & 1) ^ 1) * ks
        ops = [(mt, nt) for mt in range(MT) for nt in range(NT)]
        if last:
            e("s_waitcnt lgkmcnt(0)")
        else:
            e(f"s_waitcnt vmcnt({vm}) lgkmcnt(0)")
            e("s_barrier")
        if GST and u % GSTD == 0:
            e(f"v_writelane_b32 v250, s96, {u//GSTD+1}")
        if GST and u % GSTD == GSTD - 1:
            e("s_memrealtime s[96:97]")
        cnt[0] = 0
        if dodma:
            pend.extend(dma_pieces(buf, u + S if PF else -1)); cnt[1] = len(pend)
        for s in range(ks):
            if not last: reads((u+1) % S, s, q + s)
            for (mt, nt) in ops: mf(p + s, mt, nt)
        while pend:
            for x in pend.pop(0): e(x)
    def stage(u, dodma, last, vm):
        if deep: return stage_deep(u, dodma, last, vm)
        buf = u % S
        for s in range(ks):
            st = s & 1
            ops = [(mt, nt) for mt in range(MT) for nt in range(NT)]
            if s < ks - 1:
                reads(buf, s+1, st ^ 1)
                e(f"s_waitcnt lgkmcnt({nrd})")
                for (mt, nt) in ops: mf(st, mt, nt)
            else:
                e("s_waitcnt lgkmcnt(0)")
                if GST:
                    e(f"v_writelane_b32 v250, s{96 + 2*(u&1)}, {u+1}")
                if last:
                    for (mt, nt) in ops: mf(st, mt, nt)
                else:
                    mf(st, *ops[0])
                    while pend:
                        for x in pend.pop(0): e(x)
                    e(f"s_waitcnt vmcnt({vm})")
                    e("s_barrier")
                    if GST: e(f"s_memrealtime s[{96 + 2*((u+1)&1)}:{97 + 2*((u+1)&1)}]")
                    cnt[0] = 0
                    if dodma:
                        pend.extend(dma_pieces(buf, u + S if PF else -1)); cnt[1] = len(pend)
                    reads((u+1) % S, 0, st ^ 1)
                    for (mt, nt) in ops[1:]: mf(st, mt, nt)
    nmain = max(nk - S, 0)
    r = nmain % S
    if r == 0 and nmain > 0: r = S
    def vmx(u): return sum(nper + extra(j) for j in range(u+2, min(u+S-1, nk-1)+1)) + extra(u+1)
    if PF or GST:
        r = nmain
    for u in range(r):
        stage(u, True, False, vmx(u))
    if nmain - r > 0:
        e(f"s_mov_b32 s31, {(nmain - r)//S}")
        lab(f"{L}_loop")
        for u in range(r, r + S):
            stage(u, True, False, (S-2)*nper)
        e("s_sub_u32 s31, s31, 1")
        e("s_cmp_lg_u32 s31, 0")
        e(f"s_cbranch_scc1 {L}_loop")
    for u in range(nmain, nk):
        stage(u, False, u == nk-1, vmx(u))
    e("s_nop 15")
    if GST:
        e("s_memrealtime s[96:97]"); e("s_waitcnt lgkmcnt(0)")
        e(f"v_writelane_b32 v250, s96, {(nk+GSTD-1)//GSTD+1}")
        e(f"v_writelane_b32 v250, s100, 0")
        dl, dh = kaptr('ws')
        srd_off(96, dl, dh, 200*MB, 1 << 20)
        e("s_lshl_b32 s4, s2, 11"); e("s_lshl_b32 s5, s30, 8"); e("s_add_u32 s4, s4, s5")
        e("v_lshlrev_b32 v251, 2, v0")
        e("buffer_store_dword v250, v251, s[96:99], s4 offen")
    e("v_and_b32 v4, 31, v0")
    e(f"s_mul_i32 s4, s49, {WM}")
    e("s_add_u32 s4, s4, s28")
    e("v_add_u32 v4, s4, v4")
    e(f"s_mul_i32 s5, s50, {WN}")
    e("v_lshrrev_b32 v5, 5, v0")
    e("s_add_u32 s6, s5, s29")
    wsl, wsh = kaptr('ws')
    def colvalid_begin(nt, h, lbl):
        if N % BN == 0: return
        e(f"s_add_u32 s7, s6, {nt*32+h*16+16}")
        e(f"s_cmp_gt_u32 s7, {N}")
        e(f"s_cbranch_scc1 {lbl}")
    def pack8(dst, a):
        for j in range(4):
            e(f"v_cvt_pk_bf16_f32 v{dst+j}, v{a+2*j}, v{a+2*j+1}")
    def unpack8(dst, src):
        for j in range(4):
            e(f"v_lshlrev_b32 v{dst+2*j}, 16, v{src+j}")
            e(f"v_and_b32 v{dst+2*j+1}, 0xffff0000, v{src+j}")
    import os
    if os.environ.get('NOEPI') == name:
        e(f"s_branch {L}_end")
    if epi == 'kv':
        srd_off(16, wsl, wsh, WS['k'], 32*MB)
        e("s_lshl_b32 s7, s3, 24")
        e("s_lshr_b32 s4, s6, 7")
        e("s_lshl_b32 s4, s4, 19")
        e("s_add_u32 s7, s7, s4")
        e("s_and_b32 s4, s6, 127")
        e("s_lshl_b32 s4, s4, 1")
        e("s_add_u32 s7, s7, s4")
        e("v_lshlrev_b32 v6, 8, v4")
        e("v_lshl_add_u32 v6, v5, 4, v6")
        e("v_add_u32 v6, s7, v6")
        assert WN <= 128
        k = 0
        for mt in range(MT):
            e(f"s_mov_b32 s7, {mt*32*256}")
            for nt in range(NT):
                for h in range(2):
                    t = 8 + (k % 2) * 4; k += 1
                    pack8(t, acc(mt, nt) + h*8)
                    e(f"buffer_store_dwordx4 {vr(t,4)}, v6, s[16:19], s7 offen offset:{(nt*32+h*16)*2} {os.environ.get('KVST','')}")
    elif epi in ('oproj', 'final'):
        gi = 2 if epi == 'oproj' else 5
        srd_off(20, wsl, wsh, WS['mod'], 3072*4)
        if epi == 'oproj':
            xl, xh = kaptr('x'); srd(24, xl, xh, 2048*512*2)
            srd_off(16, wsl, wsh, WS['x1'], 2048*512*2)
        else:
            srd_off(24, wsl, wsh, WS['x1'], 2048*512*2)
            ol, oh = kaptr('out'); srd(16, ol, oh, 2048*512*2)
        e("v_lshlrev_b32 v5, 3, v5")
        e("v_add_u32 v5, s6, v5")
        e("v_lshlrev_b32 v7, 2, v5")
        e("v_lshlrev_b32 v6, 9, v4")
        e("v_add_u32 v6, v6, v5")
        e("v_lshlrev_b32 v6, 1, v6")
        e(f"s_mov_b32 s7, {gi*2048}")
        G0 = ACC + MT*NT*16
        X0 = G0 + NT*16
        for nt in range(NT):
            for h in range(2):
                e(f"buffer_load_dwordx4 {vr(G0+(nt*2+h)*8,4)}, v7, s[20:23], s7 offen offset:{(nt*32+h*16)*4}")
                e(f"buffer_load_dwordx4 {vr(G0+(nt*2+h)*8+4,4)}, v7, s[20:23], s7 offen offset:{(nt*32+h*16)*4+16}")
        for mt in range(MT):
            e(f"s_mov_b32 s4, {mt*32*1024}")
            for nt in range(NT):
                for h in range(2):
                    e(f"buffer_load_dwordx4 {vr(X0+((mt*NT+nt)*2+h)*4,4)}, v6, s[24:27], s4 offen offset:{(nt*32+h*16)*2}")
        if epi == 'oproj':
            assert WN == 32
            srd_off(28, wsl, wsh, WS['st'], 2048*128)
            e("s_mov_b32 s5, 0x3f803f80")
            e("s_lshr_b32 s4, s6, 2")
            e("v_lshlrev_b32 v20, 7, v4")
            e("v_add_u32 v20, s4, v20")
            assert MT == 1
            srd_off(32, wsl, wsh, WS['x1t'], 2048*512*2)
            e("v_lshrrev_b32 v21, 4, v4")
            e("v_lshlrev_b32 v21, 14, v21")
            e("v_and_b32 v22, 15, v4")
            e("v_lshl_add_u32 v21, v22, 6, v21")
            e("v_lshrrev_b32 v22, 5, v0")
            e("v_lshl_add_u32 v21, v22, 4, v21")
            e("s_lshl_b32 s36, s6, 5")
        e("s_waitcnt vmcnt(0)")
        for mt in range(MT):
            e(f"s_mov_b32 s4, {mt*32*1024}")
            for nt in range(NT):
                for h in range(2):
                    a = acc(mt, nt) + h*8
                    xr = X0 + ((mt*NT+nt)*2+h)*4
                    g = G0 + (nt*2+h)*8
                    unpack8(8, xr)
                    for j in range(8):
                        e(f"v_fmac_f32 v{8+j}, v{g+j}, v{a+j}")
                    pack8(xr, 8)
                    e(f"buffer_store_dwordx4 {vr(xr,4)}, v6, s[16:19], s4 offen offset:{(nt*32+h*16)*2}")
                    if epi == 'oproj':
                        e(f"buffer_store_dwordx4 {vr(xr,4)}, v21, s[32:35], s36 offen offset:{h*32}")
                        for j in range(4):
                            first = (nt == 0 and h == 0 and j == 0)
                            e(f"v_dot2_f32_bf16 v16, v{xr+j}, s5, " + ("0" if first else "v16"))
                            e(f"v_dot2_f32_bf16 v17, v{xr+j}, v{xr+j}, " + ("0" if first else "v17"))
            if epi == 'oproj':
                e("s_nop 4")
                e("v_mov_b32 v18, v16"); e("v_mov_b32 v19, v17")
                e("s_nop 1")
                e("v_permlane32_swap_b32 v16, v18")
                e("v_permlane32_swap_b32 v17, v19")
                e("s_nop 1")
                e("v_add_f32 v16, v16, v18"); e("v_add_f32 v17, v17, v19")
                e(f"s_mov_b32 s4, {mt*32*128}")
                e("buffer_store_dwordx2 v[16:17], v20, s[28:31], s4 offen")
        nvx = X0 + MT*NT*8
    elif epi == 'sp':
        bl, bh = kaptr('bsp')
        srd(20, bl, bh, 2048*2)
        srd_off(24, wsl, wsh, WS['z'], 2048*1376*2)
        srd_off(16, wsl, wsh, WS['u'], 2048*704*2)
        e("v_lshlrev_b32 v5, 3, v5")
        e("v_add_u32 v5, s6, v5")
        e("s_mov_b32 s4, 2752")
        e("v_mul_lo_u32 v6, v4, s4")
        e("v_lshl_add_u32 v6, v5, 1, v6")
        e("s_mov_b32 s4, 1408")
        e("v_mul_lo_u32 v7, v4, s4")
        e("v_lshl_add_u32 v7, v5, 1, v7")
        e("v_lshlrev_b32 v8, 1, v4")
        for mt in range(MT):
            e(f"buffer_load_ushort v{16+mt}, v8, s[20:23], 0 offen offset:{mt*64}")
        X0 = ACC + MT*NT*16
        for mt in range(MT):
            e(f"s_mov_b32 s7, {mt*32*2752}")
            for nt in range(NT):
                for h in range(2):
                    e(f"buffer_load_dwordx4 {vr(X0+((mt*NT+nt)*2+h)*4,4)}, v6, s[24:27], s7 offen offset:{(nt*32+h*16)*2}")
        e("s_waitcnt vmcnt(0)")
        for mt in range(MT):
            e(f"v_lshlrev_b32 v{16+mt}, 16, v{16+mt}")
        for nt in range(NT):
            for h in range(2):
                lbl = f"{L}_sk{nt}{h}"
                colvalid_begin(nt, h, lbl)
                for mt in range(MT):
                    a = acc(mt, nt) + h*8
                    xr = X0 + ((mt*NT+nt)*2+h)*4
                    unpack8(8, xr)
                    for j in range(8):
                        e(f"v_add_f32 v{a+j}, v{a+j}, v{16+mt}")
                        e(f"v_mul_f32 v{8+j}, v{8+j}, v{a+j}")
                    pack8(xr, 8)
                    e(f"s_mov_b32 s7, {mt*32*1408}")
                    e(f"buffer_store_dwordx4 {vr(xr,4)}, v7, s[16:19], s7 offen offset:{(nt*32+h*16)*2}")
                if N % BN:
                    e(f"s_branch {lbl}_d")
                    lab(lbl)
                    for j in range(4): e(f"v_mov_b32 v{8+j}, 0")
                    for mt in range(MT):
                        e(f"s_mov_b32 s7, {mt*32*1408}")
                        e(f"buffer_store_dwordx4 v[8:11], v7, s[16:19], s7 offen offset:{(nt*32+h*16)*2}")
                    lab(f"{lbl}_d")
        nvx = X0 + MT*NT*8
    if epi == 'kv': e("s_waitcnt vmcnt(0)")
    lab(f"{L}_end")
    e("s_endpgm")
    nv = ACC + MT*NT*16 + (4 if PF else 0)
    if GST: nv = 256
    if epi in ('oproj', 'final', 'sp'): nv = max(nv, nvx)
    lds = S * BUF + (512 if withmod else 0)
    end(name, (ntile,1,1), (64*NW,1,1), lds, nv)
```

```python
from v2_common import *
from v2_attn import LG
import os

class VM:
    def __init__(self): self.ops = []
    def issue(self, tag, k=1, cond=False): self.ops += [(tag, cond)] * k
    def after(self, tag):
        idx = max(i for i, t in enumerate(self.ops) if t[0] == tag)
        return sum(1 for t in self.ops[idx+1:] if not t[1])
    def wait(self, tag, extra=""):
        if isinstance(tag, list): n = min(self.after(t) for t in tag)
        else: n = self.after(tag)
        e(f"s_waitcnt vmcnt({min(n, 63)}){extra}")

ST = os.environ.get('KST')
VST = 27
stc = [0]
def stamp(ph=False):
    if not ST: return
    i = stc[0]; stc[0] += 1
    if ph == 2: stc[0] += 2
    e("s_memrealtime s[96:97]"); e("s_waitcnt lgkmcnt(0)")
    if ph:
        e("s_lshl_b32 s97, s47, 1"); e(f"s_add_u32 s97, s97, {i}")
        e("s_mov_b32 s98, m0"); e("s_mov_b32 m0, s97"); e("s_nop 0")
        e(f"v_writelane_b32 v{VST}, s96, m0"); e("s_mov_b32 m0, s98")
    else:
        e(f"v_writelane_b32 v{VST}, s96, {i}")
def stamp_out():
    if not ST: return
    dl, dh = kaptr('ws')
    srd_off(96, dl, dh, 200*MB, 1 << 20)
    e("s_lshl_b32 s4, s2, 11"); e("s_lshl_b32 s5, s20, 8"); e("s_add_u32 s4, s4, s5")
    e("v_lshlrev_b32 v26, 2, v0")
    e(f"buffer_store_dword v{VST}, v26, s[96:99], s4 offen")

VA, VB, VL16 = 10, 11, 12
VL, VREL = 14, 15
AV, AK, T = 16, 20, 29
VFL, NEGM = 28, 64
Q, KF, O, S0, S1 = 32, 80, 112, 176, 208
VQ, VMG, V4N = 252, 253, 13
ACA, ACB, FR, TMP, HR = 32, 96, 160, 192, 208
HD = 12
RA, RB_ = 16, 20
BUF = 49152
SCR = 147456
LV0, LV1, LK0, LK1, STASH = 32768, 0, 65536, 98304, 131072
LV = [LV0, LV1]
BIG = 0x7f000000
FL0 = 65536
DMAX = os.environ.get('DMAX', 'sc1')

def gen_kva():
    name = "kva_kernel"
    L = "L_kva"
    lg = LG(); vm = VM()
    begin(name)
    e("s_cmp_ge_u32 s2, 256")
    e(f"s_cbranch_scc1 {L}_end")
    load_kargs()
    e("v_mov_b32 v9, v0")
    e("v_lshrrev_b32 v1, 6, v0")
    e("v_and_b32 v0, 63, v0")
    e("s_nop 0")
    e("v_readfirstlane_b32 s20, v1")
    e("s_and_b32 s4, s2, 7")
    e("s_lshr_b32 s5, s2, 3")
    e("s_and_b32 s6, s5, 3")
    e("s_lshl_b32 s4, s4, 2")
    e("s_add_u32 s16, s6, s4")
    e("s_lshr_b32 s17, s5, 2")
    e("s_lshr_b32 s46, s20, 2")
    e("s_and_b32 s50, s20, 3")
    e("s_lshr_b32 s18, s20, 1")
    e("s_and_b32 s19, s20, 1")
    RA_ = [int(x) for x in os.environ.get('KROT', '0,0,2,1').split(',')]
    def rot(dst, a, b):
        o = [f"s_mul_i32 s{dst}, s6, {a}", f"s_mul_i32 s4, s17, {b}", f"s_add_u32 s{dst}, s{dst}, s4", f"s_and_b32 s{dst}, s{dst}, 7",
             f"s_lshl_b32 s{dst}, s{dst}, 7", f"s_sub_u32 s{dst}, s{dst}, 128"]
        for x in o: e(x)
    rot(45, RA_[0], RA_[1]); rot(47, RA_[2], RA_[3])
    e("s_lshr_b32 s4, s2, 5"); e("s_lshl_b32 s4, s4, 3"); e("s_and_b32 s5, s2, 7"); e("s_add_u32 s4, s4, s5")
    e("s_lshl_b32 s4, s4, 2"); e("s_add_u32 s43, s4, s6")
    if os.environ.get('MODLIN'): e("s_mov_b32 s43, s2")
    e("s_lshl_b32 s41, s16, 3"); e("s_add_u32 s41, s41, s17")
    e("s_lshl_b32 s3, s20, 10")
    e("s_lshl_b32 s44, s17, 18")
    e("s_lshl_b32 s4, s20, 13")
    e("s_add_u32 s44, s44, s4")
    e("s_lshl_b32 s48, s20, 15")
    e("s_lshl_b32 s4, s16, 8")
    e("s_add_u32 s48, s48, s4")
    e("v_and_b32 v2, 31, v0")
    e("v_lshrrev_b32 v3, 5, v0")
    e("v_lshrrev_b32 v4, 3, v0"); e("v_and_b32 v5, 7, v0"); e("v_lshrrev_b32 v6, 4, v0")
    e("s_lshl_b32 s4, s19, 2"); e("v_or_b32 v7, s4, v6"); e("v_xor_b32 v5, v5, v7")
    e("v_lshlrev_b32 v4, 10, v4")
    e(f"v_lshl_add_u32 v{VA}, v5, 4, v4")
    e("v_bfe_u32 v7, v0, 2, 2"); e("v_xor_b32 v7, v7, v6"); e("v_and_b32 v5, 3, v0")
    e("v_lshlrev_b32 v4, 13, v6")
    e("v_lshl_add_u32 v4, v7, 6, v4")
    e(f"v_lshl_add_u32 v{VB}, v5, 4, v4")
    e(f"v_lshlrev_b32 v{VL16}, 4, v0")
    e("s_waitcnt lgkmcnt(0)")
    stamp()
    wsl, wsh = kaptr('ws')
    srd_off(56, wsl, wsh, WS['mod'], FL0 + 256*128)
    e("s_lshl_b32 s40, s41, 7"); e(f"s_add_u32 s40, s40, 0x{FL0:x}")
    e("v_lshlrev_b32 v4, 7, v9"); e("v_mov_b32 v5, 0")
    e("s_cmp_eq_u32 s2, 0"); e(f"s_cselect_b32 s4, 0, 0x{BIG:x}"); e(f"s_add_u32 s4, s4, 0x{FL0:x}")
    e("buffer_store_dword v5, v4, s[56:59], s4 offen sc1")
    cl_, ch_ = kaptr('ckv'); srd(32, cl_, ch_, 2048*512*2)
    kl, kh = kaptr('wuk'); srd(36, kl, kh, 512*4096*2)
    def pieces(u):
        b = (u % 3) * BUF
        ps = []
        if u < 16:
            pre = ["s_add_u32 s45, s45, 128", "s_and_b32 s45, s45, 1023", "s_add_u32 s49, s44, s45", "s_lshl_b32 s4, s45, 12", "s_add_u32 s51, s48, s4"]
            if u == 8:
                l_, h_ = kaptr('wuv'); pre = ["s_mov_b32 s45, s47"] + pre + [f"s_mov_b32 s36, s{l_}", f"s_mov_b32 s37, s{h_}"]
            for t in range(4):
                ps.append((pre if t == 0 else []) + [f"s_add_u32 m0, s3, {b + t*8192}", f"s_add_u32 s4, s49, {t*65536}",
                           f"buffer_load_dwordx4 v{VA}, s[32:35], s4 offen lds"])
            for t in range(2):
                ps.append([f"s_add_u32 m0, s3, {b + 32768 + t*8192}", f"s_add_u32 s4, s51, {t*262144}",
                           f"buffer_load_dwordx4 v{VB}, s[36:39], s4 offen lds"])
        else:
            c = u - 16
            pre = []
            if c == 0:
                l_, h_ = kaptr('wq'); pre = [f"s_mov_b32 s36, s{l_}", f"s_mov_b32 s37, s{h_}"]
            for t in range(6 if c < 2 else 4):
                ps.append((pre if t == 0 else []) + [f"s_add_u32 m0, s3, {b + t*8192}", f"s_add_u32 s4, s48, {(c*192 + t*32)*8192}",
                           f"buffer_load_dwordx4 v{VB}, s[36:39], s4 offen lds"])
        return [(p, ('st', u)) for p in ps]
    def emit(it):
        if callable(it): it(); return
        if isinstance(it, str): e(it); return
        ins, tag = it[0], it[1]
        for x in ins:
            if x.endswith(":"): lab(x[:-1])
            else: e(x)
        if tag is not None: vm.issue(tag)
    for p in pieces(0):
        emit(p)
        if os.environ.get('KST2'): stamp()
    M0 = HR
    C1, WM_, P, XR, XA, S1_ = M0, M0+2, M0+10, M0+26, M0+30, M0+38
    MA = P
    cl2, ch2 = kaptr('c'); srd(24, cl2, ch2, 1024)
    wl, wh = kaptr('wmod'); srd(28, wl, wh, 512*3072*2)
    xl, xh_ = kaptr('x'); srd(60, xl, xh_, 2048*512*2)
    e("v_lshlrev_b32 v4, 1, v9")
    e(f"buffer_load_ushort v{C1}, v4, s[24:27], 0 offen")
    e("s_mov_b32 s4, 6144")
    e("v_mul_lo_u32 v4, v9, s4")
    e("s_lshl_b32 s4, s43, 5")
    e(f"buffer_load_dwordx4 {vr(WM_,4)}, v4, s[28:31], s4 offen")
    e(f"buffer_load_dwordx4 {vr(WM_+4,4)}, v4, s[28:31], s4 offen offset:16")
    e("v_and_b32 v5, 7, v0")
    e("v_lshrrev_b32 v6, 3, v0")
    e("v_lshlrev_b32 v4, 10, v5")
    e("v_lshl_add_u32 v4, v6, 4, v4")
    e("s_lshl_b32 s4, s41, 13")
    e("s_lshl_b32 s5, s20, 7")
    e("s_add_u32 s4, s4, s5")
    e(f"buffer_load_dwordx4 {vr(XR,4)}, v4, s[60:63], s4 offen")
    vm.issue('modld', 4)
    if os.environ.get('KST2'): stamp()
    for u in (1, 2):
        for p in pieces(u): emit(p)
        if os.environ.get('KST2'): stamp()
    srd_off(8, wsl, wsh, WS['k'], 32*MB)
    srd_off(12, wsl, wsh, WS['ctx'], 16*MB)
    srd_off(52, wsl, wsh, WS['xh'], 2048*512*2)
    dl, dh = kaptr('dbg'); srd(60, dl, dh, 256)
    e("v_bfe_u32 v6, v0, 1, 3")
    e("v_xor_b32 v6, v6, v3")
    e("s_lshl_b32 s4, s18, 13")
    e("v_lshlrev_b32 v7, 7, v2")
    e("v_add_u32 v7, s4, v7")
    for s in range(4):
        e(f"v_xor_b32 v8, {2*s}, v6")
        e(f"v_lshl_add_u32 v{RA+s}, v8, 4, v7")
    e("v_bfe_u32 v6, v0, 2, 2")
    e("v_lshl_add_u32 v8, v3, 3, v6")
    e("v_lshlrev_b32 v8, 8, v8")
    e("v_bfe_u32 v7, v0, 4, 1")
    e("v_lshl_add_u32 v8, v7, 5, v8")
    e("v_and_b32 v7, 1, v0")
    e("v_lshl_add_u32 v8, v7, 4, v8")
    e("v_bfe_u32 v7, v0, 1, 1")
    e("v_lshl_add_u32 v8, v7, 3, v8")
    e("s_lshl_b32 s4, s19, 1")
    for nt in range(2):
        e(f"s_add_u32 s5, s4, {nt}")
        e("v_xor_b32 v7, s5, v6")
        e(f"v_lshl_add_u32 v{RB_+nt}, v7, 6, v8")
    def fa(st, mt): return FR + st*16 + mt*4
    def fb(st, nt): return FR + st*16 + 8 + nt*4
    def reads(s, st):
        for mt in range(2):
            e(f"ds_read_b128 {vr(fa(st,mt),4)}, v{RA+s} offset:{mt*4096}")
        for nt in range(2):
            e(f"ds_read_b64_tr_b16 {vr(fb(st,nt),2)}, v{RB_+nt} offset:{32768 + s*4096}")
            e(f"ds_read_b64_tr_b16 {vr(fb(st,nt)+2,2)}, v{RB_+nt} offset:{32768 + s*4096 + 1024}")
    def wreads(s):
        sl = s % 12
        for db in range(4):
            e(f"ds_read_b64_tr_b16 {vr(FR+(s%2)*16+db*4,2)}, v{RB_+db} offset:{sl*4096}")
            e(f"ds_read_b64_tr_b16 {vr(FR+(s%2)*16+db*4+2,2)}, v{RB_+db} offset:{sl*4096 + 1024}")
    sched = {}
    def add(key, items): sched.setdefault(key, []).extend(items)
    def spread(keys, items):
        n = (len(items) + len(keys) - 1) // len(keys)
        for i, k in enumerate(keys): add(k, items[i*n:(i+1)*n])
    uid = [0]
    VP2 = 24
    def poll_issue(sel, thr, tag, srd_=56, so='s42'):
        return [(sel + [f"v_lshlrev_b32 v4, 7, v4", f"v_mov_b32 v{VP2+1}, 0x{BIG:x}", f"v_cndmask_b32 v{VP2+1}, v{VP2+1}, v4, vcc",
                        f"v_cndmask_b32 v{VP2+2}, 0, {thr}, vcc",
                        f"buffer_load_dword v{VP2}, v{VP2+1}, s[{srd_}:{srd_+3}], {so} offen sc1"], tag)]
    def poll_check(tag, srd_=56, so='s42'):
        uid[0] += 1
        lb = f"{L}_pl{uid[0]}"
        def f():
            e("s_cmp_lg_u32 s20, 0")
            e(f"s_cbranch_scc1 {lb}_b")
            vm.wait(tag)
            e(f"s_mov_b32 s7, {os.environ.get('SPIN', '0x40000')}")
            lab(f"{lb}_a")
            e(f"v_cmp_gt_u32 vcc, v{VP2+2}, v{VP2}")
            e("s_sub_u32 s7, s7, 1")
            e("s_nop 2")
            e(f"s_cbranch_vccz {lb}_b")
            e("s_cmp_eq_u32 s7, 0")
            e(f"s_cbranch_scc1 {lb}_b")
            e(f"s_sleep {os.environ.get('PSLEEP', '2')}")
            e(f"buffer_load_dword v{VP2}, v{VP2+1}, s[{srd_}:{srd_+3}], {so} offen sc1")
            e("s_waitcnt vmcnt(0)")
            e(f"s_branch {lb}_a")
            lab(f"{lb}_b")
        return f
    prebar = {}
    def signal(val):
        return [([f"v_mov_b32 v4, {val}", f"v_mov_b32 v5, 0x{BIG:x}", "v_cmp_eq_u32 vcc, 0, v9", "s_nop 1",
                  "v_cndmask_b32 v5, v5, 0, vcc", "buffer_store_dword v4, v5, s[56:59], s40 offen sc1"], 'sig')]
    it = [lambda: vm.wait('modld')]
    it += [f"v_lshlrev_b32 v{C1}, 16, v{C1}", f"v_mul_f32 v{C1+1}, 0xbfb8aa3b, v{C1}", f"v_exp_f32 v{C1+1}, v{C1+1}"]
    for j in range(8):
        it += [f"v_lshlrev_b32 v{P+2*j}, 16, v{WM_+j}", f"v_and_b32 v{P+2*j+1}, 0xffff0000, v{WM_+j}"]
        if j == 0: it += [f"v_add_f32 v{C1+1}, 1.0, v{C1+1}", f"v_rcp_f32 v{C1+1}, v{C1+1}"]
        if j == 1: it += [f"v_mul_f32 v{C1}, v{C1}, v{C1+1}", f"v_cvt_pk_bf16_f32 v{C1}, v{C1}, v{C1}", f"v_lshlrev_b32 v{C1}, 16, v{C1}"]
    for j in range(16): it.append(f"v_mul_f32 v{P+j}, v{P+j}, v{C1}")
    for dpp in ("row_shr:1", "row_shr:2", "row_shr:4", "row_shr:8", "row_bcast:15 row_mask:0xa", "row_bcast:31 row_mask:0xc"):
        for j in range(16):
            it.append(f"v_add_f32_dpp v{P+j}, v{P+j}, v{P+j} {dpp}" + (" bound_ctrl:0" if "shr" in dpp else ""))
    it.append((["s_lshl_b32 s4, s20, 6", f"s_add_u32 s4, s4, {SCR}", f"v_mov_b32 v4, {SCR + 2048}", "v_mov_b32 v5, s4", "v_cmp_eq_u32 vcc, 63, v0", "s_nop 1",
                "v_cndmask_b32 v4, v4, v5, vcc"] + [f"ds_write_b128 v4, {vr(P+4*j,4)} offset:{16*j}" for j in range(4)], None))
    for i in range(4):
        it += [f"v_lshlrev_b32 v{XA+2*i}, 16, v{XR+i}", f"v_and_b32 v{XA+2*i+1}, 0xffff0000, v{XR+i}"]
    it += [f"v_add_f32 v{S1_}, v{XA}, v{XA+1}", f"v_mul_f32 v{S1_+1}, v{XA}, v{XA}"]
    for i in range(1, 8):
        if i >= 2: it.append(f"v_add_f32 v{S1_}, v{S1_}, v{XA+i}")
        it.append(f"v_fmac_f32 v{S1_+1}, v{XA+i}, v{XA+i}")
    it.append((["s_nop 1", f"v_add_f32_dpp v{S1_}, v{S1_}, v{S1_} row_ror:8", f"v_add_f32_dpp v{S1_+1}, v{S1_+1}, v{S1_+1} row_ror:8", "s_nop 0",
                f"v_mov_b32 v{S1_+2}, v{S1_}", f"v_mov_b32 v{S1_+3}, v{S1_+1}", "s_nop 1",
                f"v_permlane16_swap_b32 v{S1_}, v{S1_+2}", f"v_permlane16_swap_b32 v{S1_+1}, v{S1_+3}", "s_nop 1",
                f"v_add_f32 v{S1_}, v{S1_}, v{S1_+2}", f"v_add_f32 v{S1_+1}, v{S1_+1}, v{S1_+3}",
                f"v_mov_b32 v{S1_+2}, v{S1_}", f"v_mov_b32 v{S1_+3}, v{S1_+1}", "s_nop 1",
                f"v_permlane32_swap_b32 v{S1_}, v{S1_+2}", f"v_permlane32_swap_b32 v{S1_+1}, v{S1_+3}", "s_nop 1",
                f"v_add_f32 v{S1_}, v{S1_}, v{S1_+2}", f"v_add_f32 v{S1_+1}, v{S1_+1}, v{S1_+3}",
                "v_and_b32 v4, 7, v0", "v_lshlrev_b32 v4, 6, v4", f"v_add_u32 v{S1_+4}, {SCR + 1024}, v4",
                "s_lshl_b32 s4, s20, 3", f"v_add_u32 v4, s4, v{S1_+4}", f"ds_write_b64 v4, v[{S1_}:{S1_+1}]"], None))
    spread([(u, s) for u in (1, 2) for s in range(4)][:7], it)
    it = [(["v_and_b32 v4, 15, v0", "v_lshlrev_b32 v4, 2, v4", f"v_add_u32 v5, {SCR}, v4"] +
           [f"ds_read_b32 v{WM_+w}, v5 offset:{w*64}" for w in range(8)] +
           [f"ds_read_b128 {vr(P+4*i,4)}, v{S1_+4} offset:{16*i}" for i in range(4)], None)]
    add((3, 0), it)
    it = []
    for w in range(1, 8): it.append(f"v_add_f32 v{WM_}, v{WM_}, v{WM_+w}")
    it += [f"v_cvt_pk_bf16_f32 v{WM_}, v{WM_}, v{WM_}", f"v_lshlrev_b32 v{WM_}, 16, v{WM_}"]
    it.append(([f"v_mov_b32 v5, 0x{BIG:x}", "v_lshlrev_b32 v4, 2, v9", "v_cmp_gt_u32 vcc, 16, v9", "s_lshl_b32 s4, s43, 6", "s_nop 0", "v_cndmask_b32 v5, v5, v4, vcc",
                f"buffer_store_dword v{WM_}, v5, s[56:59], s4 offen sc1"], 'modst'))
    for i in range(1, 8):
        it += [f"v_add_f32 v{P}, v{P}, v{P+2*i}", f"v_add_f32 v{P+1}, v{P+1}, v{P+2*i+1}"]
    it += [f"v_mul_f32 v{P}, 0x{f2u(1/512):08x}, v{P}", f"v_mul_f32 v{P+1}, 0x{f2u(1/512):08x}, v{P+1}",
           f"v_fma_f32 v{P+1}, -v{P}, v{P}, v{P+1}", f"v_max_f32 v{P+1}, 0, v{P+1}", f"v_add_f32 v{P+1}, 0x{f2u(1e-5):08x}, v{P+1}",
           f"v_rsq_f32 v{P+1}, v{P+1}"]
    for i in range(8): it.append(f"v_sub_f32 v{XA+i}, v{XA+i}, v{P}")
    for i in range(8): it.append(f"v_mul_f32 v{XA+i}, v{XA+i}, v{P+1}")
    spread([(3, 1), (3, 2), (3, 3)], it)
    MS = int(os.environ.get('K_MS', '4'))
    add((MS, 1), [lambda: vm.wait('modst')] + signal(1))
    MP = int(os.environ.get('K_MP', '8'))
    PL = int(os.environ.get('K_PL', '5'))
    def kb(u): return ((u*4 + 3 - PL) // 4, (u*4 + 3 - PL) % 4)
    add(kb(MP), poll_issue(["v_lshrrev_b32 v4, 1, v0", "v_and_b32 v5, 1, v0", "v_lshl_add_u32 v4, v4, 3, v5", "s_mov_b64 vcc, -1"], 1, 'pm'))
    ZS = int(os.environ.get('K_ZS', '3'))
    assert ZS < MS
    add((0, 0), [(["v_mov_b32 v4, 1", f"v_mov_b32 v5, 0x{BIG:x}", "v_cmp_eq_u32 vcc, 0, v9", "s_cmp_eq_u32 s2, 0", f"s_cselect_b32 s4, 0, 0x{BIG:x}",
                   "v_cndmask_b32 v5, v5, 0, vcc", "buffer_store_dword v4, v5, s[60:63], s4 offen sc1"], 'sig')])
    add(kb(ZS), poll_issue(["v_mov_b32 v4, 0", "v_cmp_eq_u32 vcc, 0, v9", "s_nop 0"], 1, 'pz', 60, '0'))
    prebar[ZS] = [poll_check('pz', 60, '0')]
    prebar[MP] = [poll_check('pm')]
    it = [(["v_lshrrev_b32 v4, 3, v0", "v_lshlrev_b32 v4, 5, v4", "s_lshl_b32 s4, s20, 8", "s_add_u32 s5, s4, 2048",
            f"buffer_load_dwordx4 {vr(MA,4)}, v4, s[56:59], s5 offen sc1"], 'ml'),
          ([f"buffer_load_dwordx4 {vr(MA+4,4)}, v4, s[56:59], s5 offen offset:16 sc1"], 'ml'),
          ([f"buffer_load_dwordx4 {vr(MA+8,4)}, v4, s[56:59], s4 offen sc1"], 'ml'),
          ([f"buffer_load_dwordx4 {vr(MA+12,4)}, v4, s[56:59], s4 offen offset:16 sc1"], 'ml')]
    postbar = {MP: [(sum([x[0] for x in it], []), None), lambda: vm.issue('ml', 4)]}
    it = [lambda: vm.wait('ml')]
    for i in range(8): it.append(f"v_add_f32 v{MA+i}, 1.0, v{MA+i}")
    for i in range(4):
        it += [f"v_cvt_pk_bf16_f32 v{MA+2*i}, v{MA+2*i}, v{MA+2*i+1}", f"v_and_b32 v{MA+2*i+1}, 0xffff0000, v{MA+2*i}", f"v_lshlrev_b32 v{MA+2*i}, 16, v{MA+2*i}"]
    for i in range(8): it.append(f"v_fma_f32 v{XA+i}, v{XA+i}, v{MA+i}, v{MA+8+i}")
    for i in range(4): it.append(f"v_cvt_pk_bf16_f32 v{XR+i}, v{XA+2*i}, v{XA+2*i+1}")
    it.append((["v_lshrrev_b32 v4, 4, v0", "v_lshlrev_b32 v4, 10, v4", "v_bfe_u32 v5, v0, 3, 1", "v_lshl_add_u32 v4, v5, 9, v4", "v_and_b32 v5, 7, v0", "v_lshl_add_u32 v4, v5, 4, v4",
                "s_lshr_b32 s4, s41, 2", "s_lshl_b32 s4, s4, 15", "s_and_b32 s5, s41, 3", "s_lshl_b32 s5, s5, 7", "s_add_u32 s4, s4, s5", "s_lshl_b32 s5, s20, 12", "s_add_u32 s4, s4, s5",
                f"buffer_store_dwordx4 {vr(XR,4)}, v4, s[52:55], s4 offen sc1"], 'hst'))
    HD_ = int(os.environ.get('K_HD', '1'))
    spread([(MP+HD_, 2), (MP+HD_, 3)], it)
    endwait = {MP+HD_+1: ['hst']}
    add((MP+HD_+1, 3), signal(2))
    PFS = int(os.environ.get('K_PF', '2'))
    if PFS >= 0:
        it = []
        for k_, nm in enumerate(('wuv', 'wq')):
            l_, h_ = kaptr(nm)
            for t in range(2):
                it.append(([f"s_mov_b32 s24, s{l_}", f"s_mov_b32 s25, s{h_}", f"s_mov_b32 s26, 0x{512*4096*2:x}", "s_lshl_b32 s4, s17, 19", "s_add_u32 s4, s4, s48",
                           f"s_add_u32 s4, s4, {t*262144}", f"buffer_load_dwordx4 {vr(TMP + (k_*2+t)*4, 4)}, v{VB}, s[24:27], s4 offen"], 'pf'))
        add((PFS, 1), it[:2]); add((PFS+1, 1), it[2:])
    def acc(ph, mt, nt): return (ACA if ph == 0 else ACB) + (mt*2 + nt) * 16
    def stores(ph):
        o = []; k = 0
        for mt in range(2):
            for nt in range(2):
                for h in range(2):
                    t = TMP + (k % 4) * 4; k += 1
                    a = acc(ph, mt, nt) + h*8
                    off = (mt*8 + 2*nt + h)*1024 if ph == 0 else 16*MB + ((2*mt + h)*4 + nt)*1024
                    o.append([f"v_cvt_pk_bf16_f32 v{t+j}, v{a+2*j}, v{a+2*j+1}" for j in range(4)] +
                             [([f"s_add_u32 s4, s{22+ph}, 0x{off:x}", f"buffer_store_dwordx4 {vr(t,4)}, v{VL16}, s[8:11], s4 offen {os.environ.get('KVSC', 'sc1')}"], ('kv', ph))])
        return o
    e("s_lshl_b32 s21, s16, 19")
    e("s_lshl_b32 s4, s17, 16")
    e("s_add_u32 s4, s4, s21")
    e("s_lshl_b32 s5, s18, 14")
    e("s_add_u32 s4, s4, s5")
    e("s_lshl_b32 s5, s19, 12")
    e("s_add_u32 s22, s4, s5")
    e("s_lshl_b32 s5, s19, 11")
    e("s_add_u32 s23, s4, s5")
    ks_keys = [(8, 1), (8, 2), (9, 0), (9, 1), (9, 2), (10, 0), (10, 1), (10, 2)]
    for k_, st_ in zip(ks_keys, stores(0)): add(k_, st_)
    endwait.setdefault(12, []).append(('kv', 0))
    assert MP + HD_ + 1 < 12
    add((12, 3), signal(3))
    e("s_sub_u32 s4, 15, s17")
    e("s_cmp_eq_u32 s46, 0")
    e("s_cselect_b32 s30, s4, s17")
    e("s_lshl_b32 s31, s30, 2")
    e("s_add_u32 s31, s31, s50")
    e("s_lshl_b32 s31, s31, 15")
    e("s_cmp_eq_u32 s20, 0")
    e(f"s_cselect_b32 s42, 0, 0x{BIG:x}"); e(f"s_add_u32 s42, s42, 0x{FL0:x}")
    hsel = ["s_lshl_b32 s4, s17, 4", "s_sub_u32 s5, 224, s4", "v_mov_b32 v4, s4", "v_mov_b32 v5, s5", "v_cmp_gt_u32 vcc, 16, v0", "s_nop 1",
            "v_cndmask_b32 v4, v5, v4, vcc", "v_add_u32 v4, v4, v0", "v_cmp_gt_u32 vcc, 32, v0", "s_nop 0"]
    ksel = ["s_lshl_b32 s4, s16, 3", "v_add_u32 v4, s4, v0", "v_cmp_gt_u32 vcc, 8, v0", "s_nop 0"]
    HP = int(os.environ.get('K_HP', '13'))
    assert HP > MP + HD_ + 1
    add(kb(HP), poll_issue(hsel, 2, 'ph'))
    prebar[HP] = [poll_check('ph')]
    HS = os.environ.get('HSC', 'sc1')
    def hload(s):
        return ([f"s_add_u32 s4, s31, {s*1024}", f"buffer_load_dwordx4 {vr(HR + (s % HD)*4, 4)}, v{VL16}, s[52:55], s4 offen {HS}"], ('h', s))
    hk = [(HP, 3)] + [(u, s) for u in range(HP+1, 16) for s in range(4)]
    spread(hk, [hload(s) for s in range(HD)])
    add(('q', 11 - PL), poll_issue(ksel, 3, 'pk'))
    prebar[('q', 11)] = [stamp, poll_check('pk')]
    VPS = int(os.environ.get('K_VPS', '2'))
    for i, st_ in enumerate(stores(1)):
        add(('q', i // VPS), st_)
    for s in range(32 - HD): add(('q', s), [hload(s + HD)])
    VS = int(os.environ.get('K_VS', '11'))
    add(('q', VS), signal(4))
    VC = int(os.environ.get('K_VC', '23'))
    add(('q', VC - PL), poll_issue(ksel, 4, 'pv'))
    prebar[('q', VC)] = [poll_check('pv')]
    e("s_lshl_b32 s21, s50, 12")
    e("s_lshl_b32 s4, s46, 14")
    e("s_add_u32 s21, s21, s4")
    def kdma_l(buf):
        o = [[f"s_add_u32 m0, s49, {LK0 + buf*32768}", "s_nop 0", f"buffer_load_dwordx4 v{VL16}, s[32:35], s24 offen {DMAX} lds"]]
        for i in range(1, 4):
            o.append([f"buffer_load_dwordx4 v{VL16}, s[32:35], s24 offen offset:{i*1024} {DMAX} lds"])
        o[-1] += ["s_add_u32 s24, s24, 32768", "s_cmp_eq_u32 s24, s18", "s_cselect_b32 s24, s21, s24"]
        return o
    def vdma_l(buf):
        o = [[f"s_add_u32 m0, s49, {LV[buf]}", "s_nop 0", f"buffer_load_dwordx4 v{VL16}, s[60:63], s26 offen {DMAX} lds"]]
        for i in range(1, 4):
            o.append([f"buffer_load_dwordx4 v{VL16}, s[60:63], s26 offen offset:{i*1024} {DMAX} lds"])
        o[-1] += ["s_add_u32 s26, s26, 32768", "s_cmp_eq_u32 s26, s18", "s_cselect_b32 s26, s21, s26"]
        return o
    stamp()
    vm.wait(('st', 0))
    e("s_barrier")
    stamp()
    reads(0, 0)
    pend = []
    def slot(key, i, n=4):
        if pend: emit(pend.pop(0))
        fl = sched.get(key, [])
        k = (len(fl) + (n - i) - 1) // (n - i)
        for _ in range(k): emit(fl.pop(0))
    for u in range(16):
        ph = u // 8
        for s in range(4):
            st = s & 1
            ops = [(mt, nt) for mt in range(2) for nt in range(2)]
            def mf(mt, nt):
                c = "0" if (u % 8 == 0 and s == 0) else vr(acc(ph,mt,nt),16)
                a_, b_ = (fb(st,nt), fa(st,mt)) if ph == 0 else (fa(st,mt), fb(st,nt))
                e(f"v_mfma_f32_32x32x16_bf16 {vr(acc(ph,mt,nt),16)}, {vr(a_,4)}, {vr(b_,4)}, {c}")
            if s < 3:
                reads(s+1, st ^ 1)
                e("s_waitcnt lgkmcnt(6)")
                for i, (mt, nt) in enumerate(ops):
                    mf(mt, nt); slot((u, s), i)
            else:
                e("s_waitcnt lgkmcnt(0)")
                mf(*ops[0])
                while pend: emit(pend.pop(0))
                for x in prebar.pop(u, []): x()
                vm.wait([('st', u+1)] + endwait.get(u, []))
                e("s_barrier")
                stamp()
                d = BUF if (u+1) % 3 else -2*BUF
                for x in postbar.pop(u, []): emit(x)
                pend.extend(pieces(u+3))
                if u < 15:
                    for r_ in list(range(RA, RA+4)) + [RB_, RB_+1]:
                        e(f"v_add_u32 v{r_}, 0x{d & 0xffffffff:x}, v{r_}")
                    reads(0, 0)
                else:
                    for db in range(4):
                        e(f"v_xor_b32 v7, {db}, v6")
                        e(f"v_lshl_add_u32 v{RB_+db}, v7, 6, v8")
                        e(f"v_add_u32 v{RB_+db}, {(16 % 3)*BUF}, v{RB_+db}")
                    wreads(0)
                for i, (mt, nt) in enumerate(ops[1:]):
                    mf(mt, nt); slot((u, s), i, 3)
    e("s_lshl_b32 s49, s50, 12")
    e("s_lshl_b32 s4, s46, 14")
    e("s_add_u32 s49, s49, s4")
    e("s_mov_b32 s24, s21")
    e("s_mov_b32 s26, s21")
    e("s_sub_u32 s18, 16, s17"); e("s_lshl_b32 s18, s18, 15"); e("s_add_u32 s18, s18, s21")
    e("s_lshl_b32 s4, s16, 19")
    e("s_add_u32 s32, s8, s4"); e("s_addc_u32 s33, s9, 0"); e(f"s_mov_b32 s34, 0x{512*1024:x}")
    e(f"s_add_u32 s60, s32, 0x{16*MB:x}"); e("s_addc_u32 s61, s33, 0"); e(f"s_mov_b32 s62, 0x{512*1024:x}")
    QA = ACA
    for s in range(32):
        def mf(db):
            c = "0" if s == 0 else vr(QA+db*16,16)
            e(f"v_mfma_f32_32x32x16_bf16 {vr(QA+db*16,16)}, {vr(FR+(s%2)*16+db*4,4)}, {vr(HR+(s%HD)*4,4)}, {c}")
        hl = [x for x in sched.get(('q', s), []) if not callable(x) and not isinstance(x, str) and x[1] and x[1][0] == 'h']
        for x in hl: sched[('q', s)].remove(x)
        if s in (11, 23):
            vm.wait(('h', s), " lgkmcnt(0)")
            mf(0)
            while pend: emit(pend.pop(0))
            for x in prebar.pop(('q', s), []): x()
            vm.wait([('st', 17 if s == 11 else 18)] + ([('kv', 1)] if s == VS else []))
            e("s_barrier")
            stamp()
            pend.extend([(p, ('k', 0 if s == 11 else 1)) for p in kdma_l(0 if s == 11 else 1)])
            if s == VC: pend.extend([(p, ('v', 0)) for p in vdma_l(0)])
            d = BUF if s == 11 else -2*BUF
            for db in range(4): e(f"v_add_u32 v{RB_+db}, 0x{d & 0xffffffff:x}, v{RB_+db}")
            wreads(s+1)
            for db in range(1, 4):
                mf(db)
                slot(('q', s), db - 1, 3)
            for x in hl: emit(x)
        else:
            if s < 31:
                wreads(s+1)
                vm.wait(('h', s), " lgkmcnt(8)")
            else:
                vm.wait(('h', s), " lgkmcnt(0)")
            for db in range(4):
                mf(db)
                if s == VS and db == 0:
                    vm.wait(('kv', 1)); e("s_barrier")
                if s == VC and db == 0:
                    for x in prebar.pop(('q', s)): x()
                    e("s_barrier")
                    pend.extend([(p, ('v', 0)) for p in vdma_l(0)])
                slot(('q', s), db)
            for x in hl: emit(x)
    assert not pend
    for k_, v_ in sched.items(): assert not v_, k_
    assert not prebar and not postbar
    attn_main(L, lg, vm, kdma_l, vdma_l)
    e("s_waitcnt vmcnt(0)")
    stamp(); stamp_out()
    lab(f"{L}_end")
    e("s_endpgm")
    end(name, (256,1,1), (512,1,1), 163840, 256)

def attn_main(L, lg, vm, kdma_l, vdma_l):
    QA = ACA
    def kdma(buf):
        for p in kdma_l(buf):
            for x in p: e(x)
    def vdma(buf):
        for p in vdma_l(buf):
            for x in p: e(x)
    stamp()
    e("s_barrier")
    e("s_lshl_b32 s4, s50, 13")
    e(f"s_add_u32 s5, s4, {STASH}")
    e(f"s_add_u32 s6, s4, {LV1}")
    e("s_cmp_eq_u32 s46, 0")
    e("s_cselect_b32 s7, s6, s5")
    e(f"v_add_u32 v6, s6, v{VL16}")
    e(f"v_add_u32 v{VQ}, s5, v{VL16}")
    e(f"v_add_u32 v5, s7, v{VL16}")
    for u in range(2):
        e(f"s_add_u32 s6, s4, {LK0 + (u^1)*32768}")
        e(f"s_add_u32 s7, s4, 0x{(LV[u] - 16384) & 0xffffffff:x}")
        e("s_cmp_lt_u32 s50, 2")
        e("s_cselect_b32 s6, s6, s7")
        e("s_lshl_b32 s7, s46, 14")
        e("s_add_u32 s6, s6, s7")
        e(f"v_add_u32 v{VMG+u}, s6, v{VL16}")
    csc = (128 ** -0.5) * 1.4426950408889634
    e(f"s_mov_b32 s28, 0x{f2u(csc):08x}")
    e("s_nop 7")
    for i in range(32):
        e(f"v_mul_f32 v{QA+2*i}, s28, v{QA+2*i}")
        e(f"v_mul_f32 v{QA+2*i+1}, s28, v{QA+2*i+1}")
        e(f"v_cvt_pk_bf16_f32 v{Q+i}, v{QA+2*i}, v{QA+2*i+1}")
        if i % 4 == 3:
            e(f"ds_write_b128 v5, {vr(Q+i-3,4)} offset:{(i//4)*1024}")
    e("s_lshl_b32 s7, s46, 14")
    e(f"s_add_u32 s6, s7, {LK0}")
    e(f"v_add_u32 v{AK}, s6, v{VL16}")
    e("s_lshl_b32 s6, s46, 11")
    e("s_add_u32 s5, s7, s6")
    e(f"v_add_u32 v{AV}, s5, v{VL16}")
    e("s_sub_u32 s5, s7, s6")
    e(f"v_add_u32 v{AV+1}, s5, v{VL16}")
    e(f"s_mov_b32 s31, 0x{f2u(8.0):08x}")
    e("s_mov_b32 s52, 0x42c80000")
    e("s_mov_b32 s47, 0")
    e("s_sub_u32 s51, 15, s17")
    e("s_lshl_b32 s25, s20, 10")
    e("s_mov_b32 s19, 2")
    e("s_add_u32 s27, s51, 1")
    e("s_lshl_b32 s22, s51, 7")
    e("s_lshl_b32 s23, s50, 5")
    e("s_add_u32 s22, s22, s23")
    e("v_add_u32 v4, s22, v2")
    e("v_lshlrev_b32 v7, 2, v3")
    e(f"v_sub_u32 v{VREL}, v4, v7")
    e("s_lshl_b32 s22, s17, 7")
    e("s_add_u32 s22, s22, s23")
    e(f"v_add_u32 v{V4N}, s22, v2")
    vm.wait(('k', 1), " lgkmcnt(0)")
    e("s_barrier")
    for i in range(8):
        e(f"ds_read_b128 {vr(Q+4*i,4)}, v6 offset:{i*1024}")
    for i in range(64):
        e(f"v_mov_b32 v{O+i}, 0")
    for i in range(16):
        e(f"v_mov_b32 v{NEGM+i}, 0")
    e(f"v_mov_b32 v{VL}, 0")
    e(f"v_mov_b32 v{VFL}, 0xf149f2ca")
    e("s_lshl_b32 s29, s46, 6")
    e("s_sub_u32 s30, s27, 1")
    e("s_mov_b32 s43, 0")
    SB = [S0, S1]
    def kitem(buf, q):
        g = q // 4; ds = (g % 2) * 4 + q % 4
        e(f"ds_read_b128 {vr(KF+(q%8)*4,4)}, v{AK} offset:{buf*32768 + ((g//2)*8 + ds)*1024}")
        return lg.issue(1)
    def vitem(buf, p):
        t = p // 4; db = p % 4
        e(f"ds_read_b128 {vr(KF+(p%8)*4,4)}, v{AV + db//2} offset:{LV[buf] + (t*4 + db)*1024}")
        return lg.issue(1)
    def qk_mfma(S, q):
        g = q // 4; ds = (g % 2) * 4 + q % 4; kb = g // 2
        c = vr(NEGM,16) if ds == 0 else vr(S+kb*16,16)
        return f"v_mfma_f32_32x32x16_bf16 {vr(S+kb*16,16)}, {vr(KF+(q%8)*4,4)}, {vr(Q+4*ds,4)}, {c}"
    def pv_mfma(S, p):
        t = p // 4; db = p % 4
        return f"v_mfma_f32_32x32x16_bf16 {vr(O+db*16,16)}, {vr(KF+(p%8)*4,4)}, {vr(S+8*t,4)}, {vr(O+db*16,16)}"
    uid = [0]
    def mask_max(S):
        uid[0] += 1
        lb = f"{L}_nm{uid[0]}"
        o = []
        o.append(("blk", [
            "s_cmp_lt_u32 s43, s30",
            f"s_cbranch_scc1 {lb}",
            f"v_subrev_u32 v{T}, s29, v{VREL}",
            f"v_mov_b32 v{T+1}, 0xff800000"] +
            sum([[f"v_cmp_gt_i32 vcc, {kb*32 + (i//4)*8 + i%4}, v{T}", "s_nop 1",
                  f"v_cndmask_b32 v{S+kb*16+i}, v{S+kb*16+i}, v{T+1}, vcc"] for kb in range(2) for i in range(16)], []) +
            [f"{lb}:", "s_add_u32 s29, s29, 128", "s_add_u32 s43, s43, 1"]))
        o.append(f"v_max3_f32 v{T}, v{S}, v{S+1}, v{S+2}")
        o.append(f"v_max3_f32 v{T+1}, v{S+3}, v{S+4}, v{S+5}")
        for i in range(6, 30, 4):
            o.append(f"v_max3_f32 v{T}, v{T}, v{S+i}, v{S+i+1}")
            o.append(f"v_max3_f32 v{T+1}, v{T+1}, v{S+i+2}, v{S+i+3}")
        o.append(f"v_max3_f32 v{T}, v{T}, v{S+30}, v{S+31}")
        o.append(f"v_max_f32 v{T}, v{T}, v{T+1}")
        o.append(f"v_mov_b32 v{T+1}, v{T}")
        o.append("PAD")
        o.append("PAD")
        o.append(f"v_permlane32_swap_b32 v{T}, v{T+1}")
        o.append("PAD")
        o.append("PAD")
        o.append(f"v_max_f32 v{T}, v{T}, v{T+1}")
        o.append(f"v_cmp_lt_f32 s[40:41], s31, v{T}")
        return o
    def slowpath(S):
        uid[0] += 1
        lb = f"{L}_sp{uid[0]}"
        e("s_cmp_eq_u64 s[40:41], 0")
        e(f"s_cbranch_scc1 {lb}")
        e("s_nop 15")
        e(f"v_max_f32 v{T}, v{T}, v{VFL}")
        e(f"v_min_f32 v{T+1}, s52, -v{T}")
        e(f"v_exp_f32 v{T+1}, v{T+1}")
        e(f"v_mov_b32 v{VFL}, 0")
        e(f"v_mul_f32 v{VL}, v{VL}, v{T+1}")
        for i in range(64):
            e(f"v_mul_f32 v{O+i}, v{O+i}, v{T+1}")
        for i in range(32):
            e(f"v_sub_f32 v{S+i}, v{S+i}, v{T}")
        for i in range(16):
            e(f"v_sub_f32 v{NEGM+i}, v{NEGM+i}, v{T}")
        e("s_nop 1")
        lab(lb)
    def exps(S):
        o = []
        for t in range(4):
            b = S + t*8
            o.append(f"v_exp_f32 v{b}, v{b}")
            for i in range(1, 8):
                o.append(f"v_exp_f32 v{b+i}, v{b+i}")
                o.append(f"v_add_f32 v{VL}, v{VL}, v{b+i-1}")
                if i % 2 == 0:
                    o.append(f"v_cvt_pk_bf16_f32 v{b+(i-2)//2}, v{b+i-2}, v{b+i-1}")
            o.append("PAD")
            o.append(f"v_add_f32 v{VL}, v{VL}, v{b+7}")
            o.append(f"v_cvt_pk_bf16_f32 v{b+3}, v{b+6}, v{b+7}")
        return o
    def emit(x):
        if isinstance(x, tuple):
            for s_ in x[1]:
                if s_.endswith(":"): lab(s_[:-1])
                else: e(s_)
        elif x == "PAD": e("s_nop 0")
        else: e(x)
    def popf(lst, n):
        k = 0
        first = True
        while lst and k < n:
            x = lst.pop(0)
            if x == "PAD" and first:
                first = False
                continue
            first = False
            emit(x); k += 1
    def need(lst, t, S):
        for x in lst:
            if isinstance(x, str) and x.startswith("v_cvt_pk") and f"v{S+8*t+3}," in x: return True
        return False
    lg.issue(8)
    tk = [kitem(0, q) for q in range(8)]
    for q in range(16):
        lg.wait(tk[q])
        e(qk_mfma(S0, q))
        if q < 8: tk.append(kitem(0, q+8))
    e("s_waitcnt vmcnt(0)")
    e("s_barrier")
    kdma(0)
    vdma(1)
    tk = [kitem(1, q) for q in range(8)]
    for x in mask_max(S0): emit(x)
    e("s_mov_b64 s[40:41], -1")
    e("s_mov_b32 s42, s27")
    if ST:
        stamp()
    VNO, MLT = 240, 242
    def loop_body(u, last):
        cur, nxt = SB[u], SB[u ^ 1]
        tk = [lg.n - 7 + i for i in range(8)]
        fill = exps(cur)
        mm = mask_max(nxt)
        slowpath(cur)
        if last:
            e(f"v_mov_b32 v{VNO}, v{NEGM}")
            e("s_cmp_lg_u32 s47, 0")
            e(f"s_cbranch_scc1 {L}_nsw{u}")
            for i in range(16): e(f"v_mov_b32 v{NEGM+i}, 0")
            e("v_lshlrev_b32 v7, 2, v3")
            e(f"v_sub_u32 v{VREL}, v{V4N}, v7")
            e("s_lshl_b32 s29, s46, 6")
            e("s_mov_b32 s30, s17")
            e("s_mov_b32 s43, 0")
            lab(f"{L}_nsw{u}")
        for q in range(16):
            lg.wait(tk[q])
            e(qk_mfma(nxt, q))
            if q < 8: tk.append(kitem(u ^ 1, q+8))
            else: tk.append(vitem(u, q-8))
            popf(fill, 3)
        tk = tk[16:]
        dm = []
        for p in range(16):
            if p % 4 == 0:
                while len(fill) > 0 and need(fill, p // 4, cur): emit(fill.pop(0))
                if any("v_cvt_pk" in y for y in out[-2:]): e("s_nop 1")
            lg.wait(tk[p])
            e(pv_mfma(cur, p))
            if p < 8: tk.append(vitem(u, p+8))
            elif p == 9:
                e(f"s_waitcnt vmcnt(0) lgkmcnt(0)")
                e("s_barrier")
                tk.append(kitem(u, 0)); tk.append(kitem(u, 1))
                if not last: dm = kdma_l(u ^ 1) + vdma_l(u)
            elif p > 9:
                tk.append(kitem(u, p-8))
                if not last:
                    for _ in range(2 if p < 12 else 1):
                        for x in dm.pop(0): e(x)
            if p == 8 and not last:
                e("s_cmp_lg_u32 s42, s19")
                e(f"s_cbranch_scc1 {L}_nq{u}")
                for i in range(8):
                    e(f"ds_read_b128 {vr(Q+4*i,4)}, v{VQ} offset:{i*1024}")
                lab(f"{L}_nq{u}")
            if fill: popf(fill, 3)
            if p >= 2 and (not fill or p >= 8): popf(mm, 3 if p < 9 else 2)
        while fill: emit(fill.pop(0))
        while mm: emit(mm.pop(0))
    def merge(u):
        cur = SB[u]
        if ST:
            e("s_waitcnt lgkmcnt(0)"); stamp(True)
        e("s_lshl_b32 s4, s46, 14")
        e("s_lshl_b32 s5, s50, 9")
        e("s_add_u32 s4, s4, s5")
        e(f"s_add_u32 s4, s4, {STASH}")
        e("v_lshlrev_b32 v5, 3, v0")
        e("v_add_u32 v5, s4, v5")
        e(f"v_mov_b32 v{VNO+1}, v{VL}")
        e(f"v_xor_b32 v6, 0x4000, v{VMG+u}")
        e(f"ds_write_b64 v5, v[{VNO}:{VNO+1}]")
        e("v_xor_b32 v5, 0x4000, v5")
        e("s_nop 15")
        for i in range(8):
            e(f"ds_write_b128 v{VMG+u}, {vr(O+32+4*i,4)} offset:{i*1024}")
        e("s_waitcnt lgkmcnt(0)")
        e("s_barrier")
        e(f"ds_read_b64 v[{MLT}:{MLT+1}], v5")
        for i in range(8):
            e(f"ds_read_b128 {vr(cur+4*i,4)}, v6 offset:{i*1024}")
        for i in range(32): e(f"v_mov_b32 v{O+32+i}, 0")
        A0, A1, T0, T1 = MLT + 2, MLT + 3, MLT + 4, MLT + 5
        e("s_waitcnt lgkmcnt(8)")
        e(f"v_min_f32 v{T0}, v{VNO}, v{MLT}")
        e(f"v_sub_f32 v{A0}, v{T0}, v{VNO}")
        e(f"v_sub_f32 v{A1}, v{T0}, v{MLT}")
        e(f"v_exp_f32 v{A0}, v{A0}")
        e(f"v_exp_f32 v{A1}, v{A1}")
        e("s_nop 0")
        e(f"v_mul_f32 v{T0}, v{VL}, v{A0}")
        e(f"v_fmac_f32 v{T0}, v{MLT+1}, v{A1}")
        e(f"v_mov_b32 v{T1}, v{T0}")
        e("s_nop 1")
        e(f"v_permlane32_swap_b32 v{T0}, v{T1}")
        e("s_nop 1")
        e(f"v_add_f32 v{T0}, v{T0}, v{T1}")
        e(f"v_rcp_f32 v{T0}, v{T0}")
        e("v_lshlrev_b32 v5, 13, v4")
        e("v_lshl_add_u32 v5, v3, 4, v5")
        e(f"v_mul_f32 v{A0}, v{A0}, v{T0}")
        e(f"v_mul_f32 v{A1}, v{A1}, v{T0}")
        e("s_lshl_b32 s23, s16, 8")
        e("s_lshl_b32 s4, s46, 7")
        e("s_add_u32 s23, s23, s4")
        e("s_waitcnt lgkmcnt(0)")
        e("s_cmp_lg_u32 s47, 0")
        e(f"s_cbranch_scc1 {L}_m2{u}")
        e("s_barrier")
        kdma(u ^ 1); vdma(u)
        lab(f"{L}_m2{u}")
        for db in range(2):
            for h in range(2):
                a = O + db*16 + h*8
                b = cur + db*16 + h*8
                for j in range(8):
                    e(f"v_mul_f32 v{a+j}, v{a+j}, v{A0}")
                    e(f"v_fmac_f32 v{a+j}, v{b+j}, v{A1}")
                for j in range(4):
                    e(f"v_cvt_pk_bf16_f32 v{b+j}, v{a+2*j}, v{a+2*j+1}")
                e(f"buffer_store_dwordx4 {vr(b,4)}, v5, s[12:15], s23 offen offset:{(db*32+h*16)*2}")
        e("s_cmp_lg_u32 s47, 0")
        e(f"s_cbranch_scc1 {L}_done")
        for i in range(32): e(f"v_mov_b32 v{O+i}, 0")
        e(f"v_mov_b32 v{VL}, 0")
        e(f"v_mov_b32 v{VFL}, 0xf149f2ca")
        e(f"v_mov_b32 v4, v{V4N}")
        e("s_mov_b64 s[40:41], -1")
        e("s_mov_b32 s47, 1")
        e("s_mov_b32 s19, 0")
        e("s_add_u32 s42, s17, 1")
        if os.environ.get('PFQ', '1') != '0':
            e("s_lshl_b32 s4, s2, 3")
            e("s_add_u32 s4, s4, s20")
            e("s_lshl_b32 s4, s4, 10")
            e(f"v_add_u32 v5, s4, v{VL16}")
            e(f"s_add_u32 m0, s25, {STASH + 4096}")
            RND = 2*MB
            for (nm, nb) in (('wo', 4096*512*2), ('win', 512*1376*2), ('wsp', 2048*2048*2), ('wout', 688*512*2)):
                pl, ph = kaptr(nm)
                srd(36, pl, ph, nb)
                for r_ in range((nb + RND - 1) // RND):
                    e(f"s_mov_b32 s4, 0x{r_*RND:x}")
                    e(f"buffer_load_dwordx4 v5, s[36:39], s4 offen lds")
        if ST: stamp()
        e("s_cmp_eq_u32 s42, 1")
        e(f"s_cbranch_scc1 {L}_l{u^1}")
        e(f"s_branch {L}_n{u^1}")
    for u in range(2):
        lab(f"{L}_n{u}")
        loop_body(u, False)
        e("s_sub_u32 s42, s42, 1")
        e("s_cmp_eq_u32 s42, 1")
        e(f"s_cbranch_scc1 {L}_l{u^1}")
        if u == 1: e(f"s_branch {L}_n0")
    sv = stc[0]
    for u in range(2):
        lab(f"{L}_l{u}")
        stc[0] = sv
        loop_body(u, True)
        merge(u)
    stc[0] = sv + 3
    lab(f"{L}_done")
```

```python
from v2_common import *
from v2_attn import LG
import os

class VM:
    def __init__(self): self.ops = []
    def issue(self, tag, k=1, cond=False): self.ops += [(tag, cond)] * k
    def after(self, tag):
        idx = max(i for i, t in enumerate(self.ops) if t[0] == tag)
        return sum(1 for t in self.ops[idx+1:] if not t[1])
    def wait(self, tag, extra=""):
        if isinstance(tag, list): n = min(self.after(t) for t in tag)
        else: n = self.after(tag)
        e(f"s_waitcnt vmcnt({min(n, 63)}){extra}")

ST = os.environ.get('KST')
VSTR = [27]
stc = [0]
def stamp(ph=False):
    if not ST: return
    i = stc[0]; stc[0] += 1
    if ph == 2: stc[0] += 2
    e("s_memrealtime s[96:97]"); e("s_waitcnt lgkmcnt(0)")
    if ph:
        e("s_lshl_b32 s97, s47, 1"); e(f"s_add_u32 s97, s97, {i}")
        e("s_mov_b32 s98, m0"); e("s_mov_b32 m0, s97"); e("s_nop 0")
        e(f"v_writelane_b32 v{VSTR[0]}, s96, m0"); e("s_mov_b32 m0, s98")
    else:
        e(f"v_writelane_b32 v{VSTR[0]}, s96, {i}")
def stamp_out():
    if not ST: return
    dl, dh = kaptr('ws')
    srd_off(96, dl, dh, 200*MB, 1 << 20)
    e("s_lshl_b32 s4, s2, 11"); e("s_lshl_b32 s5, s20, 8"); e("s_add_u32 s4, s4, s5")
    e("v_lshlrev_b32 v1, 2, v0")
    e(f"buffer_store_dword v{VSTR[0]}, v1, s[96:99], s4 offen")

VA, VB, VL16 = 10, 11, 12
VL, VREL = 14, 15
AV, AK, T = 16, 20, 29
VFL, NEGM = 28, 64
Q, KF, O, S0, S1 = 32, 80, 112, 176, 208
VQ, VMG, V4N = 252, 253, 13
ACA, ACB, FR, TMP, HR = 32, 96, 160, 192, 208
HD = 12
RA, RB_ = 16, 20
BUF = 49152
SCR = 147456
LV0, LV1, LK0, LK1, STASH = 32768, 0, 65536, 98304, 131072
LV = [LV0, LV1]
BIG = 0x7f000000
FL0 = 65536
MBX = 131072
DMAX = os.environ.get('DMAX', 'sc1')

def gen_kva():
    name = "kva_kernel"
    L = "L_kva"
    lg = LG(); vm = VM()
    begin(name)
    e("s_cmp_ge_u32 s2, 256")
    e(f"s_cbranch_scc1 {L}_end")
    load_kargs()
    e("v_mov_b32 v9, v0")
    e("v_lshrrev_b32 v1, 6, v0")
    e("v_and_b32 v0, 63, v0")
    e("s_nop 0")
    e("v_readfirstlane_b32 s20, v1")
    e("s_and_b32 s4, s2, 7")
    e("s_lshr_b32 s5, s2, 3")
    e("s_and_b32 s6, s5, 3")
    e("s_lshl_b32 s4, s4, 2")
    e("s_add_u32 s16, s6, s4")
    e("s_lshr_b32 s17, s5, 2")
    e("s_lshr_b32 s46, s20, 2")
    e("s_and_b32 s50, s20, 3")
    e("s_lshr_b32 s18, s20, 1")
    e("s_and_b32 s19, s20, 1")
    RA_ = [int(x) for x in os.environ.get('KROT', '0,0,2,1').split(',')]
    def rot(dst, a, b):
        o = [f"s_mul_i32 s{dst}, s6, {a}", f"s_mul_i32 s4, s17, {b}", f"s_add_u32 s{dst}, s{dst}, s4", f"s_and_b32 s{dst}, s{dst}, 7",
             f"s_lshl_b32 s{dst}, s{dst}, 7", f"s_sub_u32 s{dst}, s{dst}, 128"]
        for x in o: e(x)
    rot(45, RA_[0], RA_[1]); rot(47, RA_[2], RA_[3])
    e("s_lshr_b32 s4, s2, 5"); e("s_lshl_b32 s4, s4, 3"); e("s_and_b32 s5, s2, 7"); e("s_add_u32 s4, s4, s5")
    e("s_lshl_b32 s4, s4, 2"); e("s_add_u32 s43, s4, s6")
    if os.environ.get('MODLIN'): e("s_mov_b32 s43, s2")
    e("s_lshl_b32 s41, s16, 3"); e("s_add_u32 s41, s41, s17")
    e("s_lshl_b32 s3, s20, 10")
    e("s_lshl_b32 s44, s17, 18")
    e("s_lshl_b32 s4, s20, 13")
    e("s_add_u32 s44, s44, s4")
    e("s_lshl_b32 s48, s20, 15")
    e("s_lshl_b32 s4, s16, 8")
    e("s_add_u32 s48, s48, s4")
    e("v_and_b32 v2, 31, v0")
    e("v_lshrrev_b32 v3, 5, v0")
    e("v_lshrrev_b32 v4, 3, v0"); e("v_and_b32 v5, 7, v0"); e("v_lshrrev_b32 v6, 4, v0")
    e("s_lshl_b32 s4, s19, 2"); e("v_or_b32 v7, s4, v6"); e("v_xor_b32 v5, v5, v7")
    e("v_lshlrev_b32 v4, 10, v4")
    e(f"v_lshl_add_u32 v{VA}, v5, 4, v4")
    e("v_bfe_u32 v7, v0, 2, 2"); e("v_xor_b32 v7, v7, v6"); e("v_and_b32 v5, 3, v0")
    e("v_lshlrev_b32 v4, 13, v6")
    e("v_lshl_add_u32 v4, v7, 6, v4")
    e(f"v_lshl_add_u32 v{VB}, v5, 4, v4")
    e(f"v_lshlrev_b32 v{VL16}, 4, v0")
    e("s_waitcnt lgkmcnt(0)")
    stamp()
    wsl, wsh = kaptr('ws')
    srd_off(56, wsl, wsh, WS['mod'], MBX + 256*2048)
    e("s_lshl_b32 s40, s41, 7"); e(f"s_add_u32 s40, s40, 0x{FL0:x}")
    e("v_lshlrev_b32 v4, 7, v9"); e("v_mov_b32 v5, 0")
    e("s_cmp_eq_u32 s2, 0"); e(f"s_cselect_b32 s4, 0, 0x{BIG:x}"); e(f"s_add_u32 s4, s4, 0x{FL0:x}")
    e("buffer_store_dword v5, v4, s[56:59], s4 offen sc1")
    cl_, ch_ = kaptr('ckv'); srd(32, cl_, ch_, 2048*512*2)
    kl, kh = kaptr('wuk'); srd(36, kl, kh, 512*4096*2)
    def pieces(u):
        b = (u % 3) * BUF
        ps = []
        if u < 16:
            pre = ["s_add_u32 s45, s45, 128", "s_and_b32 s45, s45, 1023", "s_add_u32 s49, s44, s45", "s_lshl_b32 s4, s45, 12", "s_add_u32 s51, s48, s4"]
            if u == 8:
                l_, h_ = kaptr('wuv'); pre = ["s_mov_b32 s45, s47"] + pre + [f"s_mov_b32 s36, s{l_}", f"s_mov_b32 s37, s{h_}"]
            for t in range(4):
                ps.append((pre if t == 0 else []) + [f"s_add_u32 m0, s3, {b + t*8192}", f"s_add_u32 s4, s49, {t*65536}",
                           f"buffer_load_dwordx4 v{VA}, s[32:35], s4 offen lds"])
            for t in range(2):
                ps.append([f"s_add_u32 m0, s3, {b + 32768 + t*8192}", f"s_add_u32 s4, s51, {t*262144}",
                           f"buffer_load_dwordx4 v{VB}, s[36:39], s4 offen lds"])
        else:
            c = u - 16
            pre = []
            if c == 0:
                l_, h_ = kaptr('wq'); pre = [f"s_mov_b32 s36, s{l_}", f"s_mov_b32 s37, s{h_}"]
            for t in range(6 if c < 2 else 4):
                ps.append((pre if t == 0 else []) + [f"s_add_u32 m0, s3, {b + t*8192}", f"s_add_u32 s4, s48, {(c*192 + t*32)*8192}",
                           f"buffer_load_dwordx4 v{VB}, s[36:39], s4 offen lds"])
        return [(p, ('st', u)) for p in ps]
    def emit(it):
        if callable(it): it(); return
        if isinstance(it, str): e(it); return
        ins, tag = it[0], it[1]
        for x in ins:
            if x.endswith(":"): lab(x[:-1])
            else: e(x)
        if tag is not None: vm.issue(tag, it[2] if len(it) > 2 else 1)
    for p in pieces(0):
        emit(p)
        if os.environ.get('KST2'): stamp()
    M0 = HR
    C1, WM_, P, XR, XA, S1_ = M0, M0+2, M0+10, M0+26, M0+30, M0+38
    MA = P
    cl2, ch2 = kaptr('c'); srd(24, cl2, ch2, 1024)
    wl, wh = kaptr('wmod'); srd(28, wl, wh, 512*3072*2)
    xl, xh_ = kaptr('x'); srd(60, xl, xh_, 2048*512*2)
    e("v_lshlrev_b32 v4, 1, v9")
    e(f"buffer_load_ushort v{C1}, v4, s[24:27], 0 offen")
    e("s_mov_b32 s4, 6144")
    e("v_mul_lo_u32 v4, v9, s4")
    e("s_lshl_b32 s4, s43, 5")
    e(f"buffer_load_dwordx4 {vr(WM_,4)}, v4, s[28:31], s4 offen")
    e(f"buffer_load_dwordx4 {vr(WM_+4,4)}, v4, s[28:31], s4 offen offset:16")
    e("v_and_b32 v5, 7, v0")
    e("v_lshrrev_b32 v6, 3, v0")
    e("v_lshlrev_b32 v4, 10, v5")
    e("v_lshl_add_u32 v4, v6, 4, v4")
    e("s_lshl_b32 s4, s41, 13")
    e("s_lshl_b32 s5, s20, 7")
    e("s_add_u32 s4, s4, s5")
    e(f"buffer_load_dwordx4 {vr(XR,4)}, v4, s[60:63], s4 offen")
    vm.issue('modld', 4)
    e("s_and_b32 s4, s2, 7"); e("s_lshl_b32 s4, s4, 5"); e("s_lshr_b32 s5, s2, 3"); e("s_add_u32 s4, s4, s5")
    e("s_lshl_b32 s4, s4, 11"); e(f"s_add_u32 s4, s4, 0x{MBX:x}")
    e("v_lshlrev_b32 v4, 4, v9"); e(f"v_mov_b32 v8, 0x{BIG:x}"); e("v_cmp_gt_u32 vcc, 128, v9")
    e("v_mov_b32 v6, 0"); e("v_mov_b32 v7, 0"); e("v_cndmask_b32 v8, v8, v4, vcc"); e("v_mov_b32 v4, 0"); e("v_mov_b32 v5, 0")
    e("buffer_store_dwordx4 v[4:7], v8, s[56:59], s4 offen sc1")
    vm.issue('mbz')
    if os.environ.get('KST2'): stamp()
    for u in (1, 2):
        for p in pieces(u): emit(p)
        if os.environ.get('KST2'): stamp()
    srd_off(8, wsl, wsh, WS['k'], 108*MB)
    srd_off(12, wsl, wsh, WS['ctx'], 16*MB)
    srd_off(52, wsl, wsh, WS['xh'], 2048*512*2)
    dl, dh = kaptr('dbg'); srd(60, dl, dh, 256)
    e("v_bfe_u32 v6, v0, 1, 3")
    e("v_xor_b32 v6, v6, v3")
    e("s_lshl_b32 s4, s18, 13")
    e("v_lshlrev_b32 v7, 7, v2")
    e("v_add_u32 v7, s4, v7")
    for s in range(4):
        e(f"v_xor_b32 v8, {2*s}, v6")
        e(f"v_lshl_add_u32 v{RA+s}, v8, 4, v7")
    e("v_bfe_u32 v6, v0, 2, 2")
    e("v_lshl_add_u32 v8, v3, 3, v6")
    e("v_lshlrev_b32 v8, 8, v8")
    e("v_bfe_u32 v7, v0, 4, 1")
    e("v_lshl_add_u32 v8, v7, 5, v8")
    e("v_and_b32 v7, 1, v0")
    e("v_lshl_add_u32 v8, v7, 4, v8")
    e("v_bfe_u32 v7, v0, 1, 1")
    e("v_lshl_add_u32 v8, v7, 3, v8")
    e("s_lshl_b32 s4, s19, 1")
    for nt in range(2):
        e(f"s_add_u32 s5, s4, {nt}")
        e("v_xor_b32 v7, s5, v6")
        e(f"v_lshl_add_u32 v{RB_+nt}, v7, 6, v8")
    def fa(st, mt): return FR + st*16 + mt*4
    def fb(st, nt): return FR + st*16 + 8 + nt*4
    def reads(s, st):
        for mt in range(2):
            e(f"ds_read_b128 {vr(fa(st,mt),4)}, v{RA+s} offset:{mt*4096}")
        for nt in range(2):
            e(f"ds_read_b64_tr_b16 {vr(fb(st,nt),2)}, v{RB_+nt} offset:{32768 + s*4096}")
            e(f"ds_read_b64_tr_b16 {vr(fb(st,nt)+2,2)}, v{RB_+nt} offset:{32768 + s*4096 + 1024}")
    def wreads(s):
        sl = s % 12
        for db in range(4):
            e(f"ds_read_b64_tr_b16 {vr(FR+(s%2)*16+db*4,2)}, v{RB_+db} offset:{sl*4096}")
            e(f"ds_read_b64_tr_b16 {vr(FR+(s%2)*16+db*4+2,2)}, v{RB_+db} offset:{sl*4096 + 1024}")
    sched = {}
    def add(key, items): sched.setdefault(key, []).extend(items)
    def spread(keys, items):
        n = (len(items) + len(keys) - 1) // len(keys)
        for i, k in enumerate(keys): add(k, items[i*n:(i+1)*n])
    uid = [0]
    VP2 = 24
    def poll_issue(sel, thr, tag, srd_=56, so='s42'):
        return [(sel + [f"v_lshlrev_b32 v4, 7, v4", f"v_mov_b32 v{VP2+1}, 0x{BIG:x}", f"v_cndmask_b32 v{VP2+1}, v{VP2+1}, v4, vcc",
                        f"v_cndmask_b32 v{VP2+2}, 0, {thr}, vcc",
                        f"buffer_load_dword v{VP2}, v{VP2+1}, s[{srd_}:{srd_+3}], {so} offen sc1"], tag)]
    def poll_check(tag, srd_=56, so='s42'):
        uid[0] += 1
        lb = f"{L}_pl{uid[0]}"
        def f():
            e("s_cmp_lg_u32 s20, 0")
            e(f"s_cbranch_scc1 {lb}_b")
            vm.wait(tag)
            e(f"s_mov_b32 s7, {os.environ.get('SPIN', '0x40000')}")
            lab(f"{lb}_a")
            e(f"v_cmp_gt_u32 vcc, v{VP2+2}, v{VP2}")
            e("s_sub_u32 s7, s7, 1")
            e("s_nop 2")
            e(f"s_cbranch_vccz {lb}_b")
            e("s_cmp_eq_u32 s7, 0")
            e(f"s_cbranch_scc1 {lb}_b")
            e(f"s_sleep {os.environ.get('PSLEEP', '2')}")
            e(f"buffer_load_dword v{VP2}, v{VP2+1}, s[{srd_}:{srd_+3}], {so} offen sc1")
            e("s_waitcnt vmcnt(0)")
            e(f"s_branch {lb}_a")
            lab(f"{lb}_b")
        return f
    prebar = {}
    def signal(val):
        return [([f"v_mov_b32 v4, {val}", f"v_mov_b32 v5, 0x{BIG:x}", "v_cmp_eq_u32 vcc, 0, v9", "s_nop 1",
                  "v_cndmask_b32 v5, v5, 0, vcc", "buffer_store_dword v4, v5, s[56:59], s40 offen sc1"], 'sig')]
    it = [lambda: vm.wait('modld')]
    it += [f"v_lshlrev_b32 v{C1}, 16, v{C1}", f"v_mul_f32 v{C1+1}, 0xbfb8aa3b, v{C1}", f"v_exp_f32 v{C1+1}, v{C1+1}"]
    for j in range(8):
        it += [f"v_lshlrev_b32 v{P+2*j}, 16, v{WM_+j}", f"v_and_b32 v{P+2*j+1}, 0xffff0000, v{WM_+j}"]
        if j == 0: it += [f"v_add_f32 v{C1+1}, 1.0, v{C1+1}", f"v_rcp_f32 v{C1+1}, v{C1+1}"]
        if j == 1: it += [f"v_mul_f32 v{C1}, v{C1}, v{C1+1}", f"v_cvt_pk_bf16_f32 v{C1}, v{C1}, v{C1}", f"v_lshlrev_b32 v{C1}, 16, v{C1}"]
    for j in range(16): it.append(f"v_mul_f32 v{P+j}, v{P+j}, v{C1}")
    for dpp in ("row_shr:1", "row_shr:2", "row_shr:4", "row_shr:8", "row_bcast:15 row_mask:0xa", "row_bcast:31 row_mask:0xc"):
        for j in range(16):
            it.append(f"v_add_f32_dpp v{P+j}, v{P+j}, v{P+j} {dpp}" + (" bound_ctrl:0" if "shr" in dpp else ""))
    it.append((["s_lshl_b32 s4, s20, 6", f"s_add_u32 s4, s4, {SCR}", f"v_mov_b32 v4, {SCR + 2048}", "v_mov_b32 v5, s4", "v_cmp_eq_u32 vcc, 63, v0", "s_nop 1",
                "v_cndmask_b32 v4, v4, v5, vcc"] + [f"ds_write_b128 v4, {vr(P+4*j,4)} offset:{16*j}" for j in range(4)], None))
    for i in range(4):
        it += [f"v_lshlrev_b32 v{XA+2*i}, 16, v{XR+i}", f"v_and_b32 v{XA+2*i+1}, 0xffff0000, v{XR+i}"]
    it += [f"v_add_f32 v{S1_}, v{XA}, v{XA+1}", f"v_mul_f32 v{S1_+1}, v{XA}, v{XA}"]
    for i in range(1, 8):
        if i >= 2: it.append(f"v_add_f32 v{S1_}, v{S1_}, v{XA+i}")
        it.append(f"v_fmac_f32 v{S1_+1}, v{XA+i}, v{XA+i}")
    it.append((["s_nop 1", f"v_add_f32_dpp v{S1_}, v{S1_}, v{S1_} row_ror:8", f"v_add_f32_dpp v{S1_+1}, v{S1_+1}, v{S1_+1} row_ror:8", "s_nop 0",
                f"v_mov_b32 v{S1_+2}, v{S1_}", f"v_mov_b32 v{S1_+3}, v{S1_+1}", "s_nop 1",
                f"v_permlane16_swap_b32 v{S1_}, v{S1_+2}", f"v_permlane16_swap_b32 v{S1_+1}, v{S1_+3}", "s_nop 1",
                f"v_add_f32 v{S1_}, v{S1_}, v{S1_+2}", f"v_add_f32 v{S1_+1}, v{S1_+1}, v{S1_+3}",
                f"v_mov_b32 v{S1_+2}, v{S1_}", f"v_mov_b32 v{S1_+3}, v{S1_+1}", "s_nop 1",
                f"v_permlane32_swap_b32 v{S1_}, v{S1_+2}", f"v_permlane32_swap_b32 v{S1_+1}, v{S1_+3}", "s_nop 1",
                f"v_add_f32 v{S1_}, v{S1_}, v{S1_+2}", f"v_add_f32 v{S1_+1}, v{S1_+1}, v{S1_+3}",
                "v_and_b32 v4, 7, v0", "v_lshlrev_b32 v4, 6, v4", f"v_add_u32 v{S1_+4}, {SCR + 1024}, v4",
                "s_lshl_b32 s4, s20, 3", f"v_add_u32 v4, s4, v{S1_+4}", f"ds_write_b64 v4, v[{S1_}:{S1_+1}]"], None))
    spread([(u, s) for u in (1, 2) for s in range(4)][:7], it)
    it = [(["v_and_b32 v4, 15, v0", "v_lshlrev_b32 v4, 2, v4", f"v_add_u32 v5, {SCR}, v4"] +
           [f"ds_read_b32 v{WM_+w}, v5 offset:{w*64}" for w in range(8)] +
           [f"ds_read_b128 {vr(P+4*i,4)}, v{S1_+4} offset:{16*i}" for i in range(4)], None)]
    add((3, 0), it)
    it = []
    for w in range(1, 8): it.append(f"v_add_f32 v{WM_}, v{WM_}, v{WM_+w}")
    it += [f"v_cvt_pk_bf16_f32 v{WM_}, v{WM_}, v{WM_}", f"v_lshlrev_b32 v{WM_}, 16, v{WM_}"]
    it.append(([f"v_mov_b32 v5, 0x{BIG:x}", "v_lshlrev_b32 v4, 2, v9", "v_cmp_gt_u32 vcc, 16, v9", "s_lshl_b32 s4, s43, 6", "s_nop 0", "v_cndmask_b32 v5, v5, v4, vcc",
                f"buffer_store_dword v{WM_}, v5, s[56:59], s4 offen sc1"], 'modst'))
    for i in range(1, 8):
        it += [f"v_add_f32 v{P}, v{P}, v{P+2*i}", f"v_add_f32 v{P+1}, v{P+1}, v{P+2*i+1}"]
    it += [f"v_mul_f32 v{P}, 0x{f2u(1/512):08x}, v{P}", f"v_mul_f32 v{P+1}, 0x{f2u(1/512):08x}, v{P+1}",
           f"v_fma_f32 v{P+1}, -v{P}, v{P}, v{P+1}", f"v_max_f32 v{P+1}, 0, v{P+1}", f"v_add_f32 v{P+1}, 0x{f2u(1e-5):08x}, v{P+1}",
           f"v_rsq_f32 v{P+1}, v{P+1}"]
    for i in range(8): it.append(f"v_sub_f32 v{XA+i}, v{XA+i}, v{P}")
    for i in range(8): it.append(f"v_mul_f32 v{XA+i}, v{XA+i}, v{P+1}")
    spread([(3, 1), (3, 2), (3, 3)], it)
    MS = int(os.environ.get('K_MS', '4'))
    add((MS, 1), [lambda: vm.wait('modst')] + signal(1))
    MP = int(os.environ.get('K_MP', '8'))
    PL = int(os.environ.get('K_PL', '5'))
    def kb(u): return ((u*4 + 3 - PL) // 4, (u*4 + 3 - PL) % 4)
    add(kb(MP), poll_issue(["v_lshrrev_b32 v4, 1, v0", "v_and_b32 v5, 1, v0", "v_lshl_add_u32 v4, v4, 3, v5", "s_mov_b64 vcc, -1"], 1, 'pm'))
    ZS = int(os.environ.get('K_ZS', '3'))
    assert ZS < MS
    add((0, 0), [(["v_mov_b32 v4, 1", f"v_mov_b32 v5, 0x{BIG:x}", "v_cmp_eq_u32 vcc, 0, v9", "s_cmp_eq_u32 s2, 0", f"s_cselect_b32 s4, 0, 0x{BIG:x}",
                   "v_cndmask_b32 v5, v5, 0, vcc", "buffer_store_dword v4, v5, s[60:63], s4 offen sc1"], 'sig')])
    add(kb(ZS), poll_issue(["v_mov_b32 v4, 0", "v_cmp_eq_u32 vcc, 0, v9", "s_nop 0"], 1, 'pz', 60, '0'))
    prebar[ZS] = [poll_check('pz', 60, '0')]
    prebar[MP] = [poll_check('pm')]
    it = [(["v_lshrrev_b32 v4, 3, v0", "v_lshlrev_b32 v4, 5, v4", "s_lshl_b32 s4, s20, 8", "s_add_u32 s5, s4, 2048",
            f"buffer_load_dwordx4 {vr(MA,4)}, v4, s[56:59], s5 offen sc1"], 'ml'),
          ([f"buffer_load_dwordx4 {vr(MA+4,4)}, v4, s[56:59], s5 offen offset:16 sc1"], 'ml'),
          ([f"buffer_load_dwordx4 {vr(MA+8,4)}, v4, s[56:59], s4 offen sc1"], 'ml'),
          ([f"buffer_load_dwordx4 {vr(MA+12,4)}, v4, s[56:59], s4 offen offset:16 sc1"], 'ml')]
    postbar = {MP: [(sum([x[0] for x in it], []), None), lambda: vm.issue('ml', 4)]}
    it = [lambda: vm.wait('ml')]
    for i in range(8): it.append(f"v_add_f32 v{MA+i}, 1.0, v{MA+i}")
    for i in range(4):
        it += [f"v_cvt_pk_bf16_f32 v{MA+2*i}, v{MA+2*i}, v{MA+2*i+1}", f"v_and_b32 v{MA+2*i+1}, 0xffff0000, v{MA+2*i}", f"v_lshlrev_b32 v{MA+2*i}, 16, v{MA+2*i}"]
    for i in range(8): it.append(f"v_fma_f32 v{XA+i}, v{XA+i}, v{MA+i}, v{MA+8+i}")
    for i in range(4): it.append(f"v_cvt_pk_bf16_f32 v{XR+i}, v{XA+2*i}, v{XA+2*i+1}")
    it.append((["v_lshrrev_b32 v4, 4, v0", "v_lshlrev_b32 v4, 10, v4", "v_bfe_u32 v5, v0, 3, 1", "v_lshl_add_u32 v4, v5, 9, v4", "v_and_b32 v5, 7, v0", "v_lshl_add_u32 v4, v5, 4, v4",
                "s_lshr_b32 s4, s41, 2", "s_lshl_b32 s4, s4, 15", "s_and_b32 s5, s41, 3", "s_lshl_b32 s5, s5, 7", "s_add_u32 s4, s4, s5", "s_lshl_b32 s5, s20, 12", "s_add_u32 s4, s4, s5",
                f"buffer_store_dwordx4 {vr(XR,4)}, v4, s[52:55], s4 offen sc1"], 'hst'))
    HD_ = int(os.environ.get('K_HD', '1'))
    spread([(MP+HD_, 2), (MP+HD_, 3)], it)
    endwait = {MP+HD_+1: ['hst']}
    add((MP+HD_+1, 3), signal(2))
    PFS = int(os.environ.get('K_PF', '2'))
    if PFS >= 0:
        it = []
        for k_, nm in enumerate(('wuv', 'wq')):
            l_, h_ = kaptr(nm)
            for t in range(2):
                it.append(([f"s_mov_b32 s24, s{l_}", f"s_mov_b32 s25, s{h_}", f"s_mov_b32 s26, 0x{512*4096*2:x}", "s_lshl_b32 s4, s17, 19", "s_add_u32 s4, s4, s48",
                           f"s_add_u32 s4, s4, {t*262144}", f"buffer_load_dwordx4 {vr(TMP + (k_*2+t)*4, 4)}, v{VB}, s[24:27], s4 offen"], 'pf'))
        add((PFS, 1), it[:2]); add((PFS+1, 1), it[2:])
    def REL(n): return WS[n] - WS['k']
    def xform(rnd, u_dma, u_rd, T0):
        pre = []
        if rnd == 0:
            l_, h_ = kaptr('wo')
            pre += [f"s_mov_b32 s24, s{l_}", f"s_mov_b32 s25, s{h_}", f"s_mov_b32 s26, 0x{4096*512*2:x}", "s_mov_b32 s5, 1024",
                    "s_lshl_b32 s4, s16, 3", "s_add_u32 s4, s4, s20", "s_lshl_b32 s6, s4, 14", "s_lshl_b32 s7, s17, 7", "s_add_u32 s6, s6, s7",
                    "s_lshl_b32 s7, s17, 8", "s_add_u32 s4, s4, s7", "s_lshl_b32 s28, s4, 11", f"s_add_u32 s28, s28, 0x{REL('wof'):x}", "s_mov_b32 s29, 64"]
        else:
            il, ih = kaptr('win'); ol, oh = kaptr('wout')
            pre += ["s_lshl_b32 s4, s20, 8", "s_add_u32 s4, s4, s2",
                    "s_lshr_b32 s5, s4, 5", "s_and_b32 s6, s4, 31", f"s_mul_i32 s6, s6, {16*2752}", "s_lshl_b32 s7, s5, 7", "s_add_u32 s6, s6, s7",
                    "s_cmp_ge_u32 s5, 11", f"s_cselect_b32 s7, 0x{(1376 - 11*128) & 0xffffffff:x}, 0", "s_add_u32 s6, s6, s7",
                    "s_cmp_eq_u32 s5, 21", "s_cselect_b32 s29, 16, 64",
                    "s_lshl_b32 s28, s4, 11", f"s_add_u32 s28, s28, 0x{REL('wif'):x}",
                    f"s_mov_b32 s24, s{il}", f"s_mov_b32 s25, s{ih}", f"s_mov_b32 s26, 0x{512*1376*2:x}", "s_mov_b32 s5, 2752",
                    "s_cmp_lt_u32 s4, 704", f"s_cbranch_scc1 {L}_xf1",
                    "s_sub_u32 s4, s4, 704", f"s_mov_b32 s5, 0x{(1 << 32) // 43 + 1:x}", "s_mul_hi_u32 s5, s4, s5", "s_mul_i32 s6, s5, 43", "s_sub_u32 s6, s4, s6",
                    "s_lshl_b32 s6, s6, 14", "s_lshl_b32 s5, s5, 7", "s_add_u32 s6, s6, s5",
                    "s_lshl_b32 s28, s4, 11", f"s_add_u32 s28, s28, 0x{REL('wuf'):x}", "s_mov_b32 s29, 64",
                    "s_cmp_lt_u32 s4, 344", f"s_cselect_b32 s6, s6, 0x{BIG:x}", f"s_cselect_b32 s28, s28, 0x{BIG:x}",
                    f"s_mov_b32 s24, s{ol}", f"s_mov_b32 s25, s{oh}", f"s_mov_b32 s26, 0x{688*512*2:x}", "s_mov_b32 s5, 1024",
                    f"{L}_xf1:"]
        pre += [f"v_lshrrev_b32 v{T0}, 3, v0", f"v_mul_lo_u32 v{T0}, v{T0}, s5", f"v_and_b32 v{T0+1}, 7, v0", f"v_lshl_add_u32 v{T0}, v{T0+1}, 4, v{T0}",
                "s_lshl_b32 s7, s5, 3", "s_add_u32 s7, s7, s6", "s_lshl_b32 s4, s20, 11", f"s_add_u32 m0, s4, {SCR}", "s_nop 0",
                f"buffer_load_dwordx4 v{T0}, s[24:27], s6 offen lds", f"s_add_u32 m0, s4, {SCR + 1024}", "s_nop 0",
                f"buffer_load_dwordx4 v{T0}, s[24:27], s7 offen lds"]
        add((u_dma, 1), [(pre, ('xf', rnd), 2)])
        rd = [f"v_lshrrev_b32 v{T0}, 8, v8", f"v_lshlrev_b32 v{T0}, 7, v{T0}", f"v_and_b32 v{T0+1}, 63, v8", "s_lshl_b32 s4, s20, 11", f"s_add_u32 s4, s4, {SCR}",
              f"v_add3_u32 v{T0}, v{T0}, v{T0+1}, s4"]
        for nt in range(2):
            rd += [f"ds_read_b64_tr_b16 {vr(T0+4+nt*4,2)}, v{T0} offset:{nt*64}", f"ds_read_b64_tr_b16 {vr(T0+6+nt*4,2)}, v{T0} offset:{nt*64 + 512}"]
        add((u_rd, 1), [lambda: vm.wait(('xf', rnd)), (rd, None)])
        stx = [f"v_and_b32 v{T0+1}, 16, v0", f"v_cmp_eq_u32 vcc, s29, v{T0+1}", f"buffer_store_dwordx4 {vr(T0+4,4)}, v{VL16}, s[8:11], s28 offen sc1"] + \
              [f"v_cndmask_b32 v{T0+8+i}, v{T0+8+i}, 0, vcc" for i in range(4)] + \
              [f"buffer_store_dwordx4 {vr(T0+8,4)}, v{VL16}, s[8:11], s28 offen offset:1024 sc1"]
        add((u_rd, 2), [(stx, ('xs', rnd), 2)])
    XF = [int(x) for x in os.environ.get('K_XF', '4,6,11,13').split(',')]
    xform(0, XF[0], XF[1], ACB)
    xform(1, XF[2], XF[3], ACA)
    def acc(ph, mt, nt): return (ACA if ph == 0 else ACB) + (mt*2 + nt) * 16
    def stores(ph):
        o = []; k = 0
        for mt in range(2):
            for nt in range(2):
                for h in range(2):
                    t = TMP + (k % 4) * 4; k += 1
                    a = acc(ph, mt, nt) + h*8
                    off = (mt*8 + 2*nt + h)*1024 if ph == 0 else 16*MB + ((2*mt + h)*4 + nt)*1024
                    o.append([f"v_cvt_pk_bf16_f32 v{t+j}, v{a+2*j}, v{a+2*j+1}" for j in range(4)] +
                             [([f"s_add_u32 s4, s{22+ph}, 0x{off:x}", f"buffer_store_dwordx4 {vr(t,4)}, v{VL16}, s[8:11], s4 offen {os.environ.get('KVSC', 'sc1')}"], ('kv', ph))])
        return o
    e("s_lshl_b32 s21, s16, 19")
    e("s_lshl_b32 s4, s17, 16")
    e("s_add_u32 s4, s4, s21")
    e("s_lshl_b32 s5, s18, 14")
    e("s_add_u32 s4, s4, s5")
    e("s_lshl_b32 s5, s19, 12")
    e("s_add_u32 s22, s4, s5")
    e("s_lshl_b32 s5, s19, 11")
    e("s_add_u32 s23, s4, s5")
    ks_keys = [(8, 1), (8, 2), (9, 0), (9, 1), (9, 2), (10, 0), (10, 1), (10, 2)]
    for k_, st_ in zip(ks_keys, stores(0)): add(k_, st_)
    endwait.setdefault(12, []).append(('kv', 0))
    assert MP + HD_ + 1 < 12
    add((12, 3), signal(3))
    e("s_sub_u32 s4, 15, s17")
    e("s_cmp_eq_u32 s46, 0")
    e("s_cselect_b32 s30, s4, s17")
    e("s_lshl_b32 s31, s30, 2")
    e("s_add_u32 s31, s31, s50")
    e("s_lshl_b32 s31, s31, 15")
    e("s_cmp_eq_u32 s20, 0")
    e(f"s_cselect_b32 s42, 0, 0x{BIG:x}"); e(f"s_add_u32 s42, s42, 0x{FL0:x}")
    hsel = ["s_lshl_b32 s4, s17, 4", "s_sub_u32 s5, 224, s4", "v_mov_b32 v4, s4", "v_mov_b32 v5, s5", "v_cmp_gt_u32 vcc, 16, v0", "s_nop 1",
            "v_cndmask_b32 v4, v5, v4, vcc", "v_add_u32 v4, v4, v0", "v_cmp_gt_u32 vcc, 32, v0", "s_nop 0"]
    ksel = ["s_lshl_b32 s4, s16, 3", "v_add_u32 v4, s4, v0", "v_cmp_gt_u32 vcc, 8, v0", "s_nop 0"]
    HP = int(os.environ.get('K_HP', '13'))
    assert HP > MP + HD_ + 1
    add(kb(HP), poll_issue(hsel, 2, 'ph'))
    prebar[HP] = [poll_check('ph')]
    HS = os.environ.get('HSC', 'sc1')
    def hload(s):
        return ([f"s_add_u32 s4, s31, {s*1024}", f"buffer_load_dwordx4 {vr(HR + (s % HD)*4, 4)}, v{VL16}, s[52:55], s4 offen {HS}"], ('h', s))
    hk = [(HP, 3)] + [(u, s) for u in range(HP+1, 16) for s in range(4)]
    spread(hk, [hload(s) for s in range(HD)])
    for u_, j0 in ((14, 2), (15, 4)):
        add((u_, 0), poll_issue(["v_lshrrev_b32 v4, 1, v0", "v_and_b32 v5, 1, v0", "v_lshl_add_u32 v4, v4, 3, v5", f"v_add_u32 v4, {j0}, v4", "s_mov_b64 vcc, -1"], 1, f'pm{u_}'))
        prebar[u_] = [poll_check(f'pm{u_}')]
    add(('q', 11 - PL), poll_issue(ksel, 3, 'pk'))
    prebar[('q', 11)] = [stamp, poll_check('pk')]
    VPS = int(os.environ.get('K_VPS', '2'))
    for i, st_ in enumerate(stores(1)):
        add(('q', i // VPS), st_)
    for s in range(32 - HD): add(('q', s), [hload(s + HD)])
    VS = int(os.environ.get('K_VS', '11'))
    add(('q', VS), signal(4))
    VC = int(os.environ.get('K_VC', '23'))
    add(('q', VC - PL), poll_issue(ksel, 4, 'pv'))
    prebar[('q', VC)] = [poll_check('pv')]
    e("s_lshl_b32 s21, s50, 12")
    e("s_lshl_b32 s4, s46, 14")
    e("s_add_u32 s21, s21, s4")
    def kdma_l(buf):
        o = [[f"s_add_u32 m0, s49, {LK0 + buf*32768}", "s_nop 0", f"buffer_load_dwordx4 v{VL16}, s[32:35], s24 offen {DMAX} lds"]]
        for i in range(1, 4):
            o.append([f"buffer_load_dwordx4 v{VL16}, s[32:35], s24 offen offset:{i*1024} {DMAX} lds"])
        o[-1] += ["s_add_u32 s24, s24, 32768", "s_cmp_eq_u32 s24, s18", "s_cselect_b32 s24, s21, s24"]
        return o
    def vdma_l(buf):
        o = [[f"s_add_u32 m0, s49, {LV[buf]}", "s_nop 0", f"buffer_load_dwordx4 v{VL16}, s[60:63], s26 offen {DMAX} lds"]]
        for i in range(1, 4):
            o.append([f"buffer_load_dwordx4 v{VL16}, s[60:63], s26 offen offset:{i*1024} {DMAX} lds"])
        o[-1] += ["s_add_u32 s26, s26, 32768", "s_cmp_eq_u32 s26, s18", "s_cselect_b32 s26, s21, s26"]
        return o
    stamp()
    vm.wait(('st', 0))
    e("s_barrier")
    stamp()
    reads(0, 0)
    pend = []
    def slot(key, i, n=4):
        if pend: emit(pend.pop(0))
        fl = sched.get(key, [])
        k = (len(fl) + (n - i) - 1) // (n - i)
        for _ in range(k): emit(fl.pop(0))
    for u in range(16):
        ph = u // 8
        for s in range(4):
            st = s & 1
            ops = [(mt, nt) for mt in range(2) for nt in range(2)]
            def mf(mt, nt):
                c = "0" if (u % 8 == 0 and s == 0) else vr(acc(ph,mt,nt),16)
                a_, b_ = (fb(st,nt), fa(st,mt)) if ph == 0 else (fa(st,mt), fb(st,nt))
                e(f"v_mfma_f32_32x32x16_bf16 {vr(acc(ph,mt,nt),16)}, {vr(a_,4)}, {vr(b_,4)}, {c}")
            if s < 3:
                reads(s+1, st ^ 1)
                e("s_waitcnt lgkmcnt(6)")
                for i, (mt, nt) in enumerate(ops):
                    mf(mt, nt); slot((u, s), i)
            else:
                e("s_waitcnt lgkmcnt(0)")
                mf(*ops[0])
                while pend: emit(pend.pop(0))
                for x in prebar.pop(u, []): x()
                vm.wait([('st', u+1)] + endwait.get(u, []))
                e("s_barrier")
                stamp()
                d = BUF if (u+1) % 3 else -2*BUF
                for x in postbar.pop(u, []): emit(x)
                pend.extend(pieces(u+3))
                if u < 15:
                    for r_ in list(range(RA, RA+4)) + [RB_, RB_+1]:
                        e(f"v_add_u32 v{r_}, 0x{d & 0xffffffff:x}, v{r_}")
                    reads(0, 0)
                else:
                    for db in range(4):
                        e(f"v_xor_b32 v7, {db}, v6")
                        e(f"v_lshl_add_u32 v{RB_+db}, v7, 6, v8")
                        e(f"v_add_u32 v{RB_+db}, {(16 % 3)*BUF}, v{RB_+db}")
                    wreads(0)
                for i, (mt, nt) in enumerate(ops[1:]):
                    mf(mt, nt); slot((u, s), i, 3)
    e("s_lshl_b32 s49, s50, 12")
    e("s_lshl_b32 s4, s46, 14")
    e("s_add_u32 s49, s49, s4")
    e("s_mov_b32 s24, s21")
    e("s_mov_b32 s26, s21")
    e("s_sub_u32 s18, 16, s17"); e("s_lshl_b32 s18, s18, 15"); e("s_add_u32 s18, s18, s21")
    e("s_lshl_b32 s4, s16, 19")
    e("s_add_u32 s32, s8, s4"); e("s_addc_u32 s33, s9, 0"); e(f"s_mov_b32 s34, 0x{512*1024:x}")
    e(f"s_add_u32 s60, s32, 0x{16*MB:x}"); e("s_addc_u32 s61, s33, 0"); e(f"s_mov_b32 s62, 0x{512*1024:x}")
    QA = ACA
    for s in range(32):
        def mf(db):
            c = "0" if s == 0 else vr(QA+db*16,16)
            e(f"v_mfma_f32_32x32x16_bf16 {vr(QA+db*16,16)}, {vr(FR+(s%2)*16+db*4,4)}, {vr(HR+(s%HD)*4,4)}, {c}")
        hl = [x for x in sched.get(('q', s), []) if not callable(x) and not isinstance(x, str) and x[1] and x[1][0] == 'h']
        for x in hl: sched[('q', s)].remove(x)
        if s in (11, 23):
            vm.wait(('h', s), " lgkmcnt(0)")
            mf(0)
            while pend: emit(pend.pop(0))
            for x in prebar.pop(('q', s), []): x()
            vm.wait([('st', 17 if s == 11 else 18)] + ([('kv', 1)] if s == VS else []))
            e("s_barrier")
            stamp()
            pend.extend([(p, ('k', 0 if s == 11 else 1)) for p in kdma_l(0 if s == 11 else 1)])
            if s == VC: pend.extend([(p, ('v', 0)) for p in vdma_l(0)])
            d = BUF if s == 11 else -2*BUF
            for db in range(4): e(f"v_add_u32 v{RB_+db}, 0x{d & 0xffffffff:x}, v{RB_+db}")
            wreads(s+1)
            for db in range(1, 4):
                mf(db)
                slot(('q', s), db - 1, 3)
            for x in hl: emit(x)
        else:
            if s < 31:
                wreads(s+1)
                vm.wait(('h', s), " lgkmcnt(8)")
            else:
                vm.wait(('h', s), " lgkmcnt(0)")
            for db in range(4):
                mf(db)
                if s == VS and db == 0:
                    vm.wait(('kv', 1)); e("s_barrier")
                if s == VC and db == 0:
                    for x in prebar.pop(('q', s)): x()
                    e("s_barrier")
                    pend.extend([(p, ('v', 0)) for p in vdma_l(0)])
                slot(('q', s), db)
            for x in hl: emit(x)
    assert not pend
    for k_, v_ in sched.items(): assert not v_, k_
    assert not prebar and not postbar
    attn_main(L, lg, vm, kdma_l, vdma_l)
    from v5_tail import gen_tail
    gen_tail(L, stamp)
    e("s_waitcnt vmcnt(0)")
    stamp(); stamp_out()
    lab(f"{L}_end")
    e("s_endpgm")
    end(name, (256,1,1), (512,1,1), 163840, 256)

def attn_main(L, lg, vm, kdma_l, vdma_l):
    QA = ACA
    def kdma(buf):
        for p in kdma_l(buf):
            for x in p: e(x)
    def vdma(buf):
        for p in vdma_l(buf):
            for x in p: e(x)
    stamp()
    e("s_barrier")
    e("s_lshl_b32 s4, s50, 13")
    e(f"s_add_u32 s5, s4, {STASH}")
    e(f"s_add_u32 s6, s4, {LV1}")
    e("s_cmp_eq_u32 s46, 0")
    e("s_cselect_b32 s7, s6, s5")
    e(f"v_add_u32 v6, s6, v{VL16}")
    e(f"v_add_u32 v{VQ}, s5, v{VL16}")
    e(f"v_add_u32 v5, s7, v{VL16}")
    for u in range(2):
        e(f"s_add_u32 s6, s4, {LK0 + (u^1)*32768}")
        e(f"s_add_u32 s7, s4, 0x{(LV[u] - 16384) & 0xffffffff:x}")
        e("s_cmp_lt_u32 s50, 2")
        e("s_cselect_b32 s6, s6, s7")
        e("s_lshl_b32 s7, s46, 14")
        e("s_add_u32 s6, s6, s7")
        e(f"v_add_u32 v{VMG+u}, s6, v{VL16}")
    csc = (128 ** -0.5) * 1.4426950408889634
    e(f"s_mov_b32 s28, 0x{f2u(csc):08x}")
    e("s_nop 7")
    for i in range(32):
        e(f"v_mul_f32 v{QA+2*i}, s28, v{QA+2*i}")
        e(f"v_mul_f32 v{QA+2*i+1}, s28, v{QA+2*i+1}")
        e(f"v_cvt_pk_bf16_f32 v{Q+i}, v{QA+2*i}, v{QA+2*i+1}")
        if i % 4 == 3:
            e(f"ds_write_b128 v5, {vr(Q+i-3,4)} offset:{(i//4)*1024}")
    e("s_lshl_b32 s7, s46, 14")
    e(f"s_add_u32 s6, s7, {LK0}")
    e(f"v_add_u32 v{AK}, s6, v{VL16}")
    e("s_lshl_b32 s6, s46, 11")
    e("s_add_u32 s5, s7, s6")
    e(f"v_add_u32 v{AV}, s5, v{VL16}")
    e("s_sub_u32 s5, s7, s6")
    e(f"v_add_u32 v{AV+1}, s5, v{VL16}")
    e(f"s_mov_b32 s31, 0x{f2u(8.0):08x}")
    e("s_mov_b32 s52, 0x42c80000")
    e("s_mov_b32 s47, 0")
    e("s_sub_u32 s51, 15, s17")
    e("s_lshl_b32 s25, s20, 10")
    e("s_mov_b32 s19, 2")
    e("s_add_u32 s27, s51, 1")
    e("s_lshl_b32 s22, s51, 7")
    e("s_lshl_b32 s23, s50, 5")
    e("s_add_u32 s22, s22, s23")
    e("v_add_u32 v4, s22, v2")
    e("v_lshlrev_b32 v7, 2, v3")
    e(f"v_sub_u32 v{VREL}, v4, v7")
    e("s_lshl_b32 s22, s17, 7")
    e("s_add_u32 s22, s22, s23")
    e(f"v_add_u32 v{V4N}, s22, v2")
    e("s_lshl_b32 s4, s16, 13"); e("s_lshl_b32 s5, s46, 12"); e("s_add_u32 s4, s4, s5")
    e("s_lshl_b32 s5, s50, 18"); e("s_add_u32 s4, s4, s5")
    e("s_lshl_b32 s5, s51, 20"); e("s_add_u32 s22, s4, s5")
    e("s_lshl_b32 s5, s17, 20"); e("s_add_u32 s23, s4, s5")
    e("s_mov_b32 s53, s40")
    e("s_mov_b32 s54, 4")
    e(f"v_mov_b32 v25, 0x{BIG:x}"); e("v_cmp_eq_u32 vcc, 0, v9"); e("s_nop 1"); e("v_cndmask_b32 v25, v25, 0, vcc")
    e("s_and_b32 s4, s2, 7"); e("s_lshl_b32 s4, s4, 5"); e("s_lshr_b32 s5, s2, 3"); e("s_add_u32 s4, s4, s5")
    e("s_lshr_b32 s5, s4, 3"); e("s_and_b32 s4, s4, 7")
    e("s_lshl_b32 s6, s5, 3"); e("s_add_u32 s6, s6, s20"); e("s_lshl_b32 s44, s6, 15"); e("s_lshl_b32 s7, s4, 9"); e("s_add_u32 s44, s44, s7")
    e("s_lshr_b32 s6, s6, 2"); e("s_lshl_b32 s48, s6, 17"); e("s_lshl_b32 s7, s4, 14"); e("s_add_u32 s48, s48, s7")
    e("s_and_b32 s7, s20, 3"); e("s_lshl_b32 s7, s7, 7"); e("s_add_u32 s48, s48, s7"); e(f"s_add_u32 s48, s48, 0x{WS['wsf'] - WS['k'] - 4096:x}")
    e("s_mov_b32 s45, 0"); e(f"s_mov_b32 s55, 0x{BIG:x}")
    e("v_and_b32 v18, 7, v0"); e("v_lshrrev_b32 v7, 3, v0"); e("v_lshlrev_b32 v19, 4, v18")
    e("v_lshlrev_b32 v18, 12, v18"); e("v_lshl_add_u32 v18, v7, 4, v18")
    e("v_lshl_add_u32 v19, v7, 9, v19")
    pl, ph = kaptr('wsp'); srd(36, pl, ph, 2048*2048*2)
    def pfq():
        return ["buffer_store_dwordx4 v[248:251], v19, s[8:11], s55 offen sc1", "buffer_load_dwordx4 v[248:251], v18, s[36:39], s44 offen",
                "s_add_u32 s45, s45, 1", "s_add_u32 s44, s44, 128", "s_add_u32 s48, s48, 4096",
                "s_cmp_lt_u32 s45, 4", f"s_cselect_b32 s44, s44, 0x{BIG:x}", "s_cmp_lt_u32 s45, 5", f"s_cselect_b32 s55, s48, 0x{BIG:x}"]
    e("s_lshl_b32 s4, s20, 12"); e(f"s_add_u32 s4, s4, 0x{FL0:x}"); e("v_lshlrev_b32 v22, 7, v0"); e("v_add_u32 v22, s4, v22")
    e(f"v_mov_b32 v7, 0x{BIG:x}"); e("v_cmp_gt_u32 vcc, 32, v0"); e("s_nop 1"); e("v_cndmask_b32 v22, v7, v22, vcc"); e("v_cndmask_b32 v23, 0, 4, vcc")
    def prog():
        return ["v_mov_b32 v24, s54", "buffer_store_dword v24, v25, s[56:59], s53 offen sc1"]
    vm.wait(('k', 1), " lgkmcnt(0)")
    e("s_barrier")
    for i in range(8):
        e(f"ds_read_b128 {vr(Q+4*i,4)}, v6 offset:{i*1024}")
    for i in range(64):
        e(f"v_mov_b32 v{O+i}, 0")
    for i in range(16):
        e(f"v_mov_b32 v{NEGM+i}, 0")
    e(f"v_mov_b32 v{VL}, 0")
    e(f"v_mov_b32 v{VFL}, 0xf149f2ca")
    e("s_lshl_b32 s29, s46, 6")
    e("s_sub_u32 s30, s27, 1")
    e("s_mov_b32 s43, 0")
    SB = [S0, S1]
    def kitem(buf, q):
        g = q // 4; ds = (g % 2) * 4 + q % 4
        e(f"ds_read_b128 {vr(KF+(q%8)*4,4)}, v{AK} offset:{buf*32768 + ((g//2)*8 + ds)*1024}")
        return lg.issue(1)
    def vitem(buf, p):
        t = p // 4; db = p % 4
        e(f"ds_read_b128 {vr(KF+(p%8)*4,4)}, v{AV + db//2} offset:{LV[buf] + (t*4 + db)*1024}")
        return lg.issue(1)
    def qk_mfma(S, q):
        g = q // 4; ds = (g % 2) * 4 + q % 4; kb = g // 2
        c = vr(NEGM,16) if ds == 0 else vr(S+kb*16,16)
        return f"v_mfma_f32_32x32x16_bf16 {vr(S+kb*16,16)}, {vr(KF+(q%8)*4,4)}, {vr(Q+4*ds,4)}, {c}"
    def pv_mfma(S, p):
        t = p // 4; db = p % 4
        return f"v_mfma_f32_32x32x16_bf16 {vr(O+db*16,16)}, {vr(KF+(p%8)*4,4)}, {vr(S+8*t,4)}, {vr(O+db*16,16)}"
    uid = [0]
    def mask_max(S):
        uid[0] += 1
        lb = f"{L}_nm{uid[0]}"
        o = []
        o.append(("blk", [
            "s_cmp_lt_u32 s43, s30",
            f"s_cbranch_scc1 {lb}",
            f"v_subrev_u32 v{T}, s29, v{VREL}",
            f"v_mov_b32 v{T+1}, 0xff800000"] +
            sum([[f"v_cmp_gt_i32 vcc, {kb*32 + (i//4)*8 + i%4}, v{T}", "s_nop 1",
                  f"v_cndmask_b32 v{S+kb*16+i}, v{S+kb*16+i}, v{T+1}, vcc"] for kb in range(2) for i in range(16)], []) +
            [f"{lb}:", "s_add_u32 s29, s29, 128", "s_add_u32 s43, s43, 1"]))
        o.append(f"v_max3_f32 v{T}, v{S}, v{S+1}, v{S+2}")
        o.append(f"v_max3_f32 v{T+1}, v{S+3}, v{S+4}, v{S+5}")
        for i in range(6, 30, 4):
            o.append(f"v_max3_f32 v{T}, v{T}, v{S+i}, v{S+i+1}")
            o.append(f"v_max3_f32 v{T+1}, v{T+1}, v{S+i+2}, v{S+i+3}")
        o.append(f"v_max3_f32 v{T}, v{T}, v{S+30}, v{S+31}")
        o.append(f"v_max_f32 v{T}, v{T}, v{T+1}")
        o.append(f"v_mov_b32 v{T+1}, v{T}")
        o.append("PAD")
        o.append("PAD")
        o.append(f"v_permlane32_swap_b32 v{T}, v{T+1}")
        o.append("PAD")
        o.append("PAD")
        o.append(f"v_max_f32 v{T}, v{T}, v{T+1}")
        o.append(f"v_cmp_lt_f32 s[40:41], s31, v{T}")
        return o
    def slowpath(S):
        uid[0] += 1
        lb = f"{L}_sp{uid[0]}"
        e("s_cmp_eq_u64 s[40:41], 0")
        e(f"s_cbranch_scc1 {lb}")
        e("s_nop 15")
        e(f"v_max_f32 v{T}, v{T}, v{VFL}")
        e(f"v_min_f32 v{T+1}, s52, -v{T}")
        e(f"v_exp_f32 v{T+1}, v{T+1}")
        e(f"v_mov_b32 v{VFL}, 0")
        e(f"v_mul_f32 v{VL}, v{VL}, v{T+1}")
        for i in range(64):
            e(f"v_mul_f32 v{O+i}, v{O+i}, v{T+1}")
        for i in range(32):
            e(f"v_sub_f32 v{S+i}, v{S+i}, v{T}")
        for i in range(16):
            e(f"v_sub_f32 v{NEGM+i}, v{NEGM+i}, v{T}")
        e("s_nop 1")
        lab(lb)
    def exps(S):
        o = []
        for t in range(4):
            b = S + t*8
            o.append(f"v_exp_f32 v{b}, v{b}")
            for i in range(1, 8):
                o.append(f"v_exp_f32 v{b+i}, v{b+i}")
                o.append(f"v_add_f32 v{VL}, v{VL}, v{b+i-1}")
                if i % 2 == 0:
                    o.append(f"v_cvt_pk_bf16_f32 v{b+(i-2)//2}, v{b+i-2}, v{b+i-1}")
            o.append("PAD")
            o.append(f"v_add_f32 v{VL}, v{VL}, v{b+7}")
            o.append(f"v_cvt_pk_bf16_f32 v{b+3}, v{b+6}, v{b+7}")
        return o
    def emit(x):
        if isinstance(x, tuple):
            for s_ in x[1]:
                if s_.endswith(":"): lab(s_[:-1])
                else: e(s_)
        elif x == "PAD": e("s_nop 0")
        else: e(x)
    def popf(lst, n):
        k = 0
        first = True
        while lst and k < n:
            x = lst.pop(0)
            if x == "PAD" and first:
                first = False
                continue
            first = False
            emit(x); k += 1
    def need(lst, t, S):
        for x in lst:
            if isinstance(x, str) and x.startswith("v_cvt_pk") and f"v{S+8*t+3}," in x: return True
        return False
    lg.issue(8)
    tk = [kitem(0, q) for q in range(8)]
    for q in range(16):
        lg.wait(tk[q])
        e(qk_mfma(S0, q))
        if q < 8: tk.append(kitem(0, q+8))
    e("s_waitcnt vmcnt(0)")
    e("s_barrier")
    kdma(0)
    vdma(1)
    for x in pfq(): e(x)
    tk = [kitem(1, q) for q in range(8)]
    for x in mask_max(S0): emit(x)
    e("s_mov_b64 s[40:41], -1")
    e("s_mov_b32 s42, s27")
    if ST:
        stamp()
    VNO, MLT = 240, 242
    def loop_body(u, last):
        cur, nxt = SB[u], SB[u ^ 1]
        tk = [lg.n - 7 + i for i in range(8)]
        fill = exps(cur)
        mm = mask_max(nxt)
        slowpath(cur)
        if last:
            e(f"v_mov_b32 v{VNO}, v{NEGM}")
            e("s_cmp_lg_u32 s47, 0")
            e(f"s_cbranch_scc1 {L}_nsw{u}")
            for i in range(16): e(f"v_mov_b32 v{NEGM+i}, 0")
            e("v_lshlrev_b32 v7, 2, v3")
            e(f"v_sub_u32 v{VREL}, v{V4N}, v7")
            e("s_lshl_b32 s29, s46, 6")
            e("s_mov_b32 s30, s17")
            e("s_mov_b32 s43, 0")
            lab(f"{L}_nsw{u}")
        for q in range(16):
            lg.wait(tk[q])
            e(qk_mfma(nxt, q))
            if q < 8: tk.append(kitem(u ^ 1, q+8))
            else: tk.append(vitem(u, q-8))
            popf(fill, 3)
        tk = tk[16:]
        dm = []
        for p in range(16):
            if p % 4 == 0:
                while len(fill) > 0 and need(fill, p // 4, cur): emit(fill.pop(0))
                if any("v_cvt_pk" in y for y in out[-2:]): e("s_nop 1")
            lg.wait(tk[p])
            e(pv_mfma(cur, p))
            if p < 8: tk.append(vitem(u, p+8))
            elif p == 9:
                e(f"s_waitcnt vmcnt(0) lgkmcnt(0)")
                e("s_barrier")
                tk.append(kitem(u, 0)); tk.append(kitem(u, 1))
                for x in prog(): e(x)
                if last: e("buffer_load_dword v21, v22, s[56:59], 0 offen sc1")
                if not last:
                    dm = kdma_l(u ^ 1) + vdma_l(u)
                    dm[-1] = dm[-1] + pfq()
            elif p > 9:
                tk.append(kitem(u, p-8))
                if not last:
                    for _ in range(2 if p < 12 else 1):
                        for x in dm.pop(0): e(x)
            if p == 8 and not last:
                e("s_cmp_lg_u32 s42, s19")
                e(f"s_cbranch_scc1 {L}_nq{u}")
                for i in range(8):
                    e(f"ds_read_b128 {vr(Q+4*i,4)}, v{VQ} offset:{i*1024}")
                lab(f"{L}_nq{u}")
            if fill: popf(fill, 3)
            if p >= 2 and (not fill or p >= 8): popf(mm, 3 if p < 9 else 2)
        while fill: emit(fill.pop(0))
        while mm: emit(mm.pop(0))
    def merge(u):
        cur = SB[u]
        if ST:
            e("s_waitcnt lgkmcnt(0)"); stamp(True)
        e("s_lshl_b32 s4, s46, 14")
        e("s_lshl_b32 s5, s50, 9")
        e("s_add_u32 s4, s4, s5")
        e(f"s_add_u32 s4, s4, {STASH}")
        e("v_lshlrev_b32 v5, 3, v0")
        e("v_add_u32 v5, s4, v5")
        e(f"v_mov_b32 v{VNO+1}, v{VL}")
        e(f"v_xor_b32 v6, 0x4000, v{VMG+u}")
        e(f"ds_write_b64 v5, v[{VNO}:{VNO+1}]")
        e("v_xor_b32 v5, 0x4000, v5")
        e("s_nop 15")
        for i in range(8):
            e(f"ds_write_b128 v{VMG+u}, {vr(O+32+4*i,4)} offset:{i*1024}")
        e("s_waitcnt lgkmcnt(0)")
        e("s_barrier")
        e(f"ds_read_b64 v[{MLT}:{MLT+1}], v5")
        for i in range(8):
            e(f"ds_read_b128 {vr(cur+4*i,4)}, v6 offset:{i*1024}")
        for i in range(32): e(f"v_mov_b32 v{O+32+i}, 0")
        A0, A1, T0, T1 = MLT + 2, MLT + 3, MLT + 4, MLT + 5
        e("s_waitcnt lgkmcnt(8)")
        e(f"v_min_f32 v{T0}, v{VNO}, v{MLT}")
        e(f"v_sub_f32 v{A0}, v{T0}, v{VNO}")
        e(f"v_sub_f32 v{A1}, v{T0}, v{MLT}")
        e(f"v_exp_f32 v{A0}, v{A0}")
        e(f"v_exp_f32 v{A1}, v{A1}")
        e("s_nop 0")
        e(f"v_mul_f32 v{T0}, v{VL}, v{A0}")
        e(f"v_fmac_f32 v{T0}, v{MLT+1}, v{A1}")
        e(f"v_mov_b32 v{T1}, v{T0}")
        e("s_nop 1")
        e(f"v_permlane32_swap_b32 v{T0}, v{T1}")
        e("s_nop 1")
        e(f"v_add_f32 v{T0}, v{T0}, v{T1}")
        e(f"v_rcp_f32 v{T0}, v{T0}")
        e("s_nop 0")
        e(f"v_mul_f32 v{A0}, v{A0}, v{T0}")
        e(f"v_mul_f32 v{A1}, v{A1}, v{T0}")
        e("s_waitcnt vmcnt(0) lgkmcnt(0)")
        e(f"s_mov_b32 s7, {os.environ.get('SPIN', '0x40000')}")
        lab(f"{L}_ga{u}")
        e("v_cmp_gt_u32 vcc, v23, v21")
        e("s_sub_u32 s7, s7, 1")
        e("s_nop 2")
        e(f"s_cbranch_vccz {L}_gb{u}")
        e("s_cmp_eq_u32 s7, 0")
        e(f"s_cbranch_scc1 {L}_gb{u}")
        e("s_sleep 2")
        e("buffer_load_dword v21, v22, s[56:59], 0 offen sc1")
        e("s_waitcnt vmcnt(0)")
        e(f"s_branch {L}_ga{u}")
        lab(f"{L}_gb{u}")
        e("s_barrier")
        e("s_cmp_lg_u32 s47, 0")
        e(f"s_cbranch_scc1 {L}_m2{u}")
        kdma(u ^ 1); vdma(u)
        lab(f"{L}_m2{u}")
        for db in range(2):
            for h in range(2):
                a = O + db*16 + h*8
                b = cur + db*16 + h*8
                for j in range(8):
                    e(f"v_mul_f32 v{a+j}, v{a+j}, v{A0}")
                    e(f"v_fmac_f32 v{a+j}, v{b+j}, v{A1}")
                for j in range(4):
                    e(f"v_cvt_pk_bf16_f32 v{b+j}, v{a+2*j}, v{a+2*j+1}")
                e(f"buffer_store_dwordx4 {vr(b,4)}, v{VL16}, s[12:15], s22 offen offset:{(db*2+h)*1024} sc1")
        e("s_cmp_lg_u32 s47, 0")
        e(f"s_cbranch_scc1 {L}_done")
        for i in range(32): e(f"v_mov_b32 v{O+i}, 0")
        e(f"v_mov_b32 v{VL}, 0")
        e(f"v_mov_b32 v{VFL}, 0xf149f2ca")
        e("s_mov_b64 s[40:41], -1")
        e("s_mov_b32 s47, 1")
        e("s_mov_b32 s19, 0")
        e("s_add_u32 s42, s17, 1")
        e("s_mov_b32 s22, s23")
        e("s_mov_b32 s54, 5")
        for x in pfq(): e(x)
        if ST: stamp()
        e("s_cmp_eq_u32 s42, 1")
        e(f"s_cbranch_scc1 {L}_l{u^1}")
        e(f"s_branch {L}_n{u^1}")
    for u in range(2):
        lab(f"{L}_n{u}")
        loop_body(u, False)
        e("s_sub_u32 s42, s42, 1")
        e("s_cmp_eq_u32 s42, 1")
        e(f"s_cbranch_scc1 {L}_l{u^1}")
        if u == 1: e(f"s_branch {L}_n0")
    sv = stc[0]
    for u in range(2):
        lab(f"{L}_l{u}")
        stc[0] = sv
        loop_body(u, True)
        merge(u)
    stc[0] = sv + 3
    lab(f"{L}_done")
```

```python
from v2_common import *
import os
import v5_kva as KV
from v5_kva import VM, BIG, FL0, MBX, VL16

SPIN = os.environ.get('SPIN', '0x40000')
PSL = os.environ.get('TSLEEP', '1')
def REL(n): return WS[n] - WS['k']
Z1S = 147456
ST0 = 159744
X1 = 16
ACC = 160
uid = [0]

def gen_tail(L, stamp):
    def lb(n):
        uid[0] += 1
        return f"{L}_t{n}{uid[0]}"
    def spin(loads, check):
        a = lb('a'); b = lb('b')
        e(f"s_mov_b32 s7, {SPIN}")
        lab(a)
        e("s_waitcnt vmcnt(0)")
        for x in check: e(x)
        e("s_sub_u32 s7, s7, 1")
        e("s_nop 2")
        e(f"s_cbranch_vccz {b}")
        e("s_cmp_eq_u32 s7, 0")
        e(f"s_cbranch_scc1 {b}")
        if PSL != '0': e(f"s_sleep {PSL}")
        for x in loads: e(x)
        e(f"s_branch {a}")
        lab(b)
    def flagpoll(so):
        ld = [f"buffer_load_dword v6, v4, s[56:59], {so} offen sc1"]
        return ld, ["v_cmp_gt_u32 vcc, v5, v6"]
    def mfma(d, a, b, first):
        e(f"v_mfma_f32_32x32x16_bf16 {vr(d,16)}, {vr(a,4)}, {vr(b,4)}, " + ("0" if first else vr(d,16)))
    def flag(off):
        e("v_mov_b32 v4, 1")
        e(f"buffer_store_dword v4, v7, s[56:59], s25 offen offset:{off} sc1")

    if KV.ST:
        e(f"v_mov_b32 v15, v{KV.VSTR[0]}"); KV.VSTR[0] = 15
    e("v_mov_b32 v1, v25")
    e("s_and_b32 s4, s2, 7"); e("s_lshl_b32 s18, s4, 5"); e("s_lshr_b32 s5, s2, 3"); e("s_add_u32 s18, s18, s5")
    e("s_lshr_b32 s26, s4, 1")
    e("s_lshr_b32 s16, s18, 3"); e("s_and_b32 s17, s18, 7")
    e("s_lshl_b32 s19, s18, 11"); e(f"s_add_u32 s19, s19, 0x{MBX:x}")
    e("s_lshl_b32 s21, s16, 14"); e(f"s_add_u32 s21, s21, 0x{MBX:x}")
    e("s_lshl_b32 s25, s20, 2"); e("s_add_u32 s25, s25, s19")
    e("s_lshr_b32 s22, s20, 2"); e("s_bfe_u32 s23, s20, 0x10001"); e("s_and_b32 s24, s20, 1")
    DB = 8
    RING = 20
    def slot(k): return RING + (k % DB) * 16
    VA0, VW0 = 8, 10
    e("s_lshl_b32 s4, s24, 8"); e(f"v_xor_b32 v4, s4, v{VL16}")
    e("s_lshl_b32 s4, s23, 10"); e(f"v_add_u32 v{VW0}, s4, v4"); e("s_xor_b32 s4, s4, 1024"); e(f"v_add_u32 v{VW0+1}, s4, v4")
    e("s_lshl_b32 s4, s22, 18"); e(f"v_add_u32 v{VA0}, s4, v{VL16}"); e("s_xor_b32 s4, s4, 0x40000"); e(f"v_add_u32 v{VA0+1}, s4, v{VL16}")
    SA, SW = 28, 32
    e("s_lshl_b32 s5, s16, 19"); e("s_lshl_b32 s6, s17, 19"); e(f"s_add_u32 s6, s6, 0x{REL('wof'):x}")
    for i in range(4):
        e(f"s_add_u32 s4, s26, {i}"); e("s_and_b32 s4, s4, 3"); e("s_lshl_b32 s4, s4, 3"); e("s_add_u32 s4, s4, s20")
        e("s_lshl_b32 s7, s4, 14"); e(f"s_add_u32 s{SW+i}, s6, s7"); e("s_lshl_b32 s7, s4, 13"); e(f"s_add_u32 s{SA+i}, s5, s7")
    vm = VM()
    vm.issue('ctx', 4)
    def ldW(k):
        i, s = k >> 3, k & 7
        e(f"s_add_u32 s4, s{SW+i}, {(s >> 1)*4096}")
        for nt in range(2):
            e(f"buffer_load_dwordx4 {vr(slot(k)+8+nt*4,4)}, v{VW0+nt}, s[8:11], s4 offen offset:{(s & 1)*2048} sc1")
        vm.issue(('w', k), 2)
    def ldA(k):
        i, s = k >> 3, k & 7
        e(f"s_add_u32 s4, s{SA+i}, {(s >> 2)*4096}")
        for mt in range(2):
            e(f"buffer_load_dwordx4 {vr(slot(k)+mt*4,4)}, v{VA0+mt}, s[12:15], s4 offen offset:{(s & 3)*1024} sc1")
        vm.issue(('a', k), 2)
    for k in range(DB): ldW(k)
    EX, EG, EC, ES = 224, 228, 236, 244
    xl, xh_ = kaptr('x'); srd(36, xl, xh_, 2048*512*2)
    e("s_lshl_b32 s4, s16, 6"); e("s_lshl_b32 s5, s22, 5"); e("s_add_u32 s4, s4, s5"); e("s_lshl_b32 s27, s4, 10")
    e("s_lshl_b32 s4, s17, 6"); e("s_and_b32 s5, s20, 3"); e("s_lshl_b32 s5, s5, 4"); e("s_add_u32 s4, s4, s5")
    e("s_lshl_b32 s5, s4, 1"); e("s_add_u32 s27, s27, s5")
    e("s_lshl_b32 s40, s4, 2")
    e("v_lshlrev_b32 v13, 10, v2"); e("v_lshl_add_u32 v13, v3, 4, v13")
    e("v_lshlrev_b32 v14, 5, v3")
    e(f"buffer_load_dwordx4 {vr(EX,4)}, v13, s[36:39], s27 offen")
    for (r_, gi) in ((EG, 2), (EC, 4), (ES, 3)):
        e(f"s_add_u32 s4, s40, {gi*2048}")
        e(f"buffer_load_dwordx4 {vr(r_,4)}, v14, s[56:59], s4 offen sc1")
        e(f"buffer_load_dwordx4 {vr(r_+4,4)}, v14, s[56:59], s4 offen offset:16 sc1")
    vm.issue('ep', 7)
    e("s_lshr_b32 s4, s16, 1"); e("s_sub_u32 s5, 15, s4"); e("s_cmp_lt_u32 s4, 8"); e("s_cselect_b32 s4, s4, s5"); e("s_cselect_b32 s5, 6, 5")
    e("s_lshl_b32 s6, s20, 3"); e("s_add_u32 s4, s4, s6"); e("s_lshl_b32 s4, s4, 7"); e(f"s_add_u32 s41, s4, 0x{FL0:x}")
    e("v_lshlrev_b32 v4, 13, v0"); e(f"v_mov_b32 v6, 0x{BIG:x}"); e("v_mov_b32 v5, s5"); e("v_cmp_gt_u32 vcc, 4, v0"); e("s_nop 1")
    e("v_cndmask_b32 v4, v6, v4, vcc"); e("v_cndmask_b32 v5, 0, v5, vcc")
    e("v_cmp_eq_u32 vcc, 0, v0"); e("s_nop 1"); e("v_cndmask_b32 v7, v6, 0, vcc")
    e("v_mov_b32 v6, 6")
    vm.wait('ctx')
    e("s_barrier")
    e("buffer_store_dword v6, v1, s[56:59], s53 offen sc1")
    stamp()
    ld, ck = flagpoll('s41')
    for x in ld: e(x)
    spin(ld, ck)
    stamp()
    vm = VM()
    for k in range(DB): ldA(k)
    def acc2(mt, nt): return ACC + (mt*2 + nt)*16
    VWC = 1
    WCS = 6
    def wc(s, nt): return RING + (s % WCS)*12 + nt*4
    SWC = 44
    wsl, wsh = kaptr('ws')
    srd_off(48, wsl, wsh, WS['wif'], 22*65536)
    e("s_and_b32 s42, s20, 3")
    e("s_mul_i32 s4, s17, 3"); e("s_cmp_eq_u32 s22, 0"); e("s_cselect_b32 s5, 22, 0"); e("s_add_u32 s4, s4, s5"); e("s_lshl_b32 s6, s42, 14")
    for nt in range(3):
        e(f"s_add_u32 s5, s4, {nt}"); e("s_lshr_b32 s7, s5, 1"); e("s_lshl_b32 s7, s7, 16"); e("s_and_b32 s5, s5, 1"); e("s_lshl_b32 s5, s5, 10")
        e("s_add_u32 s7, s7, s5"); e(f"s_add_u32 s{SWC+nt}, s7, s6")
    e("s_and_b32 s4, s22, s24"); e("s_lshl_b32 s4, s4, 8"); e(f"v_xor_b32 v{VWC}, s4, v{VL16}")
    def ldWC(s, nt):
        e(f"s_add_u32 s4, s{SWC+nt}, {(s >> 1)*4096}")
        e(f"buffer_load_dwordx4 {vr(wc(s,nt),4)}, v{VWC}, s[48:51], s4 offen offset:{(s & 1)*2048} sc1")
        vm.issue(('wc', s))
    wcq = [(s, nt) for s in range(WCS) for nt in range(3)]
    for k in range(32):
        vm.wait(('a', k))
        r = slot(k)
        for mt in range(2):
            for nt in range(2):
                mfma(acc2(mt, nt), r + 8 + nt*4, r + mt*4, k == 0)
        if k + DB < 32:
            ldW(k + DB); ldA(k + DB)
        else:
            free = (k + DB - 32 + 1) * 16
            while wcq and wc(*wcq[0]) + 4 - RING <= free: ldWC(*wcq.pop(0))
    assert not wcq
    stamp()
    def reduce8():
        e("s_mul_i32 s4, s20, 14336"); e(f"v_add_u32 v4, s4, v{VL16}")
        e("s_nop 7")
        for g in (1, 2, 3, 4, 5, 6, 7):
            if g == 6: e("s_nop 7")
            for q in range(2):
                e(f"ds_write_b128 v4, {vr(ACC + g*8 + q*4, 4)} offset:{(g-1)*2048 + q*1024}")
        for g in range(1, 8):
            e(f"s_xor_b32 s4, s20, {g}"); e("s_mul_i32 s4, s4, 14336"); e(f"v_add_u32 v{148+g}, s4, v{VL16}")
        e("s_waitcnt lgkmcnt(0)")
        e("s_barrier")
        for g in range(1, 8):
            for q in range(2):
                e(f"ds_read_b128 {vr(ACC + g*8 + q*4, 4)}, v{148+g} offset:{(g-1)*2048 + q*1024}")
        for g in range(1, 8):
            e(f"s_waitcnt lgkmcnt({14 - 2*g})")
            for j in range(8): e(f"v_add_f32 v{ACC+j}, v{ACC+j}, v{ACC+g*8+j}")
    reduce8()
    stamp()
    T = ACC + 8
    vm.wait(('a', 31))
    for j in range(4):
        e(f"v_lshlrev_b32 v{T+2*j}, 16, v{EX+j}"); e(f"v_and_b32 v{T+2*j+1}, 0xffff0000, v{EX+j}")
    for j in range(8): e(f"v_fmac_f32 v{T+j}, v{EG+j}, v{ACC+j}")
    for j in range(4): e(f"v_cvt_pk_bf16_f32 v{X1+j}, v{T+2*j}, v{T+2*j+1}")
    e("s_mov_b32 s5, 0x3f803f80")
    for j in range(4):
        e(f"v_dot2_f32_bf16 v{T+8}, v{X1+j}, s5, " + ("0" if j == 0 else f"v{T+8}"))
        e(f"v_dot2_f32_bf16 v{T+9}, v{X1+j}, v{X1+j}, " + ("0" if j == 0 else f"v{T+9}"))
    e("s_lshl_b32 s4, s22, 11"); e("s_lshl_b32 s5, s42, 4"); e("s_add_u32 s4, s4, s5"); e(f"s_add_u32 s4, s4, {ST0}")
    e("v_lshlrev_b32 v4, 6, v2"); e("v_lshl_add_u32 v4, v3, 3, v4"); e("v_add_u32 v4, s4, v4")
    e(f"ds_write_b64 v4, v[{T+8}:{T+9}]")
    for j in range(4):
        e(f"v_lshlrev_b32 v{T+2*j}, 16, v{X1+j}"); e(f"v_and_b32 v{T+2*j+1}, 0xffff0000, v{X1+j}")
    for j in range(8): e(f"v_add_f32 v{EC+j}, 1.0, v{EC+j}")
    for j in range(4):
        e(f"v_cvt_pk_bf16_f32 v{EC+2*j}, v{EC+2*j}, v{EC+2*j+1}"); e(f"v_and_b32 v{EC+2*j+1}, 0xffff0000, v{EC+2*j}"); e(f"v_lshlrev_b32 v{EC+2*j}, 16, v{EC+2*j}")
    e("v_lshlrev_b32 v5, 3, v2"); e("v_lshl_add_u32 v5, v3, 13, v5"); e("s_lshl_b32 s4, s22, 8"); e("s_add_u32 s4, s4, 512"); e("v_add_u32 v5, s4, v5")
    e("s_add_u32 s6, s21, 4096")
    e("s_waitcnt lgkmcnt(0)")
    e("s_barrier")
    sk = lb('s')
    e("s_cmp_lg_u32 s20, 0"); e(f"s_cbranch_scc1 {sk}")
    R = T + 16
    e("v_lshlrev_b32 v4, 6, v0"); e(f"v_add_u32 v4, {ST0}, v4")
    for i in range(4): e(f"ds_read_b128 {vr(R+4*i,4)}, v4 offset:{16*i}")
    e("v_lshlrev_b32 v4, 3, v0")
    e("s_waitcnt lgkmcnt(0)")
    for i in range(1, 8):
        e(f"v_add_f32 v{R}, v{R}, v{R+2*i}"); e(f"v_add_f32 v{R+1}, v{R+1}, v{R+2*i+1}")
    e(f"v_or_b32 v{R}, 1, v{R}"); e(f"v_or_b32 v{R+1}, 1, v{R+1}")
    e(f"buffer_store_dwordx2 v[{R}:{R+1}], v4, s[56:59], s19 offen offset:512 sc1")
    lab(sk)
    ld = [f"buffer_load_dwordx2 v[{R+2*i}:{R+2*i+1}], v5, s[56:59], {'s21' if i < 2 else 's6'} offen offset:{(i & 1)*2048} sc1" for i in range(4)]
    ck = [f"v_min3_u32 v4, v{R}, v{R+1}, v{R+2}", f"v_min3_u32 v6, v{R+3}, v{R+4}, v{R+5}", f"v_min3_u32 v4, v4, v{R+6}, v{R+7}", "v_min_u32 v4, v4, v6", "v_cmp_eq_u32 vcc, 0, v4"]
    for x in ld: e(x)
    spin(ld, ck)
    stamp()
    for i in range(1, 4):
        e(f"v_add_f32 v{R}, v{R}, v{R+2*i}"); e(f"v_add_f32 v{R+1}, v{R+1}, v{R+2*i+1}")
    e(f"v_mov_b32 v{R+2}, v{R}"); e(f"v_mov_b32 v{R+3}, v{R+1}"); e("s_nop 1")
    e(f"v_permlane32_swap_b32 v{R}, v{R+2}"); e(f"v_permlane32_swap_b32 v{R+1}, v{R+3}"); e("s_nop 1")
    e(f"v_add_f32 v{R}, v{R}, v{R+2}"); e(f"v_add_f32 v{R+1}, v{R+1}, v{R+3}")
    def lnstat(a, n):
        e(f"v_mul_f32 v{a}, 0x{f2u(1/n):08x}, v{a}"); e(f"v_mul_f32 v{a+1}, 0x{f2u(1/n):08x}, v{a+1}")
        e(f"v_fma_f32 v{a+1}, -v{a}, v{a}, v{a+1}"); e(f"v_max_f32 v{a+1}, 0, v{a+1}"); e(f"v_add_f32 v{a+1}, 0x{f2u(1e-5):08x}, v{a+1}")
        e(f"v_rsq_f32 v{a+1}, v{a+1}"); e("s_nop 0"); e(f"v_mul_f32 v{a}, -v{a}, v{a+1}")
    lnstat(R, 512)
    for j in range(8): e(f"v_fma_f32 v{T+j}, v{T+j}, v{R+1}, v{R}")
    for j in range(8): e(f"v_fma_f32 v{T+j}, v{T+j}, v{EC+j}, v{ES+j}")
    for j in range(4): e(f"v_cvt_pk_bf16_f32 v{T+8+j}, v{T+2*j}, v{T+2*j+1}")
    e("s_lshl_b32 s4, s16, 1"); e("s_add_u32 s4, s4, s22"); e("s_lshl_b32 s4, s4, 5"); e("s_lshl_b32 s5, s17, 2"); e("s_add_u32 s4, s4, s5"); e("s_add_u32 s4, s4, s42")
    e("s_lshl_b32 s4, s4, 10"); e(f"s_add_u32 s4, s4, 0x{REL('h2f'):x}")
    e(f"buffer_store_dwordx4 {vr(T+8,4)}, v{VL16}, s[8:11], s4 offen sc1")
    e("v_lshrrev_b32 v4, 3, v0"); e("v_lshlrev_b32 v4, 11, v4"); e("v_and_b32 v5, 7, v0"); e("v_lshl_add_u32 v4, v5, 2, v4")
    e(f"v_mov_b32 v6, 0x{BIG:x}"); e("v_cmp_gt_u32 vcc, 16, v0"); e("s_lshl_b32 s4, s42, 12"); e("s_add_u32 s41, s21, s4")
    e("v_cndmask_b32 v8, v6, v4, vcc"); e("v_cndmask_b32 v5, 0, 1, vcc")
    VH = 10
    e("v_and_b32 v4, 0x33, v0"); e("v_bfe_u32 v6, v0, 2, 1"); e("v_lshl_or_b32 v4, v6, 3, v4"); e("v_bfe_u32 v6, v0, 3, 1"); e("v_lshl_or_b32 v4, v6, 2, v4")
    e("s_lshl_b32 s4, s24, 4"); e("v_xor_b32 v4, s4, v4"); e("v_lshlrev_b32 v4, 4, v4")
    e("s_cmp_eq_u32 s22, 0"); e("s_cselect_b64 vcc, -1, 0"); e("s_nop 1"); e(f"v_cndmask_b32 v{VH}, v{VL16}, v4, vcc"); e(f"v_add_u32 v{VH+1}, 4096, v{VH}")
    SH = 28
    e("s_lshl_b32 s4, s16, 1"); e("s_add_u32 s4, s4, s23"); e("s_lshl_b32 s4, s4, 15"); e("s_lshl_b32 s5, s42, 13"); e("s_add_u32 s4, s4, s5")
    e(f"s_add_u32 s{SH}, s4, 0x{REL('h2f'):x}"); e(f"s_xor_b32 s{SH+1}, s{SH}, 0x8000")
    e("s_waitcnt vmcnt(0)")
    flag(0)
    e("v_mov_b32 v4, v8")
    stamp()
    ld, ck = flagpoll('s41')
    for x in ld: e(x)
    spin(ld, ck)
    stamp()
    HR = 92
    def hr(s, mt): return HR + s*8 + mt*4
    def acc3(mt, nt): return ACC + (mt*3 + nt)*16
    vm = VM()
    for s in range(8):
        for mt in range(2):
            e(f"buffer_load_dwordx4 {vr(hr(s,mt),4)}, v{VH + (s >> 2)}, s[8:11], s{SH+mt} offen offset:{(s & 3)*1024} sc1")
        vm.issue(('h', s), 2)
    DD = 7
    def dslot(k): return RING + (k % DD)*20
    VS0, VZ = 8, 10
    SS, SZ = 30, 31
    e("s_lshl_b32 s4, s22, 17"); e(f"v_add_u32 v{VS0}, s4, v{VL16}"); e("s_xor_b32 s4, s4, 0x20000"); e(f"v_add_u32 v{VS0+1}, s4, v{VL16}")
    e("s_lshl_b32 s4, s16, 18"); e("s_lshl_b32 s5, s20, 14"); e("s_add_u32 s4, s4, s5"); e(f"s_add_u32 s{SS}, s4, 0x{REL('wsf'):x}")
    e("s_lshl_b32 s4, s17, 7"); e("s_lshl_b32 s5, s20, 4"); e("s_add_u32 s4, s4, s5"); e("s_mul_i32 s4, s4, 3072"); e(f"s_add_u32 s{SZ}, s4, 0x{REL('z2f'):x}")
    def ldS(k):
        e(f"s_add_u32 s4, s{SS}, {(k >> 2)*4096}")
        for mt in range(2):
            e(f"buffer_load_dwordx4 {vr(dslot(k)+mt*4,4)}, v{VS0+mt}, s[8:11], s4 offen offset:{(k & 3)*1024} sc1")
        vm.issue(('s', k), 2)
    c1 = -2.0 * 0.7978845608028654 * 1.4426950408889634
    lz1, lcj = lb('z'), lb('j')
    e("s_cmp_lg_u32 s22, 0"); e(f"s_cbranch_scc1 {lz1}")
    vm0 = list(vm.ops)
    for path in (0, 1):
        if path == 1: lab(lz1)
        vm.ops = list(vm0)
        if path == 0 and os.environ.get('CPRIO', '1') != '0': e(f"s_setprio {os.environ.get('CPRIO', '1')}")
        for s in range(8):
            vm.wait([('h', s)] + ([('wc', s)] if s >= WCS else []))
            for mt in range(2):
                for nt in range(3):
                    if path == 0: mfma(acc3(mt, nt), hr(s, mt), wc(s, nt), s == 0)
                    else: mfma(acc3(mt, nt), wc(s, nt), hr(s, mt), s == 0)
            if s + WCS < 8:
                for nt in range(3): ldWC(s + WCS, nt)
        if path == 0: stamp()
        for k in range(DD): ldS(k)
        e("s_mul_i32 s4, s20, 18432"); e(f"v_add_u32 v4, s4, v{VL16}")
        def grp(g, nt, q): return acc3(g >> 1, nt) + (g & 1)*8 + q*4
        for g in (1, 2, 3):
            for nt in range(3):
                for q in range(2):
                    e(f"ds_write_b128 v4, {vr(grp(g,nt,q),4)} offset:{(g-1)*6144 + nt*2048 + q*1024}")
        for g in (1, 2, 3):
            e(f"s_xor_b32 s4, s20, {g}"); e("s_mul_i32 s4, s4, 18432"); e(f"v_add_u32 v{3+g}, s4, v{VL16}")
        e(f"s_mov_b32 s4, 0x{f2u(c1):08x}"); e("v_mov_b32 v11, s4")
        e("s_waitcnt lgkmcnt(0)")
        e("s_barrier")
        for g in (1, 2, 3):
            for nt in range(3):
                for q in range(2):
                    e(f"ds_read_b128 {vr(grp(g,nt,q),4)}, v{3+g} offset:{(g-1)*6144 + nt*2048 + q*1024}")
        for g in (1, 2, 3):
            for nt in range(3):
                e(f"s_waitcnt lgkmcnt({min(15, 18 - (g-1)*6 - nt*2 - 2)})")
                for j in range(8): e(f"v_add_f32 v{acc3(0,nt)+j}, v{acc3(0,nt)+j}, v{grp(g,nt,0)+j}")
        e("s_barrier")
        if path == 0: stamp()
        for nt in range(3):
            a = acc3(0, nt); t = a + 8
            for j in range(8): e(f"v_mul_f32 v{t+j}, v{a+j}, v{a+j}")
            for j in range(8): e(f"v_fmamk_f32 v{t+j}, v{t+j}, 0x{f2u(c1*0.044715):08x}, v11")
            for j in range(8): e(f"v_mul_f32 v{t+j}, v{t+j}, v{a+j}")
            for j in range(8): e(f"v_exp_f32 v{t+j}, v{t+j}")
            for j in range(8): e(f"v_add_f32 v{t+j}, 1.0, v{t+j}")
            for j in range(8): e(f"v_rcp_f32 v{t+j}, v{t+j}")
            e("s_nop 0")
            for j in range(8): e(f"v_mul_f32 v{a+j}, v{t+j}, v{a+j}")
        if path == 1:
            e("s_mul_i32 s4, s23, 6144"); e("s_lshl_b32 s5, s24, 10"); e("s_add_u32 s4, s4, s5"); e(f"s_add_u32 s4, s4, {Z1S}"); e(f"v_add_u32 v4, s4, v{VL16}")
            for nt in range(3):
                a = acc3(0, nt)
                for j in range(4): e(f"v_cvt_pk_bf16_f32 v{a+8+j}, v{a+2*j}, v{a+2*j+1}")
                e(f"ds_write_b128 v4, {vr(a+8,4)} offset:{nt*2048}")
            if os.environ.get('DBGZ1'):
                e("s_lshl_b32 s4, s16, 1"); e("s_add_u32 s4, s4, s23"); e("s_mul_i32 s4, s4, 48"); e("s_mul_i32 s5, s17, 6"); e("s_add_u32 s4, s4, s5"); e("s_add_u32 s4, s4, s24")
                e("s_lshl_b32 s4, s4, 10"); e(f"s_add_u32 s4, s4, 0x{REL('x1t'):x}")
                for nt in range(3): e(f"buffer_store_dwordx4 {vr(acc3(0,nt)+8,4)}, v{VL16}, s[8:11], s4 offen offset:{nt*2048}") if nt < 2 else (e("s_add_u32 s4, s4, 4096"), e(f"buffer_store_dwordx4 {vr(acc3(0,nt)+8,4)}, v{VL16}, s[8:11], s4 offen"))
            continue
        P = acc3(1, 0)
        for j in range(8):
            e(f"v_add_f32 v{P+j}, v{acc3(0,0)+j}, v{acc3(0,1)+j}"); e(f"v_mul_f32 v{P+8+j}, v{acc3(0,0)+j}, v{acc3(0,0)+j}")
        for j in range(8):
            e(f"v_add_f32 v{P+j}, v{P+j}, v{acc3(0,2)+j}"); e(f"v_fmac_f32 v{P+8+j}, v{acc3(0,1)+j}, v{acc3(0,1)+j}")
        for j in range(8): e(f"v_fmac_f32 v{P+8+j}, v{acc3(0,2)+j}, v{acc3(0,2)+j}")
        e("s_nop 1")
        for j in range(8): e(f"v_permlane16_swap_b32 v{P+j}, v{P+8+j}")
        e("s_nop 1")
        for j in range(8): e(f"v_add_f32 v{P+j}, v{P+j}, v{P+8+j}")
        for rr in (8, 4, 2, 1):
            e("s_nop 0")
            for j in range(8): e(f"v_add_f32_dpp v{P+j}, v{P+j}, v{P+j} row_ror:{rr}")
        for j in range(8): e(f"v_or_b32 v{P+j}, 1, v{P+j}")
        e("v_and_b32 v4, 15, v0"); e("v_lshlrev_b32 v5, 1, v0"); e(f"v_mov_b32 v6, 0x{BIG:x}"); e("v_cmp_eq_u32 vcc, 0, v4")
        e("s_lshl_b32 s4, s20, 7"); e("s_add_u32 s5, s4, s19"); e("v_cndmask_b32 v4, v6, v5, vcc")
        e(f"buffer_store_dwordx4 {vr(P,4)}, v4, s[56:59], s5 offen offset:1024 sc1")
        e(f"buffer_store_dwordx4 {vr(P+4,4)}, v4, s[56:59], s5 offen offset:1040 sc1")
        e("v_lshrrev_b32 v4, 3, v0"); e("v_lshlrev_b32 v4, 11, v4"); e("v_and_b32 v5, 7, v0"); e("v_lshl_add_u32 v4, v5, 4, v4"); e("s_add_u32 s6, s4, s21")
        R = P + 16
        ld = [f"buffer_load_dwordx4 {vr(R,4)}, v4, s[56:59], s6 offen offset:1024 sc1"]
        ck = [f"v_min3_u32 v6, v{R}, v{R+1}, v{R+2}", f"v_min_u32 v6, v6, v{R+3}", "v_cmp_eq_u32 vcc, 0, v6"]
        for x in ld: e(x)
        e("v_bfe_u32 v5, v0, 2, 1"); e("v_lshlrev_b32 v5, 6, v5"); e("v_and_b32 v6, 1, v0"); e("v_lshl_add_u32 v5, v6, 4, v5"); e("v_bfe_u32 v6, v0, 1, 1"); e("v_lshl_add_u32 v5, v6, 7, v5")
        e("s_lshl_b32 s4, s20, 8"); e(f"s_add_u32 s4, s4, {ST0}"); e("v_add_u32 v5, s4, v5"); e("v_lshlrev_b32 v11, 6, v3"); e("v_add_u32 v11, s4, v11")
        spin(ld, ck)
        stamp()
        for i in range(4): e(f"v_add_f32_dpp v{R+i}, v{R+i}, v{R+i} row_ror:8")
        for sw in ("v_permlane16_swap_b32", "v_permlane32_swap_b32"):
            for i in range(4): e(f"v_mov_b32 v{R+4+i}, v{R+i}")
            e("s_nop 1")
            for i in range(4): e(f"{sw} v{R+i}, v{R+4+i}")
            e("s_nop 1")
            for i in range(4): e(f"v_add_f32 v{R+i}, v{R+i}, v{R+4+i}")
        e("s_nop 1")
        for i in range(4): e(f"v_mov_b32_dpp v{R+4+i}, v{R+i} quad_perm:[2,3,0,1]")
        n = 688
        for i in range(4): e(f"v_mul_f32 v{R+i}, 0x{f2u(1/n):08x}, v{R+i}"); e(f"v_mul_f32 v{R+4+i}, 0x{f2u(1/n):08x}, v{R+4+i}")
        for i in range(4): e(f"v_fma_f32 v{R+4+i}, -v{R+i}, v{R+i}, v{R+4+i}")
        for i in range(4): e(f"v_max_f32 v{R+4+i}, 0, v{R+4+i}")
        for i in range(4): e(f"v_add_f32 v{R+4+i}, 0x{f2u(1e-5):08x}, v{R+4+i}")
        for i in range(4): e(f"v_rsq_f32 v{R+4+i}, v{R+4+i}")
        e("s_nop 0")
        for i in range(4): e(f"v_mul_f32 v{R+i}, -v{R+i}, v{R+4+i}")
        e(f"ds_write_b128 v5, {vr(R+4,4)}")
        e(f"ds_write_b128 v5, {vr(R,4)} offset:32")
        for i in range(4): e(f"ds_read_b128 {vr(P+4*i,4)}, v11 offset:{16*i}")
        e("s_lshl_b32 s4, s17, 7"); e("s_lshl_b32 s5, s16, 2"); e("s_add_u32 s4, s4, s5"); e("s_add_u32 s4, s4, s42"); e("s_mul_i32 s4, s4, 3072"); e(f"s_add_u32 s4, s4, 0x{REL('z2f'):x}")
        e("s_waitcnt lgkmcnt(0)")
        for nt in range(3):
            a = acc3(0, nt)
            for j in range(8): e(f"v_fma_f32 v{a+j}, v{a+j}, v{P+j}, v{P+8+j}")
            for j in range(4): e(f"v_cvt_pk_bf16_f32 v{a+8+j}, v{a+2*j}, v{a+2*j+1}")
            e(f"buffer_store_dwordx4 {vr(a+8,4)}, v{VL16}, s[8:11], s4 offen offset:{nt*1024} sc1")
        e("s_waitcnt vmcnt(0)")
        flag(128)
        e("s_setprio 0")
        e(f"s_branch {lcj}")
    lab(lcj)
    e("v_lshrrev_b32 v4, 2, v0"); e("v_lshlrev_b32 v4, 14, v4"); e("v_and_b32 v5, 3, v0"); e("v_lshl_add_u32 v4, v5, 2, v4")
    e(f"v_mov_b32 v6, 0x{BIG:x}"); e("v_cmp_gt_u32 vcc, 16, v0"); e("s_lshl_b32 s4, s20, 16"); e("s_lshl_b32 s5, s17, 11"); e("s_add_u32 s4, s4, s5"); e(f"s_add_u32 s41, s4, 0x{MBX + 128:x}")
    e("v_cndmask_b32 v4, v6, v4, vcc"); e("v_cndmask_b32 v5, 0, 1, vcc")
    e("s_lshl_b32 s4, s23, 8"); e("s_lshl_b32 s5, s24, 7"); e("s_add_u32 s4, s4, s5"); e(f"v_xor_b32 v{VZ}, s4, v{VL16}")
    stamp()
    ld, ck = flagpoll('s41')
    for x in ld: e(x)
    spin(ld, ck)
    stamp()
    vm = VM()
    def ldZ(k):
        e(f"s_add_u32 s4, s{SZ}, {k*3072}")
        for nt in range(3):
            e(f"buffer_load_dwordx4 {vr(dslot(k)+8+nt*4,4)}, v{VZ}, s[8:11], s4 offen offset:{nt*1024} sc1")
        vm.issue(('z', k), 3)
    for k in range(DD): ldZ(k)
    NE = 6
    WE, UE, GB, BS = RING, RING + 48, RING + 96, RING + 104
    VWE = 1
    SE = 32
    SU = [44, 45, 46, 47, 28, 29]
    e("s_lshl_b32 s4, s24, 8"); e(f"v_xor_b32 v4, s4, v{VL16}")
    e("s_lshl_b32 s4, s23, 10"); e("v_add_u32 v1, s4, v4"); e("s_xor_b32 s4, s4, 1024"); e("v_add_u32 v11, s4, v4")
    e("s_mul_i32 s4, s17, 43"); e("s_add_u32 s4, s4, s20"); e("s_lshl_b32 s4, s4, 11"); e(f"s_add_u32 s4, s4, 0x{REL('wuf'):x}")
    e("s_mul_i32 s5, s16, 96"); e("s_add_u32 s5, s5, s20"); e("s_lshl_b32 s5, s5, 10"); e(f"s_add_u32 s5, s5, 0x{REL('uf'):x}")
    for i in range(NE):
        e(f"s_add_u32 s{SE+i}, s4, {i*16384}"); e(f"s_add_u32 s{SU[i]}, s5, {i*8192}")
    e("s_cmp_lt_u32 s20, 3"); e(f"s_cselect_b32 s{SE+5}, s{SE+5}, 0x{BIG:x}"); e(f"s_cselect_b32 s{SU[5]}, s{SU[5]}, 0x{BIG:x}")
    bl, bh = kaptr('bsp'); srd(48, bl, bh, 2048*2)
    eq = []
    for i in range(NE):
        for nt in range(2):
            eq.append((WE + i*8 + nt*4, f"buffer_load_dwordx4 {vr(WE+i*8+nt*4,4)}, v{1 if nt == 0 else 11}, s[8:11], s{SE+i} offen sc1"))
    for k in range(16):
        vm.wait(('z', k))
        r = dslot(k)
        for mt in range(2):
            for nt in range(3):
                mfma(acc3(mt, nt), r + 8 + nt*4, r + mt*4, k == 0)
        if k + DD < 16:
            ldS(k + DD); ldZ(k + DD)
        else:
            pass
    stamp()
    e("s_lshr_b32 s4, s27, 9"); e("s_and_b32 s4, s4, 0xffffffc0")
    e("v_lshlrev_b32 v4, 1, v2")
    e(f"buffer_load_ushort v{BS}, v4, s[48:51], s4 offen")
    for (_, x) in eq: e(x)
    e(f"s_add_u32 s4, s40, {5*2048}")
    e(f"buffer_load_dwordx4 {vr(GB,4)}, v14, s[56:59], s4 offen sc1")
    e(f"buffer_load_dwordx4 {vr(GB+4,4)}, v14, s[56:59], s4 offen offset:16 sc1")
    vm.issue('bs'); vm.issue('we', 14)
    e("s_mul_i32 s4, s20, 12288"); e(f"v_add_u32 v4, s4, v{VL16}")
    e("s_xor_b32 s5, s20, 4"); e("s_mul_i32 s4, s5, 12288"); e(f"v_add_u32 v5, s4, v{VL16}")
    e("s_nop 4")
    for i in range(12): e(f"ds_write_b128 v4, {vr(acc3(1,0)+4*i,4)} offset:{i*1024}")
    for g in (1, 2, 3):
        e(f"s_xor_b32 s4, s5, {g}"); e("s_mul_i32 s4, s4, 12288"); e(f"v_add_u32 v{7+g}, s4, v{VL16}")
    e("s_mul_i32 s4, s22, 6144"); e("s_lshl_b32 s6, s23, 10"); e("s_add_u32 s4, s4, s6"); e("s_lshl_b32 s6, s24, 3"); e("s_add_u32 s4, s4, s6"); e(f"s_add_u32 s4, s4, {Z1S}")
    e(f"v_add_u32 v6, s4, v{VL16}")
    e("s_waitcnt lgkmcnt(0)")
    e("s_barrier")
    def q4(nt, g): return nt*4 + g
    order = [(nt, g) for g in (1, 2, 3) for nt in range(3)] + [(nt, 0) for nt in range(3)]
    for (nt, g) in order: e(f"ds_read_b128 {vr(acc3(1,0)+4*q4(nt,g),4)}, v5 offset:{q4(nt,g)*1024}")
    for i, (nt, g) in enumerate(order):
        e(f"s_waitcnt lgkmcnt({11 - i})")
        for j in range(4): e(f"v_add_f32 v{acc3(0,0)+4*q4(nt,g)+j}, v{acc3(0,0)+4*q4(nt,g)+j}, v{acc3(1,0)+4*q4(nt,g)+j}")
    for (nt, g) in order[:9]: e(f"ds_write_b128 v5, {vr(acc3(0,0)+4*q4(nt,g),4)} offset:{q4(nt,g)*1024}")
    ZR = acc3(1, 0)
    for nt in range(3): e(f"ds_read_b64 {vr(ZR+40+2*nt,2)}, v6 offset:{nt*2048}")
    e("s_waitcnt lgkmcnt(0)")
    e("s_barrier")
    for i, (nt, g) in enumerate(order[:9]): e(f"ds_read_b128 {vr(ZR+4*i,4)}, v{7+g} offset:{q4(nt,g)*1024}")
    vm.wait('bs')
    e(f"v_lshlrev_b32 v{BS}, 16, v{BS}")
    for nt in range(3):
        for j in range(4): e(f"v_add_f32 v{acc3(0,nt)+j}, v{acc3(0,nt)+j}, v{BS}")
        for j in range(2):
            e(f"v_lshlrev_b32 v{acc3(0,nt)+4+2*j}, 16, v{ZR+40+2*nt+j}"); e(f"v_and_b32 v{acc3(0,nt)+5+2*j}, 0xffff0000, v{ZR+40+2*nt+j}")
    e("s_lshl_b32 s4, s16, 1"); e("s_add_u32 s4, s4, s22"); e("s_mul_i32 s4, s4, 48"); e("s_mul_i32 s5, s17, 6"); e("s_add_u32 s4, s4, s5"); e("s_add_u32 s4, s4, s23")
    e("s_lshl_b32 s4, s4, 10"); e("s_lshl_b32 s5, s24, 3"); e("s_add_u32 s4, s4, s5"); e(f"s_add_u32 s4, s4, 0x{REL('uf'):x}"); e("s_add_u32 s5, s4, 4096")
    for i, (nt, g) in enumerate(order[:9]):
        e(f"s_waitcnt lgkmcnt({8 - i})")
        for j in range(4): e(f"v_add_f32 v{acc3(0,nt)+j}, v{acc3(0,nt)+j}, v{ZR+4*i+j}")
    e("s_barrier")
    for nt in range(3):
        a = acc3(0, nt)
        for j in range(4): e(f"v_mul_f32 v{a+j}, v{a+j}, v{a+4+j}")
        for j in range(2): e(f"v_cvt_pk_bf16_f32 v{a+8+j}, v{a+2*j}, v{a+2*j+1}")
        e(f"buffer_store_dwordx2 {vr(a+8,2)}, v{VL16}, s[8:11], {'s4' if nt < 2 else 's5'} offen offset:{(nt & 1)*2048} sc1")
    e("v_lshrrev_b32 v8, 3, v0"); e("v_lshlrev_b32 v8, 11, v8"); e("v_and_b32 v5, 7, v0"); e("v_lshl_add_u32 v8, v5, 2, v8"); e("v_mov_b32 v5, 1")
    e("s_add_u32 s41, s21, 256")
    e("s_mul_i32 s4, s22, 49152"); e(f"v_add_u32 v9, s4, v{VL16}"); e("s_sub_u32 s4, 49152, s4"); e(f"v_add_u32 v10, s4, v{VL16}")
    e("s_waitcnt vmcnt(0)")
    flag(256)
    e("v_mov_b32 v4, v8")
    stamp()
    ld, ck = flagpoll('s41')
    for x in ld: e(x)
    spin(ld, ck)
    stamp()
    vm = VM()
    for i in range(NE):
        for mt in range(2):
            e(f"buffer_load_dwordx4 {vr(UE+i*8+mt*4,4)}, v{9+mt}, s[8:11], s{SU[i]} offen sc1")
        vm.issue(('u', i), 2)
    ol, oh = kaptr('out'); srd(36, ol, oh, 2048*512*2)
    for i in range(NE):
        vm.wait(('u', i))
        for mt in range(2):
            for nt in range(2):
                mfma(acc2(mt, nt), WE + i*8 + nt*4, UE + i*8 + mt*4, i == 0)
    stamp()
    reduce8()
    T = ACC + 8
    for j in range(4):
        e(f"v_lshlrev_b32 v{T+2*j}, 16, v{X1+j}"); e(f"v_and_b32 v{T+2*j+1}, 0xffff0000, v{X1+j}")
    for j in range(8): e(f"v_fmac_f32 v{T+j}, v{GB+j}, v{ACC+j}")
    for j in range(4): e(f"v_cvt_pk_bf16_f32 v{T+8+j}, v{T+2*j}, v{T+2*j+1}")
    e(f"buffer_store_dwordx4 {vr(T+8,4)}, v13, s[36:39], s27 offen")
```

```python
import sys, os
sys.path.insert(0, os.path.dirname(os.path.abspath(__file__)))
from v2_common import *
from v2_attn import *
from v3_attn import gen_attn8
import v2_common

def gen_win():
    name = "win_kernel"
    L = "L_win"
    lg = LG()
    begin(name)
    e("s_cmp_ge_u32 s2, 240")
    e(f"s_cbranch_scc1 {L}_end")
    load_kargs()
    e("s_and_b32 s4, s2, 7")
    e("s_lshr_b32 s5, s2, 3")
    e("s_mul_i32 s4, s4, 30")
    e("s_add_u32 s4, s4, s5")
    sdiv(17, 4, 15, 5)
    e("s_mul_i32 s5, s17, 15")
    e("s_sub_u32 s16, s4, s5")
    e("v_mov_b32 v9, v0")
    e("v_lshrrev_b32 v1, 6, v0")
    e("v_and_b32 v0, 63, v0")
    e("s_nop 0")
    e("v_readfirstlane_b32 s20, v1")
    e("s_waitcnt lgkmcnt(0)")
    wsl, wsh = kaptr('ws')
    srd_off(12, wsl, wsh, WS['z'], 2048*1376*2)
    srd_off(32, wsl, wsh, WS['x1t'], 2048*512*2)
    ql, qh = kaptr('win'); srd(36, ql, qh, 512*1376*2)
    srd_off(56, wsl, wsh, WS['mod'], 3072*4)
    srd_off(40, wsl, wsh, WS['st'], 2048*128)
    VW, AV, MT0 = 12, 16, 240
    QA, R0, VX, AX = 32, 112, 13, 14
    MODL = 65536
    e("v_and_b32 v2, 31, v0")
    e("v_lshrrev_b32 v3, 5, v0")
    e("s_lshl_b32 s22, s17, 7")
    e("s_lshl_b32 s23, s20, 5")
    e("s_add_u32 s22, s22, s23")
    e("v_add_u32 v4, s22, v2")
    e("v_lshlrev_b32 v6, 3, v9")
    e(f"s_mov_b32 s4, {4*2048}")
    e(f"s_mov_b32 s5, {3*2048}")
    e(f"buffer_load_dwordx2 v[{MT0}:{MT0+1}], v6, s[56:59], s4 offen")
    e(f"buffer_load_dwordx2 v[{MT0+2}:{MT0+3}], v6, s[56:59], s5 offen")
    e("v_lshlrev_b32 v5, 7, v4")
    e("v_lshl_add_u32 v5, v3, 6, v5")
    for i in range(4):
        e(f"buffer_load_dwordx4 {vr(200+4*i,4)}, v5, s[40:43], 0 offen offset:{16*i}")
    e("v_lshrrev_b32 v6, 4, v0")
    e("v_bfe_u32 v7, v0, 2, 2")
    e("v_xor_b32 v7, v7, v6")
    e("v_and_b32 v8, 3, v0")
    e("v_lshlrev_b32 v7, 6, v7")
    e("v_lshl_add_u32 v7, v8, 4, v7")
    e("s_mov_b32 s4, 2752")
    e("v_mul_lo_u32 v1, v6, s4")
    e(f"v_add_u32 v{VW}, v7, v1")
    e("v_xor_b32 v7, v8, v6")
    e("v_lshrrev_b32 v1, 2, v0")
    e("v_lshlrev_b32 v1, 6, v1")
    e(f"v_lshl_add_u32 v{VX}, v7, 4, v1")
    e("s_lshl_b32 s25, s20, 10")
    e("s_lshl_b32 s44, s20, 11")
    e("s_mul_i32 s45, s16, 192")
    e(f"s_mul_i32 s4, s20, {4*2752}")
    e("s_add_u32 s45, s45, s4")
    e("s_lshl_b32 s48, s22, 10")
    def dma_slot(j):
        b = (j % 4) * 16384
        for i in range(2):
            e(f"s_add_u32 m0, s44, {b + i*1024}")
            e(f"s_add_u32 s4, s48, {i*16384 + j*1024}")
            e(f"buffer_load_dwordx4 v{VX}, s[32:35], s4 offen lds")
        for i in range(2):
            e(f"s_add_u32 m0, s25, {b + 8192 + i*4096}")
            e(f"s_add_u32 s4, s45, {(j*32 + i*16)*2752}")
            e(f"buffer_load_dwordx4 v{VW}, s[36:39], s4 offen lds")
    for j in range(3): dma_slot(j)
    e("v_bfe_u32 v6, v0, 2, 2")
    e("v_bfe_u32 v8, v0, 4, 1")
    e("v_lshlrev_b32 v8, 5, v8")
    e("v_and_b32 v7, 1, v0")
    e("v_lshl_add_u32 v8, v7, 4, v8")
    e("v_bfe_u32 v7, v0, 1, 1")
    e("v_lshl_add_u32 v8, v7, 3, v8")
    e("v_lshl_add_u32 v7, v3, 3, v6")
    e("v_lshl_add_u32 v7, v7, 8, v8")
    for db in range(4):
        e(f"v_xor_b32 v1, {db}, v6")
        e(f"v_lshl_add_u32 v{AV+db}, v1, 6, v7")
    e("v_xor_b32 v7, v6, v3")
    e("v_lshlrev_b32 v1, 6, v2")
    e("v_add_u32 v1, s44, v1")
    e(f"v_lshl_add_u32 v{AX}, v7, 4, v1")
    e("v_xor_b32 v7, 2, v7")
    e(f"v_lshl_add_u32 v{AX+1}, v7, 4, v1")
    e("v_lshlrev_b32 v30, 5, v3")
    e(f"v_add_u32 v30, {MODL}, v30")
    e("s_waitcnt vmcnt(12)")
    e(f"v_add_f32 v{MT0}, 1.0, v{MT0}")
    e(f"v_add_f32 v{MT0+1}, 1.0, v{MT0+1}")
    e(f"v_cvt_pk_bf16_f32 v{MT0}, v{MT0}, v{MT0+1}")
    e(f"v_and_b32 v{MT0+1}, 0xffff0000, v{MT0}")
    e(f"v_lshlrev_b32 v{MT0}, 16, v{MT0}")
    e("v_lshlrev_b32 v6, 3, v9")
    e(f"v_add_u32 v6, {MODL}, v6")
    e(f"ds_write_b64 v6, v[{MT0}:{MT0+1}]")
    e(f"ds_write_b64 v6, v[{MT0+2}:{MT0+3}] offset:2048")
    e("v_add_f32 v28, v200, v202"); e("v_add_f32 v29, v201, v203")
    for i in range(2, 8):
        e(f"v_add_f32 v28, v28, v{200+2*i}"); e(f"v_add_f32 v29, v29, v{201+2*i}")
    e("v_mov_b32 v26, v28"); e("v_mov_b32 v27, v29")
    e("s_nop 1")
    e("v_permlane32_swap_b32 v28, v26")
    e("v_permlane32_swap_b32 v29, v27")
    e("s_nop 1")
    e("v_add_f32 v28, v28, v26")
    e("v_add_f32 v29, v29, v27")
    e(f"v_mul_f32 v28, 0x{f2u(1/512):08x}, v28")
    e(f"v_mul_f32 v29, 0x{f2u(1/512):08x}, v29")
    e("v_fma_f32 v29, -v28, v28, v29")
    e("v_max_f32 v29, 0, v29")
    e(f"v_add_f32 v29, 0x{f2u(1e-5):08x}, v29")
    e("v_rsq_f32 v29, v29")
    e("s_nop 0")
    e("v_mul_f32 v28, v28, v29")
    e("v_sub_f32 v28, 0, v28")
    lnproj2(L, QA, R0, AX, AV, lg, True, dma_slot, 0, 0, 3)
    e("s_nop 15")
    c1 = -2.0 * 0.7978845608028654 * 1.4426950408889634
    e(f"s_mov_b32 s20, 0x{f2u(c1):08x}")
    e(f"s_mov_b32 s21, 0x{f2u(c1*0.044715):08x}")
    e("s_mov_b32 s4, 2752")
    e("v_mul_lo_u32 v5, v4, s4")
    e("v_lshl_add_u32 v5, v3, 4, v5")
    e("s_mul_i32 s23, s16, 192")
    for db in range(3):
        if db == 1:
            e("s_cmp_eq_u32 s16, 14")
            e(f"s_cbranch_scc1 {L}_end")
        for h in range(2):
            a = QA + db*16 + h*8
            gelu8(a, 112)
            for j in range(4):
                e(f"v_cvt_pk_bf16_f32 v{a+j}, v{a+2*j}, v{a+2*j+1}")
            e(f"buffer_store_dwordx4 {vr(a,4)}, v5, s[12:15], s23 offen offset:{(db*32+h*16)*2}")
    lab(f"{L}_end")
    e("s_endpgm")
    end(name, (240,1,1), (256,1,1), 65536 + 4096, 256)

def gen_lnz():
    name = "lnz_kernel"
    begin(name)
    L = "L_lnz_end"
    e("s_cmp_ge_u32 s2, 512")
    e(f"s_cbranch_scc1 {L}")
    e(f"s_load_dwordx2 s[6:7], s[0:1], {KA['ws']}")
    e("s_waitcnt lgkmcnt(0)")
    srd_off(8, 6, 7, WS['z'] + 688*2, 2048*1376*2 - 688*2); srd_off(12, 6, 7, WS['z2n'], 2048*704*2)
    e("v_lshrrev_b32 v1, 6, v0")
    e("v_and_b32 v2, 63, v0")
    e("s_lshl_b32 s3, s2, 2")
    e("v_add_u32 v1, s3, v1")
    e("s_mov_b32 s20, 2752")
    e("v_mul_lo_u32 v3, v1, s20")
    e("v_lshl_add_u32 v3, v2, 4, v3")
    e("s_mov_b32 s20, 1408")
    e("v_mul_lo_u32 v4, v1, s20")
    e("v_lshl_add_u32 v4, v2, 4, v4")
    e("buffer_load_dwordx4 v[8:11], v3, s[8:11], 0 offen")
    for i in range(4): e(f"v_mov_b32 v{12+i}, 0")
    e("v_cmp_gt_u32 vcc, 22, v2")
    e("s_and_saveexec_b64 s[22:23], vcc")
    e("buffer_load_dwordx4 v[12:15], v3, s[8:11], 0 offen offset:1024")
    e("s_mov_b64 exec, s[22:23]")
    e("s_waitcnt vmcnt(0)")
    for ch in range(2):
        for i in range(4):
            e(f"v_lshlrev_b32 v{16+8*ch+2*i}, 16, v{8+4*ch+i}")
            e(f"v_and_b32 v{17+8*ch+2*i}, 0xffff0000, v{8+4*ch+i}")
    def wsum(r, t):
        for dpp in ("row_shr:1", "row_shr:2", "row_shr:4", "row_shr:8", "row_bcast:15 row_mask:0xa", "row_bcast:31 row_mask:0xc"):
            e("s_nop 1")
            e(f"v_add_f32_dpp v{r}, v{r}, v{r} {dpp}" + (" bound_ctrl:0" if "shr" in dpp else ""))
        e("s_nop 1")
        e(f"v_readlane_b32 s24, v{r}, 63")
        e("s_nop 1")
        e(f"v_mov_b32 v{r}, s24")
    e("v_mov_b32 v6, v16")
    for i in range(1, 16): e(f"v_add_f32 v6, v6, v{16+i}")
    wsum(6, 7)
    e(f"s_mov_b32 s20, 0x{f2u(1.0/688):08x}")
    e("v_mul_f32 v6, s20, v6")
    e("v_cmp_gt_u32 vcc, 22, v2")
    for i in range(16):
        e(f"v_sub_f32 v{16+i}, v{16+i}, v6")
        if i >= 8: e(f"v_cndmask_b32 v{16+i}, 0, v{16+i}, vcc")
    e("v_mul_f32 v6, v16, v16")
    for i in range(1, 16): e(f"v_fmac_f32 v6, v{16+i}, v{16+i}")
    wsum(6, 7)
    e("v_mul_f32 v6, s20, v6")
    e(f"v_add_f32 v6, 0x{f2u(1e-5):08x}, v6")
    e("v_rsq_f32 v6, v6")
    e("s_nop 0")
    for i in range(16): e(f"v_mul_f32 v{16+i}, v{16+i}, v6")
    for ch in range(2):
        for i in range(4):
            e(f"v_cvt_pk_bf16_f32 v{8+4*ch+i}, v{16+8*ch+2*i}, v{17+8*ch+2*i}")
    e("buffer_store_dwordx4 v[8:11], v4, s[12:15], 0 offen")
    e("v_cmp_gt_u32 vcc, 24, v2")
    e("s_and_saveexec_b64 s[22:23], vcc")
    e("buffer_store_dwordx4 v[12:15], v4, s[12:15], 0 offen offset:1024")
    lab(L)
    e("s_endpgm")
    end(name, (512,1,1), (256,1,1), 0, 48)

def main():
    cfg = dict(kv=(256,256,32,2,4,4,0), op=(64,64,64,2,2,4,1), sp=(128,64,64,2,2,4,1), wo=(64,64,64,2,2,4,1))
    for a in sys.argv[2:]:
        k, v = a.split("=")
        cfg[k] = tuple(int(x) for x in v.split(","))
    raw('.amdgcn_target "amdgcn-amd-amdhsa--gfx950"')
    raw(".text")
    W = 512*4096*2
    BM, BN, BK, GM, GN, S, DP = cfg['kv']
    V5 = os.environ.get('V5', '1') == '1'
    if V5:
        if os.environ.get("V9", "1") == "1" and os.environ.get("V8", "1") == "1": from v9_kva import gen_kva
        elif os.environ.get("V8", "1") == "1": from v8_kva import gen_kva
        elif os.environ.get('V7', '1') == '1': from v7_kva import gen_kva
        elif os.environ.get('V6', '1') == '1': from v6_kva import gen_kva
        else: from v5_kva import gen_kva
        gen_kva()
    elif os.environ.get('KVA', '1') == '1':
        from v4_kva import gen_kva
        gen_kva()
    else:
        gen_gemm("kv_kernel", 2048, 8192, 512, BM, BN, BK, GM, GN, S,
             (('ka','ckv'), 1024, 2048*512*2), ([('ka','wuk'), ('ka','wuv')], 8192, W, 4096), 'kv', order=os.environ.get('KVORD','nm'), withmod=True, deep=DP)
        if os.environ.get('A8', '1') == '1': gen_attn8()
        else: gen_attn()
    if not V5:
        BM, BN, BK, GM, GN, S, DP = cfg['op']
        gen_gemm("oproj_kernel", 2048, 512, 4096, BM, BN, BK, GM, GN, S,
                 (('ws','ctx'), 8192, 2048*4096*2), ([('ka','wo')], 1024, 4096*512*2, 512), 'oproj', order='mn', deep=DP)
        gen_win()
        gen_lnz()
        BM, BN, BK, GM, GN, S, DP = cfg['sp']
        gen_gemm("wsp_kernel", 2048, 688, 2048, BM, BN, BK, GM, GN, S,
                 (('ka','wsp'), 4096, 2048*2048*2), ([('ws','z2n')], 1408, 2048*704*2, 1024), 'sp', order='mn', deep=DP)
        BM, BN, BK, GM, GN, S, DP = cfg['wo']
        gen_gemm("wout_kernel", 2048, 512, 704, BM, BN, BK, GM, GN, S,
                 (('ws','u'), 1408, 2048*704*2), ([('ka','wout')], 1024, 688*512*2, 512), 'final', order='mn', deep=DP)
    hdr = open("adaLN_cond__compressed_kv_cla__mixer_gmlp__prompt.s.ref").read().split("\n")
    hdr = [h for h in hdr if h.startswith(";") and "@launch" not in h and "Override" not in h and "grid=ceil" not in h]
    txt = "\n".join(hdr) + "\n"
    for (n, g, b, lds, nv, ns) in kernels:
        txt += f"; @launch kernel={n} grid=({g[0]},{g[1]},{g[2]}) block=({b[0]},{b[1]},{b[2]}) lds={lds}\n"
    txt += "\n".join(out) + "\n"
    txt += '.section .rodata,"a"\n'
    for (n, g, b, lds, nv, ns) in kernels:
        nv8 = (nv + 7) // 8 * 8
        txt += f""".p2align 6
.amdhsa_kernel {n}
  .amdhsa_next_free_vgpr {nv8}
  .amdhsa_next_free_sgpr {ns}
  .amdhsa_accum_offset {min(nv8,256)}
  .amdhsa_group_segment_fixed_size 0
  .amdhsa_kernarg_size 128
  .amdhsa_user_sgpr_count 2
  .amdhsa_user_sgpr_kernarg_segment_ptr 1
  .amdhsa_system_sgpr_workgroup_id_x 1
.end_amdhsa_kernel
"""
    open(sys.argv[1], "w").write(txt)
    for k in kernels: print(k)

main()
```
